```python
import torch

def _softmax(x, axis=-1):
    return torch.softmax(x, dim=axis)
def _gelu(x):
    return torch.nn.functional.gelu(x, approximate="tanh")
def _silu(x):
    return torch.nn.functional.silu(x)
def _sigmoid(x):
    return torch.sigmoid(x)
def _layernorm(x, axis=-1, eps=1e-5):
    m = x.mean(dim=axis, keepdim=True)
    v = x.var(dim=axis, keepdim=True, unbiased=False)
    return (x - m) / torch.sqrt(v + eps)
def _scatter_add(tgt, idx, src, axis=0):
    return tgt.clone().index_add_(axis, idx, src)
def _segment_sum(src, seg, n):
    out = torch.zeros((n,) + src.shape[1:], dtype=src.dtype)
    return out.index_add_(0, seg, src)
def _pad(x, pw):
    flat = tuple(v for pair in reversed(pw) for v in pair)
    return torch.nn.functional.pad(x, flat)

kernel_name = 'parallel_sum__softmax_full_mha__moe_arch_mod__prompt'

def setup_inputs():

    _w = (lambda a: (lambda t: t.to(torch.bfloat16) if t.is_floating_point() else t)(torch.as_tensor(a)))
    def _A_setup():
        B, S, D = 1, 2048, 640
        return {
            "x": _w((lambda *s: torch.randn(*s, dtype=torch.bfloat16) * 0.05)(B, S, D)),
            "wqkv": _w((lambda *s: torch.randn(*s, dtype=torch.bfloat16) * 0.2)(D, 3 * D)),
            "wo": _w((lambda *s: torch.randn(*s, dtype=torch.bfloat16) * 0.2)(D, D)),
        }
    _A_in = _A_setup()

    def _B_setup():
        B, S, D, F, C = 1, 2048, 640, 1728, 2
        return {
            "x": _w((lambda *s: torch.randn(*s, dtype=torch.bfloat16) * 0.05)(B, S, D)),
            "w_r": _w((lambda *s: torch.randn(*s, dtype=torch.bfloat16) * 0.8)(D)),
            "w_gate": _w((lambda *s: torch.randn(*s, dtype=torch.bfloat16) * 0.2)(D, F)),
            "w_up": _w((lambda *s: torch.randn(*s, dtype=torch.bfloat16) * 0.2)(D, F)),
            "w_down": _w((lambda *s: torch.randn(*s, dtype=torch.bfloat16) * 0.2)(F, D)),
        }
    _B_in = _B_setup()

    return {
        "A_x": _A_in["x"],
        "A_wqkv": _A_in["wqkv"],
        "A_wo": _A_in["wo"],
        "B_x": _B_in["x"],
        "B_w_r": _B_in["w_r"],
        "B_w_gate": _B_in["w_gate"],
        "B_w_up": _B_in["w_up"],
        "B_w_down": _B_in["w_down"],
    }

def reference(A_x, A_wqkv, A_wo, B_x, B_w_r, B_w_gate, B_w_up, B_w_down):
    def _A_ref(x, wqkv, wo):
        B, S, D = x.shape
        H = 32; Dh = D // H
        qkv = (lambda x, *d: x.permute(*d))((x @ wqkv).reshape(B, S, 3, H, Dh), 2, 0, 3, 1, 4)
        q, k, v = qkv[0], qkv[1], qkv[2]
        scale = Dh ** -0.5
        scores = torch.einsum("bhqd,bhkd->bhqk", q, k) * scale
        p = _softmax(scores, axis=-1)
        o = torch.einsum("bhqk,bhkd->bhqd", p, v)
        return (lambda x, *d: x.permute(*d))(o, 0, 2, 1, 3).reshape(B, S, D) @ wo

    def _B_ref(x, w_r, w_gate, w_up, w_down):
        B, S, D = x.shape
        C = 2
        r = x @ w_r
        idx = torch.argsort(-r, axis=-1)[:, :C]
        idx_e = (lambda x, n, axis: torch.repeat_interleave(x, n, dim=axis))(idx.reshape(B, C, 1), D, axis=2)
        x_sel = (lambda x, i, axis: torch.take_along_dim(x, i, dim=axis))(x, idx_e, axis=1)
        g = _silu(x_sel @ w_gate)
        u = x_sel @ w_up
        y = (g * u) @ w_down
        r_sel = _sigmoid((lambda x, i, axis: torch.take_along_dim(x, i, dim=axis))(r, idx, axis=1))
        y = y * r_sel.reshape(B, C, 1)
        b_off = (torch.arange(B) * S).reshape(B, 1)
        flat_idx = (idx + b_off).reshape(B * C)
        zero = (x * 0.0).reshape(B * S, D)
        upd = _scatter_add(zero, flat_idx, y.reshape(B * C, D), axis=0)
        return x + upd.reshape(B, S, D)

    x = A_x
    xn = _layernorm(x, axis=-1)
    return x + _A_ref(xn, A_wqkv, A_wo) + _B_ref(xn, B_w_r, B_w_gate, B_w_up, B_w_down)
```

```python
import re

TRANS = ("v_exp_f32","v_log_f32","v_rcp_f32","v_rsq_f32","v_sqrt_f32","v_sin_f32","v_cos_f32")

def regs_of(tok):
    tok = tok.strip()
    neg = tok.startswith("-")
    if neg: tok = tok[1:]
    m = re.fullmatch(r"abs\((.*)\)", tok)
    if m: tok = m.group(1)
    m = re.fullmatch(r"\|(.*)\|", tok)
    if m: tok = m.group(1)
    m = re.fullmatch(r"([vsa])(\d+)", tok)
    if m: return [(m.group(1), int(m.group(2)))]
    m = re.fullmatch(r"([vsa])\[(\d+):(\d+)\]", tok)
    if m: return [(m.group(1), i) for i in range(int(m.group(2)), int(m.group(3))+1)]
    if tok == "vcc": return [("s", 106), ("s", 107)]
    if tok == "vcc_lo": return [("s", 106)]
    if tok == "vcc_hi": return [("s", 107)]
    if tok == "exec": return [("s", 126), ("s", 127)]
    if tok == "m0": return [("s", 124)]
    return []

class Ins:
    def __init__(self, text):
        self.text = text
        t = text.split(";")[0].strip()
        parts = t.split(None, 1)
        self.op = parts[0]
        rest = parts[1] if len(parts) > 1 else ""
        ops = [o.strip() for o in rest.split(",")] if rest else []
        self.mods = ""
        if ops:
            last = ops[-1].split(None, 1)
            ops[-1] = last[0] if last else ""
            self.mods = last[1] if len(last) > 1 else ""
        self.ops = ops
        op = self.op
        self.is_mfma = op.startswith("v_mfma")
        self.is_valu = op.startswith("v_") and not self.is_mfma
        self.is_salu = op.startswith("s_")
        self.is_vmem = op.startswith(("buffer_", "global_", "flat_"))
        self.is_ds = op.startswith("ds_")
        self.is_trans = op.replace("_e32","").replace("_e64","") in TRANS
        self.is_dot = op.startswith("v_dot")
        self.is_dpp = op.endswith("_dpp") or "row_" in self.mods or "quad_perm" in self.mods
        self.is_permlane = op.startswith("v_permlane")
        self.is_rdlane = op.startswith(("v_readlane", "v_readfirstlane"))
        self.passes = 0
        if self.is_mfma:
            self.passes = 8 if "32x32" in op else 4
        W, R = [], []
        o = [regs_of(x) for x in ops]
        if self.is_mfma:
            W = o[0]; self.A = o[1]; self.B = o[2]; self.C = o[3]; R = o[1] + o[2] + o[3]
        elif self.is_valu:
            if op.startswith("v_cmp"):
                W = o[0]; R = sum(o[1:], [])
            elif op.startswith(("v_add_co", "v_sub_co", "v_addc_co", "v_subb_co", "v_div_scale", "v_mad_u64")):
                W = o[0] + o[1]; R = sum(o[2:], [])
            elif self.is_permlane:
                W = o[0] + o[1]; R = o[0] + o[1]
            else:
                W = o[0]; R = sum(o[1:], [])
                if op.startswith(("v_fmac", "v_dot2c", "v_pk_fmac")) : R = R + o[0]
                if op.startswith("v_cndmask") and len(ops) == 3: R = R + regs_of("vcc")
        elif self.is_vmem:
            if "store" in op or ("atomic" in op):
                R = sum(o, [])
                self.store_data = o[0] if op.startswith("buffer_") else o[1]
            elif "lds" in self.mods.split() or op.startswith("global_load_lds"):
                R = sum(o, []) + regs_of("m0")
            else:
                W = o[0]; R = sum(o[1:], [])
        elif self.is_ds:
            if op.startswith(("ds_read", "ds_bpermute", "ds_permute", "ds_swizzle")) or "rtn" in op:
                W = o[0]; R = sum(o[1:], [])
            else:
                R = sum(o, [])
        elif self.is_salu:
            if op.startswith(("s_cmp", "s_cbranch", "s_branch", "s_waitcnt", "s_barrier", "s_nop", "s_endpgm", "s_setprio", "s_sleep", "s_bitcmp")):
                R = sum(o, [])
            else:
                W = o[0] if o else []; R = sum(o[1:], [])
                if "saveexec" in op: W = W + regs_of("exec")
        self.W, self.R = W, R
        self.states = 1
        if op == "s_nop": self.states = int(ops[0], 0) + 1

class Asm:
    def __init__(self):
        self.out = []
        self.hist = []
        self.pos = 0
    def raw(self, s):
        self.out.append(s)
    def label(self, name, flush=True):
        self.out.append(name + ":")
    def comment(self, s):
        self.out.append("    ; " + s)
    def need(self, ins):
        req = 0
        Rset = set(ins.R); Wset = set(ins.W)
        for (p, ppos) in reversed(self.hist):
            dist = self.pos - ppos - p.states + 0
            if dist > 24: break
            n = 0
            pW = set(p.W)
            if p.is_mfma:
                base = 12 if p.passes == 8 else 8
                ov = 10 if p.passes == 8 else 6
                if ins.is_mfma:
                    if pW & (set(ins.A) | set(ins.B)): n = max(n, base)
                    if pW & set(ins.C):
                        if not (ins.C == p.W and ins.passes == p.passes): n = max(n, ov)
                    if (pW & Wset) and not (ins.C == p.W): n = max(n, ov)
                elif (ins.is_valu or ins.is_vmem or ins.is_ds):
                    if pW & (Rset | Wset): n = max(n, base)
                    if ins.is_valu and (set(p.C) & Wset): n = max(n, 7 if p.passes == 8 else 3)
            elif p.is_valu:
                pv = set(x for x in pW if x[0] != "s"); ps = set(x for x in pW if x[0] == "s")
                if ins.is_mfma and (pv & Rset): n = max(n, 2)
                if p.is_trans and ins.is_valu and not ins.is_trans and (pv & Rset): n = max(n, 1)
                if ins.is_dpp and (pv & Rset): n = max(n, 2)
                if ins.is_permlane and (pv & Rset): n = max(n, 2)
                if ins.is_rdlane and (pv & Rset): n = max(n, 1)
                if p.is_dot and (pv & (Rset | Wset)):
                    if ins.is_dot and ins.op == p.op and len(ins.ops) == 4 and not (pv & set(regs_of(ins.ops[1]) + regs_of(ins.ops[2]))):
                        pass
                    else: n = max(n, 3)
                if ps:
                    if ins.is_valu and (ps & Rset): n = max(n, 4 if ins.is_rdlane else 2)
                    if ins.is_vmem and (ps & Rset): n = max(n, 5)
                    if ins.is_salu and (ps & Rset): n = max(n, 1)
            elif p.is_salu:
                if (("s", 124) in pW) and ins.is_vmem and (("s", 124) in Rset): n = max(n, 1)
            elif p.is_vmem and hasattr(p, "store_data") and len(p.store_data) >= 3:
                if set(p.store_data) & Wset: n = max(n, 2)
            req = max(req, n - dist)
        return req
    def __call__(self, text):
        for line in text.split("\n"):
            line = line.strip()
            if not line: continue
            if line.endswith(":") and " " not in line:
                self.out.append(line); continue
            if line.startswith(";"):
                self.out.append("    " + line); continue
            ins = Ins(line)
            r = self.need(ins)
            while r > 0:
                k = min(r, 16)
                nop = Ins(f"s_nop {k-1}")
                self.out.append(f"    s_nop {k-1}")
                self.hist.append((nop, self.pos)); self.pos += k
                r -= k
            self.out.append("    " + line)
            self.hist.append((ins, self.pos)); self.pos += ins.states
            if len(self.hist) > 64: self.hist = self.hist[-48:]
    def fence(self, n=16):
        self(f"s_nop {n-1}")
    def text(self):
        return "\n".join(self.out) + "\n"
```

```python
import sys, struct
sys.path.insert(0, "gen")
from asmlib import Asm

def f32(x): return "0x%08x" % struct.unpack("<I", struct.pack("<f", x))[0]

WS_Q = 0; WS_K = 0x300000; WS_V = 0x600000; WS_XN = 0x900000; WS_O = 0xB80000
WS_R = 0xE00000; WS_IDX = 0xE02000; WS_YP = 0xE10000; WS_SIZE = 0x1000000
HEADB = 98304
NM = 54

def srd(a, d, base, size):
    a(f"s_mov_b32 s{d}, s{base}")
    a(f"s_and_b32 s{d+1}, s{base+1}, 0xffff")
    a(f"s_mov_b32 s{d+2}, {size}")
    a(f"s_mov_b32 s{d+3}, 0x00020000")

def dpp_rowsum(a, regs):
    for sh in (8, 4, 2, 1):
        for r in regs:
            a(f"v_add_f32_dpp v{r}, v{r}, v{r} row_ror:{sh} row_mask:0xf bank_mask:0xf")

K1_XN_STRIDE = 1296
K1_WBUF = 64 * K1_XN_STRIDE
K1_LDS = K1_WBUF + 4 * 16384

def gen_k1():
    a = Asm()
    a("s_cmp_ge_u32 s2, 256")
    a("s_cbranch_scc1 K1_END")
    a("s_load_dwordx4 s[4:7], s[0:1], 0")
    a("s_load_dwordx2 s[8:9], s[0:1], 32")
    a("s_load_dwordx2 s[10:11], s[0:1], 80")
    a("s_and_b32 s28, s2, 7")
    a("s_lshr_b32 s29, s2, 3")
    a("v_lshrrev_b32 v1, 6, v0")
    a("v_and_b32 v2, 63, v0")
    a("v_readfirstlane_b32 s30, v1")
    a("v_and_b32 v3, 15, v2")
    a("v_lshrrev_b32 v9, 4, v2")
    a("v_lshlrev_b32 v4, 4, v1")
    a("v_add_u32 v4, v4, v9")
    a("v_mul_u32_u24 v6, %d, v4" % K1_XN_STRIDE)
    a("v_mul_u32_u24 v4, 1280, v4")
    a("v_lshlrev_b32 v10, 4, v3")
    a("v_add_u32 v4, v4, v10")
    a("v_add_u32 v6, v6, v10")
    a("v_lshrrev_b32 v11, 5, v2")
    a("v_lshl_add_u32 v11, v1, 1, v11")
    a("v_and_b32 v12, 3, v11")
    a("v_lshlrev_b32 v12, 2, v12")
    a("v_and_b32 v13, 31, v2")
    a("v_sub_u32 v13, v13, v12")
    a("v_and_b32 v13, 31, v13")
    a("v_lshlrev_b32 v13, 4, v13")
    a("v_mul_u32_u24 v5, 3840, v11")
    a("v_add_u32 v5, v5, v13")
    a("s_mul_i32 s31, s28, 480")
    a("v_add_u32 v5, s31, v5")
    a("v_mov_b32 v7, 0x3f803f80")
    a("v_mov_b32 v8, 0xffff0000")
    a("s_waitcnt lgkmcnt(0)")
    srd(a, 12, 4, 2621440)
    srd(a, 16, 6, 2457600)
    srd(a, 20, 8, 1280)
    srd(a, 24, 10, WS_SIZE)
    X = 40; WR = 120
    for i in range(5):
        a(f"buffer_load_dwordx4 v[{WR+4*i}:{WR+4*i+3}], v10, s[20:23], 0 offen offset:{i*256}")
    a("s_mul_i32 s32, s29, 81920")
    for p in range(4):
        if p: a(f"s_add_u32 s{32+p}, s32, {p*5120}")
    for p in range(4):
        for i in range(5):
            r = X + 20*p + 4*i
            a(f"buffer_load_dwordx4 v[{r}:{r+3}], v4, s[12:15], s{32+p} offen offset:{i*256}")
    a("s_lshl_b32 s31, s30, 10")
    a(f"s_add_u32 s31, s31, {K1_WBUF}")
    def dma(c):
        buf = c % 4
        for t in range(4):
            a(f"s_add_u32 m0, s31, {buf*16384 + t*4096}")
            a(f"s_mov_b32 s40, {(32*c + 8*t)*3840}")
            a("buffer_load_dwordx4 v5, s[16:19], s40 offen lds")
    for c in range(3): dma(c)
    for p in range(4):
        a(f"s_waitcnt vmcnt({12 + 15 - 5*p})")
        xr = [X + 20*p + k for k in range(20)]
        for k, r in enumerate(xr):
            acc = 10 + (k & 1)
            c = "0" if k < 2 else f"v{acc}"
            a(f"v_dot2_f32_bf16 v{acc}, v{r}, v7, {c}")
            acc2 = 12 + (k & 1)
            c = "0" if k < 2 else f"v{acc2}"
            a(f"v_dot2_f32_bf16 v{acc2}, v{r}, v{r}, {c}")
        a("v_add_f32 v10, v10, v11")
        a("v_add_f32 v12, v12, v13")
        dpp_rowsum(a, [10, 12])
        a(f"v_mul_f32 v10, {f32(1/640)}, v10")
        a(f"v_mul_f32 v12, {f32(1/640)}, v12")
        a("v_fma_f32 v12, -v10, v10, v12")
        a("v_max_f32 v12, 0, v12")
        a("v_cvt_pk_bf16_f32 v14, 0, v10")
        a("v_cvt_pk_bf16_f32 v12, 0, v12")
        a("v_add_f32 v12, 0x3727c5ac, v12")
        a("v_cvt_pk_bf16_f32 v12, 0, v12")
        a("v_sqrt_f32 v12, v12")
        a("v_cvt_pk_bf16_f32 v12, 0, v12")
        a("v_rcp_f32 v16, v12")
        a("v_sub_f32 v14, 0, v14")
        a("v_mov_b32 v15, v14")
        a("v_mov_b32 v17, v16")
        for k, r in enumerate(xr):
            t = 20 + 2*(k & 3)
            a(f"v_lshlrev_b32 v{t}, 16, v{r}")
            a(f"v_and_b32 v{t+1}, v8, v{r}")
            a(f"v_pk_add_f32 v[{t}:{t+1}], v[{t}:{t+1}], v[14:15]")
            a(f"v_cvt_pk_bf16_f32 v{r}, v{t}, v{t+1}")
            a(f"v_lshlrev_b32 v{t}, 16, v{r}")
            a(f"v_and_b32 v{t+1}, v8, v{r}")
            a(f"v_pk_mul_f32 v[{t}:{t+1}], v[{t}:{t+1}], v[16:17]")
            a(f"v_cvt_pk_bf16_f32 v{r}, v{t}, v{t+1}")
        for i in range(5):
            r = X + 20*p + 4*i
            a(f"ds_write_b128 v6, v[{r}:{r+3}] offset:{p*4*K1_XN_STRIDE + i*256}")
    a("s_lshr_b32 s36, s28, 1")
    a("s_cmp_lg_u32 s36, s30")
    a("s_cbranch_scc1 K1_NOSTORE")
    a("s_and_b32 s36, s28, 1")
    a("s_cmp_lg_u32 s36, 0")
    a("s_cbranch_scc1 K1_ST1")
    for half in range(2):
        if half == 1:
            a("s_branch K1_NOSTORE")
            a.label("K1_ST1")
            a.fence(4)
        for p in (2*half, 2*half+1):
            a(f"s_add_u32 s36, s{32+p}, {WS_XN}")
            for i in range(5):
                r = X + 20*p + 4*i
                a(f"buffer_store_dwordx4 v[{r}:{r+3}], v4, s[24:27], s36 offen offset:{i*256}")
            for k in range(20):
                acc = 10 + (k & 1)
                c = "0" if k < 2 else f"v{acc}"
                a(f"v_dot2_f32_bf16 v{acc}, v{X+20*p+k}, v{WR+k}, {c}")
            a("v_add_f32 v10, v10, v11")
            dpp_rowsum(a, [10])
            a("v_cvt_pk_bf16_f32 v10, 0, v10")
            a("v_lshl_add_u32 v11, v1, 4, v9")
            a(f"v_add_u32 v11, {4*p}, v11")
            a("v_lshlrev_b32 v11, 2, v11")
            a("s_lshl_b32 s36, s29, 8")
            a(f"s_add_u32 s36, s36, {WS_R}")
            a("v_cmp_eq_u32 vcc, 0, v3")
            a("s_and_saveexec_b64 s[38:39], vcc")
            a("buffer_store_dword v10, v11, s[24:27], s36 offen")
            a("s_mov_b64 exec, s[38:39]")
    a.label("K1_NOSTORE")
    a.fence(4)
    a("s_lshl_b32 s36, s28, 2")
    a("s_add_u32 s36, s36, s30")
    a(f"s_mul_i32 s36, s36, {HEADB}")
    a("s_mul_i32 s37, s29, %d" % (64*48))
    a("s_add_u32 s36, s36, s37")
    a(f"s_add_u32 s36, s36, {WS_V + 40}")
    a("v_mul_u32_u24 v10, 48, v2")
    a("v_mov_b32 v12, v7")
    a("v_mov_b32 v13, v7")
    a("buffer_store_dwordx2 v[12:13], v10, s[24:27], s36 offen")
    a("s_cmp_lg_u32 s2, 0")
    a("s_cbranch_scc1 K1_NOZ")
    for i in range(4): a(f"v_mov_b32 v{12+i}, 0")
    a("v_lshlrev_b32 v10, 4, v0")
    a(f"s_mov_b32 s36, {WS_YP}")
    a("buffer_store_dwordx4 v[12:15], v10, s[24:27], s36 offen")
    a(f"s_mov_b32 s36, {WS_YP + 4096}")
    a("buffer_store_dwordx4 v[12:15], v10, s[24:27], s36 offen")
    a.label("K1_NOZ")
    a.fence(4)
    a("v_lshrrev_b32 v10, 5, v2")
    a("v_bfe_u32 v11, v2, 4, 1")
    a("v_bfe_u32 v12, v2, 2, 2")
    a("v_and_b32 v13, 3, v2")
    a("v_lshl_add_u32 v14, v10, 3, v12")
    a("v_lshlrev_b32 v14, 9, v14")
    a("v_and_b32 v15, 1, v13")
    a("v_lshl_add_u32 v14, v15, 3, v14")
    a(f"v_add_u32 v14, {K1_WBUF}, v14")
    a("v_lshlrev_b32 v15, 3, v1")
    a("v_lshl_add_u32 v15, v11, 1, v15")
    a("v_lshrrev_b32 v16, 1, v13")
    a("v_add_u32 v15, v15, v16")
    a("v_lshl_add_u32 v15, v12, 2, v15")
    a("v_and_b32 v16, 31, v15")
    a("v_lshl_add_u32 v30, v16, 4, v14")
    a("v_add_u32 v15, 4, v15")
    a("v_and_b32 v16, 31, v15")
    a("v_lshl_add_u32 v31, v16, 4, v14")
    a("v_and_b32 v15, 31, v2")
    a(f"v_mul_u32_u24 v32, {K1_XN_STRIDE}, v15")
    a("v_lshl_add_u32 v32, v10, 4, v32")
    SETS = [(40, 56), (72, 88)]
    ACC = 104
    def reads(c):
        A0, B0 = SETS[c % 2]
        buf = c % 4
        for ks in range(2):
            for aa in range(2):
                for hi in range(2):
                    r = A0 + (ks*2 + aa)*4 + hi*2
                    a(f"ds_read_b64_tr_b16 v[{r}:{r+1}], v{30+aa} offset:{buf*16384 + ks*8192 + hi*2048}")
            for b in range(2):
                r = B0 + (ks*2 + b)*4
                a(f"ds_read_b128 v[{r}:{r+3}], v32 offset:{b*32*K1_XN_STRIDE + c*64 + ks*32}")
    def mfmas(c):
        A0, B0 = SETS[c % 2]
        for ks in range(2):
            for aa in range(2):
                for b in range(2):
                    d = ACC + (aa*2 + b)*16
                    ra = A0 + (ks*2 + aa)*4; rb = B0 + (ks*2 + b)*4
                    cc = "0" if (c == 0 and ks == 0) else f"v[{d}:{d+15}]"
                    a(f"v_mfma_f32_32x32x16_bf16 v[{d}:{d+15}], v[{ra}:{ra+3}], v[{rb}:{rb+3}], {cc}")
    NCH = 20
    for c in range(NCH):
        younger = min(NCH-1, c+2) - c
        a(f"s_waitcnt vmcnt({4*younger}) lgkmcnt(0)")
        a("s_barrier")
        if c + 3 < NCH: dma(c + 3)
        reads(c)
        if c > 0: mfmas(c - 1)
    a("s_waitcnt lgkmcnt(0)")
    mfmas(NCH - 1)
    a("s_mul_i32 s36, s28, 60")
    a("s_lshl_b32 s37, s30, 4")
    a("s_add_u32 s36, s36, s37")
    a("v_add_u32 v14, s36, v10")
    a("v_and_b32 v15, 31, v2")
    a("v_mul_u32_u24 v15, 48, v15")
    a("s_mul_i32 s37, s29, %d" % (64*48))
    a(f"s_add_u32 s38, s37, {32*48}")
    a(f"s_mov_b32 s39, {HEADB}")
    for aa in range(2):
        for c in range(4):
            o = 40 + aa*4 + c
            a(f"v_add_u32 v16, {8*aa + 2*c}, v14")
            a("v_mul_u32_u24 v17, 52429, v16")
            a("v_lshrrev_b32 v17, 18, v17")
            a("v_mul_u32_u24 v18, 5, v17")
            a("v_sub_u32 v18, v16, v18")
            a("v_mul_lo_u32 v17, v17, s39")
            a("v_lshl_add_u32 v17, v18, 3, v17")
            a(f"v_add_u32 v{o}, v17, v15")
    for aa in range(2):
        for c in range(4):
            if aa == 1 and c == 2:
                a("s_cmp_eq_u32 s30, 3")
                a("s_cbranch_scc1 K1_END")
            for b in range(2):
                d = ACC + (aa*2 + b)*16 + 4*c
                t = 50 + 2*b
                a(f"v_cvt_pk_bf16_f32 v{t}, v{d}, v{d+1}")
                a(f"v_cvt_pk_bf16_f32 v{t+1}, v{d+2}, v{d+3}")
                a(f"buffer_store_dwordx2 v[{t}:{t+1}], v{40+aa*4+c}, s[24:27], s{37+b} offen")
    a.label("K1_END")
    a("s_endpgm")
    return a.text(), 168

def kernel_block(name, body):
    return f""".globl {name}
.p2align 8
.type {name},@function
{name}:
{body}"""

def desc(name, vgpr, sgpr=80):
    return f""".amdhsa_kernel {name}
  .amdhsa_next_free_vgpr {vgpr}
  .amdhsa_next_free_sgpr {sgpr}
  .amdhsa_accum_offset {(vgpr+3)//4*4}
  .amdhsa_group_segment_fixed_size 0
  .amdhsa_kernarg_size 88
  .amdhsa_user_sgpr_count 2
  .amdhsa_user_sgpr_kernarg_segment_ptr 1
  .amdhsa_system_sgpr_workgroup_id_x 1
  .amdhsa_float_denorm_mode_32 3
.end_amdhsa_kernel
"""

HEADER = open("parallel_sum__softmax_full_mha__moe_arch_mod__prompt.s.ref").read().split("; Override")[0]

def build(kernels, path):
    s = HEADER
    for (name, body, vgpr, grid, block, lds) in kernels:
        s += f"; @launch kernel={name} grid=({grid},1,1) block=({block},1,1) lds={lds}\n"
    s += '.amdgcn_target "amdgcn-amd-amdhsa--gfx950"\n.text\n'
    for (name, body, vgpr, grid, block, lds) in kernels:
        s += kernel_block(name, body)
    s += '.section .rodata,"a"\n'
    for (name, body, vgpr, grid, block, lds) in kernels:
        s += ".p2align 6\n" + desc(name, vgpr)
    open(path, "w").write(s)

if __name__ == "__main__":
    b1, v1 = gen_k1()
    ks = [("k1_kernel", b1, v1, 256, 256, K1_LDS)]
    build(ks, "k1only.s")
```

```python
import math
from asmlib import Asm
from gen import *

K2_BUF = 24576
K2_FLAG = 3 * K2_BUF
K2_LDS = K2_FLAG + 256
LOG2E = 1.4426950408889634
C32 = struct.unpack("<f", struct.pack("<I", 0x3e64f92e))[0]

def gen_k2(mode="mimic6", instr=False):
    a = Asm()
    if instr:
        a("s_memtime s[64:65]")
        a("s_memrealtime s[66:67]")
    a("s_cmp_ge_u32 s2, 256")
    a("s_cbranch_scc1 K2_MOE")
    a("s_load_dwordx2 s[10:11], s[0:1], 80")
    a("s_and_b32 s28, s2, 7")
    a("s_lshr_b32 s29, s2, 3")
    a("s_lshr_b32 s30, s29, 3")
    a("s_lshl_b32 s28, s28, 2")
    a("s_add_u32 s28, s28, s30")
    a("s_and_b32 s29, s29, 7")
    a("v_lshrrev_b32 v1, 6, v0")
    a("v_and_b32 v2, 63, v0")
    a("v_readfirstlane_b32 s30, v1")
    Q1, Q2, KA, KB, V0 = 4, 8, 12, 16, 28
    S = [36, 52]; T = 68; P = 84; O = 92
    cK, cM, cC, cL, NEG = 108, 110, 112, 114, 116
    vKl, vVl, vKc, vVc, vKn, vDma = 118, 119, 120, 121, 122, 123
    a("v_lshrrev_b32 v3, 5, v2")
    a("v_and_b32 v20, 31, v2")
    a("v_mul_u32_u24 v21, 48, v20")
    a(f"v_lshl_add_u32 v{vKl}, v3, 4, v21")
    a("v_bfe_u32 v22, v2, 2, 2")
    a("v_lshl_add_u32 v22, v3, 2, v22")
    a("v_mul_u32_u24 v22, 48, v22")
    a("v_bfe_u32 v23, v2, 4, 1")
    a("v_and_b32 v24, 3, v2")
    a("v_lshl_add_u32 v23, v23, 2, v24")
    a("v_min_u32 v23, 5, v23")
    a("v_lshl_add_u32 v22, v23, 3, v22")
    a(f"v_add_u32 v{vVl}, 12288, v22")
    a(f"v_lshlrev_b32 v{vDma}, 4, v2")
    a("s_waitcnt lgkmcnt(0)")
    srd(a, 24, 10, WS_SIZE)
    a(f"s_mul_i32 s31, s28, {HEADB}")
    a("s_and_b32 s32, s30, 3")
    a("s_mul_i32 s32, s32, 3072")
    a("s_add_u32 s32, s32, s31")
    a("s_lshr_b32 s33, s30, 2")
    a(f"s_mul_i32 s33, s33, {WS_V - WS_K}")
    a(f"s_add_u32 s33, s33, {WS_K}")
    a("s_add_u32 s32, s32, s33")
    a("s_mul_i32 s33, s30, 3072")
    a("s_lshl_b32 s34, s29, 8")
    a("s_lshl_b32 s35, s30, 5")
    a("s_add_u32 s34, s34, s35")
    a("s_mul_i32 s35, s34, 48")
    a("s_add_u32 s35, s35, s31")
    a(f"buffer_load_dwordx4 v[{Q1}:{Q1+3}], v{vKl}, s[24:27], s35 offen")
    for i in range(4): a(f"v_mov_b32 v{Q2+i}, 0")
    a("s_mov_b64 exec, 0xffffffff")
    a(f"buffer_load_dwordx2 v[{Q2}:{Q2+1}], v{vKl}, s[24:27], s35 offen offset:32")
    a("s_mov_b64 exec, -1")
    def setpair(r, val):
        a(f"v_mov_b32 v{r}, {f32(val)}"); a(f"v_mov_b32 v{r+1}, {f32(val)}")
    setpair(cK, 65537.0); setpair(cM, -65536.0); setpair(cC, C32)
    setpair(cL, LOG2E if mode.startswith("mimic") else C32*LOG2E)
    a(f"v_mov_b32 v{KB+2}, 0"); a(f"v_mov_b32 v{KB+3}, 0")
    a(f"v_mov_b32 v20, {K2_FLAG}")
    a("v_mov_b32 v21, 0")
    a("ds_write_b32 v20, v21")
    a("s_mov_b32 s50, 0")
    a("s_mov_b32 s72, 0")
    def dma(chunk_sgpr_off, ldsbase_sgpr):
        a(f"s_add_u32 m0, s{ldsbase_sgpr}, s33")
        for i in range(3):
            a(f"buffer_load_dwordx4 v{vDma}, s[24:27], s{chunk_sgpr_off} offen offset:{i*1024} lds")
    def qk(Sd):
        a(f"v_mfma_f32_32x32x16_bf16 v[{Sd}:{Sd+15}], v[{KA}:{KA+3}], v[{Q1}:{Q1+3}], 0")
        a(f"v_mfma_f32_32x32x16_bf16 v[{Sd}:{Sd+15}], v[{KB}:{KB+3}], v[{Q2}:{Q2+3}], v[{Sd}:{Sd+15}]")
    def kread(addr, t):
        a(f"ds_read_b128 v[{KA}:{KA+3}], v{addr} offset:{t*1536}")
        a(f"ds_read_b64 v[{KB}:{KB+1}], v{addr} offset:{t*1536+32}")
    def vread(addr, t):
        for aa in range(2):
            for hi in range(2):
                r = V0 + aa*4 + hi*2
                a(f"ds_read_b64_tr_b16 v[{r}:{r+1}], v{addr} offset:{t*1536 + aa*768 + hi*384}")
    def halfmax(r, tmp):
        a(f"v_mov_b32 v{tmp}, v{r}")
        a(f"v_permlane32_swap_b32 v{r}, v{tmp}")
        a(f"v_max_f32 v{r}, v{r}, v{tmp}")
    def set_negm_from_max(r):
        a(f"v_mul_f32 v{NEG}, {f32(-C32*LOG2E)}, v{r}")
        a(f"v_add_f32 v{NEG}, {f32(-64.0)}, v{NEG}")
        a(f"v_mov_b32 v{NEG+1}, v{NEG}")

    a.label("K2_MAIN")
    a.fence(4)
    a("s_mov_b32 s40, 0")
    a(f"s_mov_b32 s41, {K2_BUF}")
    a(f"s_mov_b32 s42, {2*K2_BUF}")
    a("s_mov_b32 s43, s32")
    dma(43, 40)
    a("s_add_u32 s43, s43, 12288")
    dma(43, 41)
    a("s_add_u32 s43, s43, 12288")
    for i in range(16): a(f"v_mov_b32 v{O+i}, 0")
    for i in range(8): a(f"v_mov_b32 v{P+i}, 0")
    for i in range(8): a(f"v_mov_b32 v{V0+i}, 0")
    a("s_waitcnt vmcnt(3) lgkmcnt(0)")
    a("s_barrier")
    a(f"v_mov_b32 v{vKc}, v{vKl}")
    a(f"v_mov_b32 v{vVc}, v{vVl}")
    a(f"v_add_u32 v{vKn}, {K2_BUF}, v{vKl}")
    kread(vKc, 0)
    a("s_waitcnt lgkmcnt(0)")
    qk(S[0])
    kread(vKc, 1)
    a("s_cmp_lg_u32 s50, 0")
    a("s_cbranch_scc1 K2_SKIPMAX")
    a(f"v_max3_f32 v{T}, v{S[0]}, v{S[0]+1}, v{S[0]+2}")
    for i in range(3, 15, 2):
        a(f"v_max3_f32 v{T}, v{T}, v{S[0]+i}, v{S[0]+i+1}")
    a(f"v_max_f32 v{T}, v{T}, v{S[0]+15}")
    halfmax(T, T+1)
    set_negm_from_max(T)
    a.label("K2_SKIPMAX")
    a.fence(16)
    a("s_mov_b32 s44, 0")
    a.label("K2_LOOP")
    def pkstage(Sc):
        prs = [(Sc+2*i, T+2*i) for i in range(8)]
        if mode == "mimic6":
            for s, t in prs: a(f"v_pk_mul_f32 v[{t}:{t+1}], v[{s}:{s+1}], v[{cK}:{cK+1}]")
            for s, t in prs: a(f"v_pk_fma_f32 v[{t}:{t+1}], v[{s}:{s+1}], v[{cM}:{cM+1}], v[{t}:{t+1}]")
            for s, t in prs: a(f"v_pk_mul_f32 v[{t}:{t+1}], v[{t}:{t+1}], v[{cC}:{cC+1}]")
            for s, t in prs: a(f"v_pk_mul_f32 v[{s}:{s+1}], v[{t}:{t+1}], v[{cK}:{cK+1}]")
            for s, t in prs: a(f"v_pk_fma_f32 v[{s}:{s+1}], v[{t}:{t+1}], v[{cM}:{cM+1}], v[{s}:{s+1}]")
        for s, t in prs: a(f"v_pk_fma_f32 v[{s}:{s+1}], v[{s}:{s+1}], v[{cL}:{cL+1}], v[{NEG}:{NEG+1}]")
    for t in range(8):
        Sc = S[t % 2]; Sn = S[(t+1) % 2]
        if t % 2 == 0:
            a(f"v_cmp_lt_f32 vcc, 0x33800000, v{O+12}")
            a(f"s_cbranch_vccz K2_NR{t}")
            a("s_call_b64 s[60:61], K2_RECENTER")
            a.label(f"K2_NR{t}")
        if t == 6:
            a("s_waitcnt vmcnt(0)")
            a("s_barrier")
            a("s_cmp_ge_u32 s44, 6")
            a(f"s_cbranch_scc1 K2_NODMA")
            dma(43, 42)
            a("s_add_u32 s43, s43, 12288")
            a.label("K2_NODMA")
        pkstage(Sc)
        E = []
        for i in range(8):
            E.append((f"v_exp_f32 v{Sc+2*i}, v{Sc+2*i}", 8))
            E.append((f"v_exp_f32 v{Sc+2*i+1}, v{Sc+2*i+1}", 8))
            if i > 0: E.append((f"v_cvt_pk_bf16_f32 v{P+i-1}, v{Sc+2*i-2}, v{Sc+2*i-1}", 4))
        E.append((f"v_cvt_pk_bf16_f32 v{P+7}, v{Sc+14}, v{Sc+15}", 4))
        slots = {0: "pv0", 32: "pv1", 64: "qk0", 96: "qk1"}
        pos = 0; done = set()
        for ins, cst in E:
            for sp, what in slots.items():
                if pos >= sp and what not in done:
                    done.add(what)
                    if what == "pv0":
                        a("s_waitcnt lgkmcnt(2)")
                        a(f"v_mfma_f32_32x32x16_bf16 v[{O}:{O+15}], v[{V0}:{V0+3}], v[{P}:{P+3}], v[{O}:{O+15}]")
                    elif what == "pv1":
                        a(f"v_mfma_f32_32x32x16_bf16 v[{O}:{O+15}], v[{V0+4}:{V0+7}], v[{P+4}:{P+7}], v[{O}:{O+15}]")
                        vread(vVc, t)
                    elif what == "qk0":
                        a("s_waitcnt lgkmcnt(4)")
                        a(f"v_mfma_f32_32x32x16_bf16 v[{Sn}:{Sn+15}], v[{KA}:{KA+3}], v[{Q1}:{Q1+3}], 0")
                    elif what == "qk1":
                        a(f"v_mfma_f32_32x32x16_bf16 v[{Sn}:{Sn+15}], v[{KB}:{KB+3}], v[{Q2}:{Q2+3}], v[{Sn}:{Sn+15}]")
                        if t + 2 < 8: kread(vKc, t+2)
                        else: kread(vKn, t+2-8)
            a(ins); pos += cst
    a("s_mov_b32 s45, s40")
    a("s_mov_b32 s40, s41")
    a("s_mov_b32 s41, s42")
    a("s_mov_b32 s42, s45")
    a(f"v_add_u32 v{vKc}, s40, v{vKl}")
    a(f"v_add_u32 v{vVc}, s40, v{vVl}")
    a(f"v_add_u32 v{vKn}, s41, v{vKl}")
    a("s_add_u32 s44, s44, 1")
    a("s_cmp_lt_u32 s44, 8")
    a("s_cbranch_scc1 K2_LOOP")
    a("s_waitcnt lgkmcnt(0)")
    a(f"v_mfma_f32_32x32x16_bf16 v[{O}:{O+15}], v[{V0}:{V0+3}], v[{P}:{P+3}], v[{O}:{O+15}]")
    a(f"v_mfma_f32_32x32x16_bf16 v[{O}:{O+15}], v[{V0+4}:{V0+7}], v[{P+4}:{P+7}], v[{O}:{O+15}]")
    a("s_cmp_lg_u32 s50, 0")
    a("s_cbranch_scc1 K2_EPI")
    a(f"v_mul_f32 v{T}, 0, v{O}")
    for i in range(1, 13): a(f"v_fma_f32 v{T}, v{O+i}, 0, v{T}")
    a(f"v_cmp_u_f32 vcc, v{T}, v{T}")
    a(f"v_mov_b32 v20, {K2_FLAG}")
    a("v_mov_b32 v21, 1")
    a("s_and_saveexec_b64 s[46:47], vcc")
    a("s_cbranch_execz K2_NOFLAG")
    a("ds_write_b32 v20, v21")
    a.label("K2_NOFLAG")
    a("s_mov_b64 exec, s[46:47]")
    a("s_waitcnt lgkmcnt(0)")
    a("s_barrier")
    a("ds_read_b32 v21, v20")
    a("s_waitcnt lgkmcnt(0)")
    a("v_readfirstlane_b32 s46, v21")
    a("s_cmp_eq_u32 s46, 0")
    a("s_cbranch_scc1 K2_EPI")
    a("s_mov_b32 s50, 1")
    a("s_mov_b32 s43, s32")
    a("s_mov_b32 s40, 0")
    a("s_mov_b32 s44, 0")
    a(f"v_mov_b32 v{T}, 0xff800000")
    a.label("K2_MAXLOOP")
    a("s_barrier")
    dma(43, 40)
    a("s_add_u32 s43, s43, 12288")
    a("s_waitcnt vmcnt(0)")
    a("s_barrier")
    for t in range(8):
        kread(vKl, t)
        a("s_waitcnt lgkmcnt(0)")
        qk(S[0])
        for i in range(0, 16, 2):
            a(f"v_max3_f32 v{T}, v{T}, v{S[0]+i}, v{S[0]+i+1}")
    a("s_add_u32 s44, s44, 1")
    a("s_cmp_lt_u32 s44, 8")
    a("s_cbranch_scc1 K2_MAXLOOP")
    halfmax(T, T+1)
    set_negm_from_max(T)
    a("s_barrier")
    a("s_branch K2_MAIN")
    a.label("K2_EPI")
    a.fence(16)
    a(f"v_rcp_f32 v{T}, v{O+12}")
    for i in range(12): a(f"v_mul_f32 v{O+i}, v{O+i}, v{T}")
    for i in range(6): a(f"v_cvt_pk_bf16_f32 v{T+2+i}, v{O+2*i}, v{O+2*i+1}")
    a("v_and_b32 v20, 31, v2")
    a("v_add_u32 v20, s34, v20")
    a("v_mul_u32_u24 v20, 1280, v20")
    a("s_mul_i32 s35, s28, 5")
    a(f"s_mov_b32 s36, {WS_O}")
    for c in range(3):
        a(f"v_add_u32 v21, {2*c}, v3")
        a("v_add_u32 v21, s35, v21")
        a("v_and_b32 v22, 3, v21")
        a("v_lshlrev_b32 v22, 1, v22")
        a("v_bfe_u32 v23, v21, 2, 1")
        a("v_add_u32 v22, v22, v23")
        a("v_and_b32 v21, 0xfffffff8, v21")
        a("v_add_u32 v21, v21, v22")
        a(f"v_lshl_add_u32 v{24+c}, v21, 3, v20")
    a(f"buffer_store_dwordx2 v[{T+2}:{T+3}], v24, s[24:27], s36 offen")
    a(f"buffer_store_dwordx2 v[{T+4}:{T+5}], v25, s[24:27], s36 offen")
    a("s_mov_b64 exec, 0xffffffff")
    a(f"buffer_store_dwordx2 v[{T+6}:{T+7}], v26, s[24:27], s36 offen")
    if instr:
        a("s_memtime s[68:69]")
        a("s_memrealtime s[70:71]")
        a("s_waitcnt lgkmcnt(0)")
        a("s_sub_u32 s68, s68, s64")
        a("s_sub_u32 s70, s70, s66")
        a("v_mov_b32 v20, s68")
        a("v_mov_b32 v21, s70")
        a("v_mov_b32 v22, s50")
        a("v_mov_b32 v23, s72")
        a("s_lshl_b32 s36, s2, 3")
        a("s_add_u32 s36, s36, s30")
        a("s_lshl_b32 s36, s36, 4")
        a(f"s_add_u32 s36, s36, {WS_YP + 0x80000}")
        a("v_mov_b32 v24, 0")
        a("s_mov_b64 exec, 1")
        a("buffer_store_dwordx4 v[20:23], v24, s[24:27], s36 offen")
    a("s_endpgm")
    a.label("K2_RECENTER")
    a.fence(4)
    a("s_add_u32 s72, s72, 1")
    a("s_waitcnt lgkmcnt(0)")
    a(f"v_mfma_f32_32x32x16_bf16 v[{O}:{O+15}], v[{V0}:{V0+3}], v[{P}:{P+3}], v[{O}:{O+15}]")
    a(f"v_mfma_f32_32x32x16_bf16 v[{O}:{O+15}], v[{V0+4}:{V0+7}], v[{P+4}:{P+7}], v[{O}:{O+15}]")
    for i in range(8): a(f"v_mov_b32 v{P+i}, 0")
    a(f"v_frexp_exp_i32_f32 v{T}, v{O+12}")
    a(f"v_sub_u32 v{T}, -63, v{T}")
    for i in range(13): a(f"v_ldexp_f32 v{O+i}, v{O+i}, v{T}")
    a(f"v_cvt_f32_i32 v{T}, v{T}")
    a(f"v_add_f32 v{NEG}, v{NEG}, v{T}")
    a(f"v_mov_b32 v{NEG+1}, v{NEG}")
    a("s_nop 3")
    a("s_setpc_b64 s[60:61]")
    a.label("K2_MOE")
    gen_moe(a)
    return a.text(), 128

def gen_moe(a):
    XS = 0
    PART = 5120
    HS = PART + 16384
    TOP = HS + 256
    a("s_sub_u32 s28, s2, 256")
    a(f"s_cmp_ge_u32 s28, {NM}")
    a("s_cbranch_scc1 K2_MOE_END")
    a("s_load_dwordx4 s[4:7], s[0:1], 40")
    a("s_load_dwordx2 s[8:9], s[0:1], 56")
    a("s_load_dwordx2 s[10:11], s[0:1], 80")
    a("v_lshrrev_b32 v1, 6, v0")
    a("v_and_b32 v2, 63, v0")
    a("v_lshrrev_b32 v3, 4, v2")
    a("v_and_b32 v4, 15, v2")
    a("v_lshl_add_u32 v5, v1, 2, v3")
    a("v_mul_u32_u24 v6, 3456, v5")
    a("v_lshl_add_u32 v6, v4, 2, v6")
    a("s_lshl_b32 s29, s28, 6")
    a("v_add_u32 v6, s29, v6")
    a("v_lshlrev_b32 v7, 4, v0")
    a("v_lshlrev_b32 v8, 2, v0")
    a("s_waitcnt lgkmcnt(0)")
    srd(a, 12, 4, 640*3456)
    srd(a, 16, 6, 640*3456)
    srd(a, 20, 8, 1728*1280)
    srd(a, 24, 10, WS_SIZE)
    a(f"s_mov_b32 s30, {WS_R}")
    a("buffer_load_dwordx4 v[12:15], v7, s[24:27], s30 offen")
    G = 32; U = 52; D = 72
    for i in range(20):
        a(f"s_mov_b32 s30, {i*110592}")
        a(f"buffer_load_dword v{G+i}, v6, s[12:15], s30 offen")
        a(f"buffer_load_dword v{U+i}, v6, s[16:19], s30 offen")
    a("s_mul_i32 s31, s28, 40960")
    for f in range(32):
        if f % 3 == 0:
            a(f"s_add_u32 s30, s31, {f*1280}")
        a(f"buffer_load_dword v{D+f}, v8, s[20:23], s30 offen offset:{(f%3)*1280}")
    a("s_waitcnt vmcnt(60)")
    a("v_sub_u32 v9, 2047, v8")
    for i in range(4):
        a(f"v_ashrrev_i32 v16, 31, v{12+i}")
        a("v_or_b32 v16, 0x80000000, v16")
        a(f"v_xor_b32 v{12+i}, v{12+i}, v16")
        a(f"v_and_b32 v{12+i}, 0xffff0000, v{12+i}")
        a(f"v_subrev_u32 v16, {i}, v9")
        a(f"v_or_b32 v{12+i}, v{12+i}, v16")
    a("v_max_u32 v16, v12, v13"); a("v_min_u32 v17, v12, v13")
    a("v_max_u32 v18, v14, v15"); a("v_min_u32 v19, v14, v15")
    a("v_max_u32 v12, v16, v18"); a("v_min_u32 v13, v16, v18")
    a("v_max3_u32 v13, v13, v17, v19")
    def combine(n1, n2):
        a(f"v_min_u32 v16, v12, v{n1}")
        a(f"v_max_u32 v12, v12, v{n1}")
        a(f"v_max3_u32 v13, v16, v13, v{n2}")
    for st in (1, 2, 4, 8, 16, 32):
        a(f"v_xor_b32 v17, {st}, v2")
        a("v_lshlrev_b32 v17, 2, v17")
        a("ds_bpermute_b32 v18, v17, v12")
        a("ds_bpermute_b32 v19, v17, v13")
        a("s_waitcnt lgkmcnt(0)")
        combine(18, 19)
    a(f"v_lshlrev_b32 v17, 3, v1")
    a(f"ds_write_b64 v17, v[12:13] offset:{TOP}")
    a("s_waitcnt lgkmcnt(0)")
    a("s_barrier")
    a("v_mov_b32 v17, 0")
    for i in range(4):
        a(f"ds_read_b128 v[{20+4*i if i<3 else 104}:{23+4*i if i<3 else 107}], v17 offset:{TOP+16*i}")
    a("s_waitcnt lgkmcnt(0)")
    a("v_mov_b32 v12, 0"); a("v_mov_b32 v13, 0")
    for b in (20, 22, 24, 26, 28, 30, 104, 106):
        combine(b, b+1)
    a("v_and_b32 v12, 0xffff, v12"); a("v_and_b32 v13, 0xffff, v13")
    a("v_sub_u32 v12, 2047, v12"); a("v_sub_u32 v13, 2047, v13")
    a("v_readfirstlane_b32 s32, v12")
    a("v_readfirstlane_b32 s33, v13")
    a("s_mul_i32 s34, s32, 1280"); a(f"s_add_u32 s34, s34, {WS_XN}")
    a("s_mul_i32 s35, s33, 1280"); a(f"s_add_u32 s35, s35, {WS_XN}")
    a("buffer_load_dword v20, v8, s[24:27], s34 offen")
    a("buffer_load_dword v21, v8, s[24:27], s35 offen")
    a("s_lshl_b32 s36, s32, 2"); a(f"s_add_u32 s36, s36, {WS_R}")
    a("s_lshl_b32 s37, s33, 2"); a(f"s_add_u32 s37, s37, {WS_R}")
    a("v_mov_b32 v17, 0")
    a("buffer_load_dword v26, v17, s[24:27], s36 offen")
    a("buffer_load_dword v27, v17, s[24:27], s37 offen")
    a("s_waitcnt vmcnt(2)")
    a("v_lshlrev_b32 v22, 16, v20"); a("v_lshlrev_b32 v23, 16, v21")
    a("v_and_b32 v24, 0xffff0000, v20"); a("v_and_b32 v25, 0xffff0000, v21")
    a("v_cmp_gt_u32 vcc, 320, v0")
    a("s_and_saveexec_b64 s[38:39], vcc")
    a(f"ds_write_b128 v7, v[22:25] offset:{XS}")
    a("s_mov_b64 exec, s[38:39]")
    a("s_waitcnt lgkmcnt(0)")
    a("s_barrier")
    A0 = 108
    for jx in range(8): a(f"v_mov_b32 v{A0+jx}, 0")
    a("v_lshlrev_b32 v17, 3, v5")
    for i in range(20):
        a(f"ds_read_b64 v[{20+2*(i%2)}:{21+2*(i%2)}], v17 offset:{XS + i*256}")
        x1 = 20+2*(i%2); x2 = x1+1
        a("s_waitcnt lgkmcnt(0)")
        for mat, R in ((0, G), (1, U)):
            a(f"v_lshlrev_b32 v24, 16, v{R+i}")
            a(f"v_and_b32 v25, 0xffff0000, v{R+i}")
            a(f"v_fmac_f32 v{A0+mat*4+0}, v24, v{x1}")
            a(f"v_fmac_f32 v{A0+mat*4+1}, v25, v{x1}")
            a(f"v_fmac_f32 v{A0+mat*4+2}, v24, v{x2}")
            a(f"v_fmac_f32 v{A0+mat*4+3}, v25, v{x2}")
    a("v_lshlrev_b32 v17, 9, v5")
    a("v_lshl_add_u32 v17, v4, 5, v17")
    a(f"ds_write_b128 v17, v[{A0}:{A0+3}] offset:{PART}")
    a(f"ds_write_b128 v17, v[{A0+4}:{A0+7}] offset:{PART+16}")
    a("s_waitcnt lgkmcnt(0)")
    a("s_barrier")
    a("v_readfirstlane_b32 s30, v1")
    a("s_cmp_lg_u32 s30, 0")
    a("s_cbranch_scc1 K2_MOE_W")
    a("v_lshrrev_b32 v17, 2, v2")
    a("v_lshlrev_b32 v17, 5, v17")
    a("v_and_b32 v18, 3, v2")
    a("v_lshl_add_u32 v17, v18, 2, v17")
    a("v_mov_b32 v20, 0"); a("v_mov_b32 v21, 0")
    for g in range(0, 32, 8):
        for q in range(8):
            a(f"ds_read_b32 v{G+q}, v17 offset:{PART + (g+q)*512}")
            a(f"ds_read_b32 v{G+8+q}, v17 offset:{PART + (g+q)*512 + 16}")
        a("s_waitcnt lgkmcnt(0)")
        for q in range(8):
            a(f"v_add_f32 v20, v20, v{G+q}")
            a(f"v_add_f32 v21, v21, v{G+8+q}")
    a("v_cvt_pk_bf16_f32 v20, 0, v20")
    a("v_cvt_pk_bf16_f32 v21, 0, v21")
    a(f"v_mul_f32 v22, {f32(-LOG2E)}, v20")
    a("v_exp_f32 v22, v22")
    a("v_add_f32 v22, 1.0, v22")
    a("v_rcp_f32 v22, v22")
    a("v_mul_f32 v22, v20, v22")
    a("v_cvt_pk_bf16_f32 v22, 0, v22")
    a("v_mul_f32 v22, v22, v21")
    a("v_cvt_pk_bf16_f32 v22, 0, v22")
    a("v_lshrrev_b32 v17, 2, v2")
    a("v_lshlrev_b32 v17, 4, v17")
    a("v_and_b32 v18, 1, v2")
    a("v_lshl_add_u32 v17, v18, 3, v17")
    a("v_bfe_u32 v18, v2, 1, 1")
    a("v_lshl_add_u32 v17, v18, 2, v17")
    a(f"ds_write_b32 v17, v22 offset:{HS}")
    a("s_cmp_lg_u32 s28, 0")
    a("s_cbranch_scc1 K2_MOE_W")
    a("s_waitcnt vmcnt(0)")
    for r in (26, 27):
        a(f"v_mul_f32 v{r}, {f32(-LOG2E)}, v{r}")
        a(f"v_exp_f32 v{r}, v{r}")
        a(f"v_add_f32 v{r}, 1.0, v{r}")
        a(f"v_rcp_f32 v{r}, v{r}")
        a(f"v_cvt_pk_bf16_f32 v{r}, 0, v{r}")
    a("v_mov_b32 v24, s32"); a("v_mov_b32 v25, s33")
    a("v_mov_b32 v17, 0")
    a(f"s_mov_b32 s30, {WS_IDX}")
    a("s_mov_b64 exec, 1")
    a("buffer_store_dwordx4 v[24:27], v17, s[24:27], s30 offen")
    a("s_mov_b64 exec, -1")
    a.label("K2_MOE_W")
    a.fence(4)
    a("s_waitcnt vmcnt(0) lgkmcnt(0)")
    a("s_barrier")
    for jx in range(4): a(f"v_mov_b32 v{A0+jx}, 0")
    a("v_mov_b32 v17, 0")
    for f in range(0, 32, 2):
        a(f"ds_read_b128 v[20:23], v17 offset:{HS + f*8}")
        a("s_waitcnt lgkmcnt(0)")
        for ff in range(2):
            a(f"v_lshlrev_b32 v24, 16, v{D+f+ff}")
            a(f"v_and_b32 v25, 0xffff0000, v{D+f+ff}")
            a(f"v_fmac_f32 v{A0+0}, v24, v{20+2*ff}")
            a(f"v_fmac_f32 v{A0+1}, v25, v{20+2*ff}")
            a(f"v_fmac_f32 v{A0+2}, v24, v{21+2*ff}")
            a(f"v_fmac_f32 v{A0+3}, v25, v{21+2*ff}")
    a("v_lshlrev_b32 v17, 3, v0")
    a("v_cmp_gt_u32 vcc, 320, v0")
    a("s_and_saveexec_b64 s[38:39], vcc")
    a("s_cbranch_execz K2_MOE_END")
    a(f"s_mov_b32 s30, {WS_YP}")
    a(f"buffer_atomic_add_f32 v{A0+0}, v17, s[24:27], s30 offen")
    a(f"buffer_atomic_add_f32 v{A0+1}, v17, s[24:27], s30 offen offset:4")
    a(f"buffer_atomic_add_f32 v{A0+2}, v17, s[24:27], s30 offen offset:2560")
    a(f"buffer_atomic_add_f32 v{A0+3}, v17, s[24:27], s30 offen offset:2564")
    a.label("K2_MOE_END")
    a("s_endpgm")

if __name__ == "__main__":
    import sys
    mode = sys.argv[1] if len(sys.argv) > 1 else "mimic6"
    b1, v1 = gen_k1()
    b2, v2 = gen_k2(mode, instr=len(sys.argv) > 2)
    ks = [("k1_kernel", b1, v1, 256, 256, K1_LDS), ("k2_kernel", b2, v2, 256, 512, K2_LDS)]
    build(ks, "k12.s")
```

```python
from asmlib import Asm
from gen import *

K3_LDS = 102400

def gen_k3():
    a = Asm()
    a("s_cmp_ge_u32 s2, 256")
    a("s_cbranch_scc1 K3_END")
    a("s_load_dwordx2 s[4:5], s[0:1], 0")
    a("s_load_dwordx2 s[6:7], s[0:1], 16")
    a("s_load_dwordx2 s[8:9], s[0:1], 64")
    a("s_load_dwordx2 s[10:11], s[0:1], 80")
    a("s_and_b32 s28, s2, 7")
    a("s_lshr_b32 s29, s2, 3")
    a("v_lshrrev_b32 v1, 6, v0")
    a("v_and_b32 v2, 63, v0")
    a("v_readfirstlane_b32 s30, v1")
    a("v_and_b32 v3, 15, v2")
    a("v_lshrrev_b32 v4, 4, v2")
    a("s_mul_i32 s31, s28, 160")
    for ii in range(5):
        a(f"v_add_u32 v5, {ii*64}, v2")
        a("v_mul_u32_u24 v6, 52429, v5")
        a("v_lshrrev_b32 v6, 19, v6")
        a("v_mul_u32_u24 v7, 10, v6")
        a("v_sub_u32 v7, v5, v7")
        a("v_mul_u32_u24 v6, 1280, v6")
        a("v_lshl_add_u32 v6, v7, 4, v6")
        a(f"v_add_u32 v{10+ii}, s31, v6")
    a("s_lshl_b32 s32, s29, 6")
    a("s_lshl_b32 s33, s30, 4")
    a("s_add_u32 s32, s32, s33")
    a("v_add_u32 v5, s32, v3")
    a("v_mul_u32_u24 v5, 1280, v5")
    a("v_lshl_add_u32 v15, v4, 4, v5")
    a("v_lshl_add_u32 v16, v4, 3, v5")
    a("v_add_u32 v16, s31, v16")
    a("v_bfe_u32 v5, v2, 2, 2")
    a("v_lshl_add_u32 v5, v4, 2, v5")
    a("v_mul_u32_u24 v5, 160, v5")
    a("v_and_b32 v6, 3, v2")
    a("v_lshl_add_u32 v17, v6, 3, v5")
    a("v_add_u32 v18, 51200, v17")
    a("s_waitcnt lgkmcnt(0)")
    srd(a, 12, 4, 2621440)
    srd(a, 16, 6, 819200)
    srd(a, 20, 8, 2621440)
    srd(a, 24, 10, WS_SIZE)
    a(f"s_mov_b32 s38, {WS_IDX}")
    a("s_load_dwordx4 s[44:47], s[10:11], s38")
    OB = 40
    XR = 120
    ACC = 20
    AF = 140
    a(f"s_mov_b32 s36, {WS_O}")
    a(f"s_mov_b32 s37, {WS_XN}")
    a("s_mul_i32 s34, s30, 40960")
    a("s_mul_i32 s35, s30, 5120")
    for i in range(5):
        for ii in range(5):
            a(f"s_add_u32 m0, s35, {i*4*5120 + ii*1024}")
            if ii == 0: a(f"s_add_u32 s38, s34, {i*4*40960}")
            a(f"buffer_load_dwordx4 v{10+ii}, s[16:19], s38 offen lds")
        for q in range(4):
            ks = 4*i + q
            a(f"buffer_load_dwordx4 v[{OB+4*ks}:{OB+4*ks+3}], v15, s[24:27], s36 offen offset:{ks*64}")
    for nt in range(5):
        a(f"buffer_load_dwordx2 v[{XR+2*nt}:{XR+2*nt+1}], v16, s[12:15], 0 offen offset:{nt*32}")
        a(f"buffer_load_dwordx2 v[{XR+10+2*nt}:{XR+11+2*nt}], v16, s[24:27], s37 offen offset:{nt*32}")
    def areads(ks):
        st = AF + (ks % 2)*20
        ad = 17 if ks < 10 else 18
        for nt in range(5):
            for hi in range(2):
                r = st + nt*4 + hi*2
                a(f"ds_read_b64_tr_b16 v[{r}:{r+1}], v{ad} offset:{(ks%10)*5120 + nt*32 + hi*2560}")
    def mf(ks):
        st = AF + (ks % 2)*20
        for nt in range(5):
            d = ACC + 4*nt
            cc = "0" if ks == 0 else f"v[{d}:{d+3}]"
            a(f"v_mfma_f32_16x16x32_bf16 v[{d}:{d+3}], v[{st+nt*4}:{st+nt*4+3}], v[{OB+4*ks}:{OB+4*ks+3}], {cc}")
    for i in range(5):
        a(f"s_waitcnt vmcnt({(4-i)*9 + 10})" + (" lgkmcnt(0)" if i == 0 else ""))
        a("s_barrier")
        for q in range(4):
            ks = 4*i + q
            areads(ks)
            if ks > 0:
                a("s_waitcnt lgkmcnt(10)")
                mf(ks - 1)
    a("s_waitcnt lgkmcnt(0)")
    mf(19)
    a("s_waitcnt vmcnt(0)")
    a("s_lshr_b32 s33, s32, 4")
    for tok in range(2):
        a(f"s_lshr_b32 s38, s{44+tok}, 4")
        a("s_cmp_lg_u32 s38, s33")
        a(f"s_cbranch_scc1 K3_NOMOE{tok}")
        a(f"s_and_b32 s38, s{44+tok}, 15")
        a("v_cmp_eq_u32 vcc, s38, v3")
        a("s_and_saveexec_b64 s[40:41], vcc")
        a("v_lshlrev_b32 v5, 4, v4")
        a("s_mul_i32 s39, s28, 320")
        a(f"s_add_u32 s39, s39, {WS_YP + tok*2560}")
        for nt in range(5):
            a(f"buffer_load_dwordx4 v[{AF+4*nt}:{AF+4*nt+3}], v5, s[24:27], s39 offen offset:{nt*64}")
        a("s_waitcnt vmcnt(0)")
        for nt in range(5):
            for e in range(4):
                y = AF + 4*nt + e
                a(f"v_cvt_pk_bf16_f32 v{y}, 0, v{y}")
                a(f"v_mul_f32 v{y}, s{46+tok}, v{y}")
                a(f"v_cvt_pk_bf16_f32 v{y}, 0, v{y}")
            for d in range(2):
                xn = XR + 10 + 2*nt + d
                a(f"v_lshlrev_b32 v6, 16, v{xn}")
                a(f"v_and_b32 v7, 0xffff0000, v{xn}")
                a(f"v_add_f32 v6, v6, v{AF+4*nt+2*d}")
                a(f"v_add_f32 v7, v7, v{AF+4*nt+2*d+1}")
                a(f"v_cvt_pk_bf16_f32 v{xn}, v6, v7")
        a("s_mov_b64 exec, s[40:41]")
        a.label(f"K3_NOMOE{tok}")
        a.fence(4)
    for nt in range(5):
        for d in range(2):
            A0 = ACC + 4*nt + 2*d
            x = XR + 2*nt + d; xn = XR + 10 + 2*nt + d
            a(f"v_cvt_pk_bf16_f32 v{A0}, 0, v{A0}")
            a(f"v_cvt_pk_bf16_f32 v{A0+1}, 0, v{A0+1}")
            a(f"v_lshlrev_b32 v6, 16, v{x}")
            a(f"v_and_b32 v7, 0xffff0000, v{x}")
            a(f"v_add_f32 v{A0}, v{A0}, v6")
            a(f"v_add_f32 v{A0+1}, v{A0+1}, v7")
            a(f"v_cvt_pk_bf16_f32 v{A0}, 0, v{A0}")
            a(f"v_cvt_pk_bf16_f32 v{A0+1}, 0, v{A0+1}")
            a(f"v_lshlrev_b32 v6, 16, v{xn}")
            a(f"v_and_b32 v7, 0xffff0000, v{xn}")
            a(f"v_add_f32 v{A0}, v{A0}, v6")
            a(f"v_add_f32 v{A0+1}, v{A0+1}, v7")
            a(f"v_cvt_pk_bf16_f32 v{x}, v{A0}, v{A0+1}")
        a(f"buffer_store_dwordx2 v[{XR+2*nt}:{XR+2*nt+1}], v16, s[20:23], 0 offen offset:{nt*32}")
    a.label("K3_END")
    a("s_endpgm")
    return a.text(), 180
```

```python
import sys
from gen import *
from k2 import *
from k3 import *
mode = sys.argv[1] if len(sys.argv) > 1 else "mimic6"
out = sys.argv[2] if len(sys.argv) > 2 else "parallel_sum__softmax_full_mha__moe_arch_mod__prompt.s"
instr = len(sys.argv) > 3
b1, v1 = gen_k1()
b2, v2 = gen_k2(mode, instr=instr)
b3, v3 = gen_k3()
ks = [("k1_kernel", b1, v1, 256, 256, K1_LDS), ("k2_kernel", b2, v2, 256 + NM, 512, K2_LDS), ("k3_kernel", b3, v3, 256, 256, K3_LDS)]
build(ks, out)
```

```python
import sys, struct
sys.path.insert(0, "gen")
from asmlib import Asm

def f32(x): return "0x%08x" % struct.unpack("<I", struct.pack("<f", x))[0]

WS_Q = 0; WS_K = 0x300000; WS_V = 0x600000; WS_XN = 0x900000; WS_O = 0xB80000
WS_R = 0xE00000; WS_IDX = 0xE02000; WS_YP = 0xE10000; WS_SIZE = 0x1000000
HEADB = 98304
NM = 54

def srd(a, d, base, size):
    a(f"s_mov_b32 s{d}, s{base}")
    a(f"s_and_b32 s{d+1}, s{base+1}, 0xffff")
    a(f"s_mov_b32 s{d+2}, {size}")
    a(f"s_mov_b32 s{d+3}, 0x00020000")

def dpp_rowsum(a, regs):
    for sh in (8, 4, 2, 1):
        for r in regs:
            a(f"v_add_f32_dpp v{r}, v{r}, v{r} row_ror:{sh} row_mask:0xf bank_mask:0xf")

WS_DBG = 0xE80000
class Stamps:
    def __init__(self, a, on, base=64):
        self.a, self.on, self.n, self.base = a, on, 0, base
    def __call__(self):
        if self.on:
            r = self.base + 2*self.n
            self.a(f"s_memtime s[{r}:{r+1}]")
            self.n += 1
    def dump(self, region, wave_sgpr, nwaves_log2, srdr=24):
        if not self.on: return
        a = self.a
        a("s_waitcnt lgkmcnt(0)")
        a("s_mov_b64 exec, 1")
        for i in range(8):
            a(f"v_mov_b32 v{4+i}, " + (f"s{self.base+2*i}" if i < self.n else "0"))
        a(f"s_lshl_b32 s62, s2, {nwaves_log2}")
        a(f"s_add_u32 s62, s62, s{wave_sgpr}")
        a("s_lshl_b32 s62, s62, 5")
        a(f"s_add_u32 s62, s62, {WS_DBG + region*0x20000}")
        a("v_mov_b32 v3, 0")
        a(f"buffer_store_dwordx4 v[4:7], v3, s[{srdr}:{srdr+3}], s62 offen")
        a(f"buffer_store_dwordx4 v[8:11], v3, s[{srdr}:{srdr+3}], s62 offen offset:16")

K1_XN_STRIDE = 1296
K1_WBUF = 64 * K1_XN_STRIDE
K1_LDS = K1_WBUF + 4 * 16384

def gen_k1(instr=False, rot=0):
    a = Asm()
    st = Stamps(a, instr)
    st()
    a("s_cmp_ge_u32 s2, 256")
    a("s_cbranch_scc1 K1_END")
    a("s_load_dwordx4 s[4:7], s[0:1], 0")
    a("s_load_dwordx2 s[8:9], s[0:1], 32")
    a("s_load_dwordx2 s[10:11], s[0:1], 80")
    a("s_and_b32 s28, s2, 7")
    a("s_lshr_b32 s29, s2, 3")
    a("v_lshrrev_b32 v1, 6, v0")
    a("v_and_b32 v2, 63, v0")
    a("v_readfirstlane_b32 s30, v1")
    a("v_and_b32 v3, 15, v2")
    a("v_lshrrev_b32 v9, 4, v2")
    a("v_lshlrev_b32 v4, 4, v1")
    a("v_add_u32 v4, v4, v9")
    a("v_mul_u32_u24 v6, %d, v4" % K1_XN_STRIDE)
    a("v_mul_u32_u24 v4, 1280, v4")
    a("v_lshlrev_b32 v10, 4, v3")
    a("v_add_u32 v4, v4, v10")
    a("v_add_u32 v6, v6, v10")
    a("v_lshrrev_b32 v11, 5, v2")
    a("v_lshl_add_u32 v11, v1, 1, v11")
    a("v_and_b32 v12, 3, v11")
    a("v_lshlrev_b32 v12, 2, v12")
    a("v_and_b32 v13, 31, v2")
    a("v_sub_u32 v13, v13, v12")
    a("v_and_b32 v13, 31, v13")
    a("v_lshlrev_b32 v13, 4, v13")
    a("v_mul_u32_u24 v5, 3840, v11")
    a("v_add_u32 v5, v5, v13")
    a("s_mul_i32 s31, s28, 480")
    a("v_add_u32 v5, s31, v5")
    a("v_mov_b32 v7, 0x3f803f80")
    a("v_mov_b32 v8, 0xffff0000")
    a("s_waitcnt lgkmcnt(0)")
    st()
    srd(a, 12, 4, 2621440)
    srd(a, 16, 6, 2457600)
    srd(a, 20, 8, 1280)
    srd(a, 24, 10, WS_SIZE)
    X = 40; WR = 120
    for i in range(5):
        a(f"buffer_load_dwordx4 v[{WR+4*i}:{WR+4*i+3}], v10, s[20:23], 0 offen offset:{i*256}")
    a("s_mul_i32 s32, s29, 81920")
    for p in range(4):
        if p: a(f"s_add_u32 s{32+p}, s32, {p*5120}")
    for p in range(4):
        for i in range(5):
            r = X + 20*p + 4*i
            a(f"buffer_load_dwordx4 v[{r}:{r+3}], v4, s[12:15], s{32+p} offen offset:{i*256}")
    a("s_lshl_b32 s31, s30, 10")
    a(f"s_add_u32 s31, s31, {K1_WBUF}")
    if rot:
        a(f"s_mul_i32 s41, s29, {rot}")
        a("s_mul_i32 s42, s41, 52429")
        a("s_lshr_b32 s42, s42, 20")
        a("s_mul_i32 s42, s42, 20")
        a("s_sub_u32 s41, s41, s42")
        a("s_mov_b32 s43, s41")
        a("s_mov_b32 s44, s41")
    def dma(c):
        buf = c % 4
        if rot:
            a(f"s_mul_i32 s42, s43, {32*3840}")
            a("s_add_u32 s43, s43, 1")
            a("s_cmp_eq_u32 s43, 20")
            a("s_cselect_b32 s43, 0, s43")
        for t in range(4):
            a(f"s_add_u32 m0, s31, {buf*16384 + t*4096}")
            if rot: a(f"s_add_u32 s40, s42, {8*t*3840}")
            else: a(f"s_mov_b32 s40, {(32*c + 8*t)*3840}")
            a("buffer_load_dwordx4 v5, s[16:19], s40 offen lds")
    for c in range(3): dma(c)
    for p in range(4):
        a(f"s_waitcnt vmcnt({12 + 15 - 5*p})")
        if p == 0: st()
        xr = [X + 20*p + k for k in range(20)]
        for k, r in enumerate(xr):
            acc = 10 + (k & 1)
            c = "0" if k < 2 else f"v{acc}"
            a(f"v_dot2_f32_bf16 v{acc}, v{r}, v7, {c}")
            acc2 = 12 + (k & 1)
            c = "0" if k < 2 else f"v{acc2}"
            a(f"v_dot2_f32_bf16 v{acc2}, v{r}, v{r}, {c}")
        a("v_add_f32 v10, v10, v11")
        a("v_add_f32 v12, v12, v13")
        dpp_rowsum(a, [10, 12])
        a(f"v_mul_f32 v10, {f32(1/640)}, v10")
        a(f"v_mul_f32 v12, {f32(1/640)}, v12")
        a("v_fma_f32 v12, -v10, v10, v12")
        a("v_max_f32 v12, 0, v12")
        a("v_cvt_pk_bf16_f32 v14, 0, v10")
        a("v_cvt_pk_bf16_f32 v12, 0, v12")
        a("v_add_f32 v12, 0x3727c5ac, v12")
        a("v_cvt_pk_bf16_f32 v12, 0, v12")
        a("v_sqrt_f32 v12, v12")
        a("v_cvt_pk_bf16_f32 v12, 0, v12")
        a("v_rcp_f32 v16, v12")
        a("v_sub_f32 v14, 0, v14")
        a("v_mov_b32 v15, v14")
        a("v_mov_b32 v17, v16")
        for k, r in enumerate(xr):
            t = 20 + 2*(k & 3)
            a(f"v_lshlrev_b32 v{t}, 16, v{r}")
            a(f"v_and_b32 v{t+1}, v8, v{r}")
            a(f"v_pk_add_f32 v[{t}:{t+1}], v[{t}:{t+1}], v[14:15]")
            a(f"v_cvt_pk_bf16_f32 v{r}, v{t}, v{t+1}")
            a(f"v_lshlrev_b32 v{t}, 16, v{r}")
            a(f"v_and_b32 v{t+1}, v8, v{r}")
            a(f"v_pk_mul_f32 v[{t}:{t+1}], v[{t}:{t+1}], v[16:17]")
            a(f"v_cvt_pk_bf16_f32 v{r}, v{t}, v{t+1}")
        for i in range(5):
            r = X + 20*p + 4*i
            a(f"ds_write_b128 v6, v[{r}:{r+3}] offset:{p*4*K1_XN_STRIDE + i*256}")
    st()
    a("s_lshr_b32 s36, s28, 1")
    a("s_cmp_lg_u32 s36, s30")
    a("s_cbranch_scc1 K1_NOSTORE")
    a("s_and_b32 s36, s28, 1")
    a("s_cmp_lg_u32 s36, 0")
    a("s_cbranch_scc1 K1_ST1")
    for half in range(2):
        if half == 1:
            a("s_branch K1_NOSTORE")
            a.label("K1_ST1")
            a.fence(4)
        for p in (2*half, 2*half+1):
            a(f"s_add_u32 s36, s{32+p}, {WS_XN}")
            for i in range(5):
                r = X + 20*p + 4*i
                a(f"buffer_store_dwordx4 v[{r}:{r+3}], v4, s[24:27], s36 offen offset:{i*256}")
            for k in range(20):
                acc = 10 + (k & 1)
                c = "0" if k < 2 else f"v{acc}"
                a(f"v_dot2_f32_bf16 v{acc}, v{X+20*p+k}, v{WR+k}, {c}")
            a("v_add_f32 v10, v10, v11")
            dpp_rowsum(a, [10])
            a("v_cvt_pk_bf16_f32 v10, 0, v10")
            a("v_lshl_add_u32 v11, v1, 4, v9")
            a(f"v_add_u32 v11, {4*p}, v11")
            a("v_lshlrev_b32 v11, 2, v11")
            a("s_lshl_b32 s36, s29, 8")
            a(f"s_add_u32 s36, s36, {WS_R}")
            a("v_cmp_eq_u32 vcc, 0, v3")
            a("s_and_saveexec_b64 s[38:39], vcc")
            a("buffer_store_dword v10, v11, s[24:27], s36 offen")
            a("s_mov_b64 exec, s[38:39]")
    a.label("K1_NOSTORE")
    a.fence(4)
    a("s_lshl_b32 s36, s28, 2")
    a("s_add_u32 s36, s36, s30")
    a(f"s_mul_i32 s36, s36, {HEADB}")
    a("s_mul_i32 s37, s29, %d" % (64*48))
    a("s_add_u32 s36, s36, s37")
    a(f"s_add_u32 s36, s36, {WS_V + 40}")
    a("v_mul_u32_u24 v10, 48, v2")
    a("v_mov_b32 v12, v7")
    a("v_mov_b32 v13, v7")
    a("buffer_store_dwordx2 v[12:13], v10, s[24:27], s36 offen")
    a(f"s_sub_u32 s36, s36, {WS_V - WS_K}")
    a("buffer_store_dwordx2 v[12:13], v10, s[24:27], s36 offen")
    a("s_cmp_lg_u32 s2, 0")
    a("s_cbranch_scc1 K1_NOZ")
    for i in range(4): a(f"v_mov_b32 v{12+i}, 0")
    a("v_lshlrev_b32 v10, 4, v0")
    a(f"s_mov_b32 s36, {WS_YP}")
    a("buffer_store_dwordx4 v[12:15], v10, s[24:27], s36 offen")
    a(f"s_mov_b32 s36, {WS_YP + 4096}")
    a("buffer_store_dwordx4 v[12:15], v10, s[24:27], s36 offen")
    a.label("K1_NOZ")
    a.fence(4)
    a("v_lshrrev_b32 v10, 5, v2")
    a("v_bfe_u32 v11, v2, 4, 1")
    a("v_bfe_u32 v12, v2, 2, 2")
    a("v_and_b32 v13, 3, v2")
    a("v_lshl_add_u32 v14, v10, 3, v12")
    a("v_lshlrev_b32 v14, 9, v14")
    a("v_and_b32 v15, 1, v13")
    a("v_lshl_add_u32 v14, v15, 3, v14")
    a(f"v_add_u32 v14, {K1_WBUF}, v14")
    a("v_lshlrev_b32 v15, 3, v1")
    a("v_lshl_add_u32 v15, v11, 1, v15")
    a("v_lshrrev_b32 v16, 1, v13")
    a("v_add_u32 v15, v15, v16")
    a("v_lshl_add_u32 v15, v12, 2, v15")
    a("v_and_b32 v16, 31, v15")
    a("v_lshl_add_u32 v30, v16, 4, v14")
    a("v_add_u32 v15, 4, v15")
    a("v_and_b32 v16, 31, v15")
    a("v_lshl_add_u32 v31, v16, 4, v14")
    a("v_and_b32 v15, 31, v2")
    a(f"v_mul_u32_u24 v32, {K1_XN_STRIDE}, v15")
    a("v_lshl_add_u32 v32, v10, 4, v32")
    SETS = [(40, 56), (72, 88)]
    ACC = 104
    def reads(c):
        A0, B0 = SETS[c % 2]
        buf = c % 4
        if rot:
            a("s_lshl_b32 s45, s44, 6")
            a("v_add_u32 v33, s45, v32")
            a("s_add_u32 s44, s44, 1")
            a("s_cmp_eq_u32 s44, 20")
            a("s_cselect_b32 s44, 0, s44")
        for ks in range(2):
            for aa in range(2):
                for hi in range(2):
                    r = A0 + (ks*2 + aa)*4 + hi*2
                    a(f"ds_read_b64_tr_b16 v[{r}:{r+1}], v{30+aa} offset:{buf*16384 + ks*8192 + hi*2048}")
            for b in range(2):
                r = B0 + (ks*2 + b)*4
                if rot: a(f"ds_read_b128 v[{r}:{r+3}], v33 offset:{b*32*K1_XN_STRIDE + ks*32}")
                else: a(f"ds_read_b128 v[{r}:{r+3}], v32 offset:{b*32*K1_XN_STRIDE + c*64 + ks*32}")
    def mfmas(c):
        A0, B0 = SETS[c % 2]
        for ks in range(2):
            for aa in range(2):
                for b in range(2):
                    d = ACC + (aa*2 + b)*16
                    ra = A0 + (ks*2 + aa)*4; rb = B0 + (ks*2 + b)*4
                    cc = "0" if (c == 0 and ks == 0) else f"v[{d}:{d+15}]"
                    a(f"v_mfma_f32_32x32x16_bf16 v[{d}:{d+15}], v[{ra}:{ra+3}], v[{rb}:{rb+3}], {cc}")
    NCH = 20
    for c in range(NCH):
        younger = min(NCH-1, c+2) - c
        a(f"s_waitcnt vmcnt({4*younger}) lgkmcnt(0)")
        a("s_barrier")
        if c in (0, 10): st()
        if c + 3 < NCH: dma(c + 3)
        reads(c)
        if c > 0: mfmas(c - 1)
    a("s_waitcnt lgkmcnt(0)")
    mfmas(NCH - 1)
    st()
    a("s_mul_i32 s36, s28, 60")
    a("s_lshl_b32 s37, s30, 4")
    a("s_add_u32 s36, s36, s37")
    a("v_add_u32 v14, s36, v10")
    a("v_and_b32 v15, 31, v2")
    a("v_mul_u32_u24 v15, 48, v15")
    a("s_mul_i32 s37, s29, %d" % (64*48))
    a(f"s_add_u32 s38, s37, {32*48}")
    a(f"s_mov_b32 s39, {HEADB}")
    for aa in range(2):
        for c in range(4):
            o = 40 + aa*4 + c
            a(f"v_add_u32 v16, {8*aa + 2*c}, v14")
            a("v_mul_u32_u24 v17, 52429, v16")
            a("v_lshrrev_b32 v17, 18, v17")
            a("v_mul_u32_u24 v18, 5, v17")
            a("v_sub_u32 v18, v16, v18")
            a("v_mul_lo_u32 v17, v17, s39")
            a("v_lshl_add_u32 v17, v18, 3, v17")
            a(f"v_add_u32 v{o}, v17, v15")
    for aa in range(2):
        for c in range(4):
            if aa == 1 and c == 2:
                a("s_cmp_eq_u32 s30, 3")
                a("s_cbranch_scc1 K1_FIN")
            for b in range(2):
                d = ACC + (aa*2 + b)*16 + 4*c
                t = 50 + 2*b
                a(f"v_cvt_pk_bf16_f32 v{t}, v{d}, v{d+1}")
                a(f"v_cvt_pk_bf16_f32 v{t+1}, v{d+2}, v{d+3}")
                a(f"buffer_store_dwordx2 v[{t}:{t+1}], v{40+aa*4+c}, s[24:27], s{37+b} offen")
    a.label("K1_FIN")
    if instr:
        a("s_waitcnt vmcnt(0)")
        st()
        st.dump(0, 30, 2)
    a.label("K1_END")
    a("s_endpgm")
    return a.text(), 168

def kernel_block(name, body):
    return f""".globl {name}
.p2align 8
.type {name},@function
{name}:
{body}"""

def desc(name, vgpr, sgpr=96):
    return f""".amdhsa_kernel {name}
  .amdhsa_next_free_vgpr {vgpr}
  .amdhsa_next_free_sgpr {sgpr}
  .amdhsa_accum_offset {(vgpr+3)//4*4}
  .amdhsa_group_segment_fixed_size 0
  .amdhsa_kernarg_size 88
  .amdhsa_user_sgpr_count 2
  .amdhsa_user_sgpr_kernarg_segment_ptr 1
  .amdhsa_system_sgpr_workgroup_id_x 1
  .amdhsa_float_denorm_mode_32 3
.end_amdhsa_kernel
"""

HEADER = open("parallel_sum__softmax_full_mha__moe_arch_mod__prompt.s.ref").read().split("; Override")[0]

def build(kernels, path):
    s = HEADER
    for (name, body, vgpr, grid, block, lds) in kernels:
        s += f"; @launch kernel={name} grid=({grid},1,1) block=({block},1,1) lds={lds}\n"
    s += '.amdgcn_target "amdgcn-amd-amdhsa--gfx950"\n.text\n'
    for (name, body, vgpr, grid, block, lds) in kernels:
        s += kernel_block(name, body)
    s += '.section .rodata,"a"\n'
    for (name, body, vgpr, grid, block, lds) in kernels:
        s += ".p2align 6\n" + desc(name, vgpr)
    open(path, "w").write(s)

if __name__ == "__main__":
    b1, v1 = gen_k1()
    ks = [("k1_kernel", b1, v1, 256, 256, K1_LDS)]
    build(ks, "k1only.s")
```

```python
from asmlib import Asm
from gen import *

NBUF = 4
WB = 81920
K1_STAT = WB + NBUF * 16384
K1_CS = K1_STAT + 4096
K1B_LDS = K1_CS + 1024
K1B_VGPR = 176

def gen_k1b(instr=False, rot=3, J=4, rotj=2):
    a = Asm()
    st = Stamps(a, instr)
    st()
    a("s_cmp_ge_u32 s2, 256")
    a("s_cbranch_scc1 K1_END")
    a("s_load_dwordx4 s[4:7], s[0:1], 0")
    a("s_load_dwordx2 s[8:9], s[0:1], 32")
    a("s_load_dwordx2 s[10:11], s[0:1], 80")
    lj = {1: 0, 2: 1, 4: 2, 8: 3}[J]
    a("s_and_b32 s40, s2, 7")
    a("s_lshr_b32 s41, s2, 3")
    a(f"s_and_b32 s28, s40, {8//J - 1}")
    a(f"s_lshl_b32 s28, s28, {lj}")
    a(f"s_and_b32 s42, s41, {J-1}")
    a("s_add_u32 s28, s28, s42")
    a(f"s_lshr_b32 s29, s40, {3-lj}")
    a(f"s_lshl_b32 s29, s29, {5-lj}")
    a(f"s_lshr_b32 s42, s41, {lj}")
    a("s_add_u32 s29, s29, s42")
    a("v_lshrrev_b32 v1, 6, v0")
    a("v_and_b32 v2, 63, v0")
    a("v_readfirstlane_b32 s30, v1")
    a("v_mov_b32 v7, 0x3f803f80")
    a("v_mov_b32 v8, 0xffff0000")
    a(f"s_mul_i32 s41, s29, {rot}")
    a(f"s_mul_i32 s42, s28, {rotj}")
    a("s_add_u32 s41, s41, s42")
    a("s_mul_i32 s42, s41, 52429")
    a("s_lshr_b32 s42, s42, 19")
    a("s_mul_i32 s42, s42, 10")
    a("s_sub_u32 s43, s41, s42")
    a("s_cmp_ge_u32 s30, 4")
    a("s_cbranch_scc1 K1_PROD")
    a("v_lshrrev_b32 v10, 5, v2")
    a("v_bfe_u32 v11, v2, 4, 1")
    a("v_bfe_u32 v12, v2, 2, 2")
    a("v_and_b32 v13, 3, v2")
    a("v_lshl_add_u32 v14, v10, 3, v12")
    a("v_lshlrev_b32 v14, 9, v14")
    a("v_and_b32 v15, 1, v13")
    a("v_lshl_add_u32 v14, v15, 3, v14")
    a(f"v_add_u32 v14, {WB}, v14")
    a("v_lshlrev_b32 v15, 3, v1")
    a("v_lshl_add_u32 v15, v11, 1, v15")
    a("v_lshrrev_b32 v16, 1, v13")
    a("v_add_u32 v15, v15, v16")
    a("v_lshl_add_u32 v15, v12, 2, v15")
    a("v_and_b32 v16, 31, v15")
    a("v_lshl_add_u32 v24, v16, 4, v14")
    a("v_add_u32 v15, 4, v15")
    a("v_and_b32 v16, 31, v15")
    a("v_lshl_add_u32 v25, v16, 4, v14")
    a("v_and_b32 v15, 31, v2")
    a("v_bfe_u32 v16, v2, 1, 3")
    a("v_xor_b32 v16, v16, v10")
    a("v_lshlrev_b32 v17, 7, v15")
    for q in range(4):
        a(f"v_xor_b32 v34, {2*q}, v16")
        a(f"v_lshl_add_u32 v{26+q}, v34, 4, v17")
        a(f"v_add_u32 v{30+q}, 40960, v{26+q}")
    SETS = [(40, 56), (72, 88)]
    ACC = 104
    CSUM = (168, 172); SUM = (20, 21); SQ = (22, 23); SEL = 36
    for r in SUM + SQ: a(f"v_mov_b32 v{r}, 0")
    a("v_and_b32 v34, 15, v2")
    a("v_cmp_eq_u32 vcc, v34, v11")
    a(f"v_cndmask_b32 v{SEL}, 0, v7, vcc")
    for q in range(1, 4): a(f"v_mov_b32 v{SEL+q}, v{SEL}")
    a("s_waitcnt lgkmcnt(0)")
    srd(a, 24, 10, WS_SIZE)
    def reads(c):
        A0, B0 = SETS[c % 2]
        buf = c % NBUF
        slot = c // 2
        L = []
        for ks in range(2):
            for aa in range(2):
                for hi in range(2):
                    r = A0 + (ks*2 + aa)*4 + hi*2
                    L.append(f"ds_read_b64_tr_b16 v[{r}:{r+1}], v{24+aa} offset:{buf*16384 + ks*8192 + hi*2048}")
            for b in range(2):
                r = B0 + (ks*2 + b)*4
                L.append(f"ds_read_b128 v[{r}:{r+3}], v{26 + 4*(slot//5) + 2*(c&1) + ks} offset:{(slot%5)*8192 + b*4096}")
        return L
    def mfmas(c):
        A0, B0 = SETS[c % 2]
        L = []
        for ks in range(2):
            for aa in range(2):
                ra = A0 + (ks*2 + aa)*4
                for b in range(2):
                    d = ACC + (aa*2 + b)*16
                    rb = B0 + (ks*2 + b)*4
                    cc = "0" if (c == 0 and ks == 0) else f"v[{d}:{d+15}]"
                    L.append(f"v_mfma_f32_32x32x16_bf16 v[{d}:{d+15}], v[{ra}:{ra+3}], v[{rb}:{rb+3}], {cc}")
                d = CSUM[aa]
                cc = "0" if (c == 0 and ks == 0) else f"v[{d}:{d+3}]"
                L.append(f"v_mfma_f32_16x16x32_bf16 v[{d}:{d+3}], v[{ra}:{ra+3}], v[{SEL}:{SEL+3}], {cc}")
        return L
    NCH = 20
    for c in range(NCH):
        a("s_waitcnt lgkmcnt(0)")
        a("s_barrier")
        if c in (0, 10): st()
        R = reads(c)
        M = mfmas(c - 1) if c > 0 else []
        k = 0
        for m in M:
            a(m)
            for _ in range(2):
                if k < len(R): a(R[k]); k += 1
        while k < len(R): a(R[k]); k += 1
    a("s_waitcnt lgkmcnt(0)")
    for m in mfmas(NCH - 1): a(m)
    st()
    a.fence(4)
    a("v_and_b32 v15, 31, v2")
    a("v_and_b32 v34, 15, v2")
    a("v_lshlrev_b32 v17, 6, v34")
    a("v_lshrrev_b32 v35, 4, v2")
    a("v_lshl_add_u32 v17, v35, 4, v17")
    a("v_lshl_add_u32 v17, v1, 8, v17")
    a(f"v_add_u32 v17, {K1_CS}, v17")
    a("v_cmp_gt_u32 vcc, 2, v34")
    a("s_and_saveexec_b64 s[38:39], vcc")
    a(f"ds_write_b128 v17, v[{CSUM[0]}:{CSUM[0]+3}]")
    a(f"ds_write_b128 v17, v[{CSUM[1]}:{CSUM[1]+3}] offset:128")
    a("s_mov_b64 exec, s[38:39]")
    a("s_waitcnt lgkmcnt(0)")
    a("s_barrier")
    a("v_lshlrev_b32 v16, 3, v15")
    a(f"v_add_u32 v16, {K1_STAT}, v16")
    for b in range(2):
        for p in range(2):
            a(f"ds_read_b64 v[{40+b*16+2*p}:{41+b*16+2*p}], v16 offset:{b*512 + p*256}")
    a("v_lshlrev_b32 v17, 4, v10")
    a("v_lshl_add_u32 v17, v1, 8, v17")
    a(f"v_add_u32 v17, {K1_CS}, v17")
    for aa in range(2):
        for c in range(4):
            r = 72 + aa*16 + 4*c
            a(f"ds_read_b128 v[{r}:{r+3}], v17 offset:{aa*128 + c*32}")
    a("s_waitcnt lgkmcnt(0)")
    MEAN = (20, 21); RINV = (22, 23)
    for b in range(2):
        base = 40 + b*16
        for p in range(1, 2):
            a(f"v_add_f32 v{base}, v{base}, v{base+2*p}")
            a(f"v_add_f32 v{base+1}, v{base+1}, v{base+2*p+1}")
        a(f"v_mul_f32 v{base}, {f32(1/640)}, v{base}")
        a(f"v_mul_f32 v{base+1}, {f32(1/640)}, v{base+1}")
        a(f"v_fma_f32 v{base+1}, -v{base}, v{base}, v{base+1}")
        a(f"v_max_f32 v{base+1}, 0, v{base+1}")
        a(f"v_cvt_pk_bf16_f32 v{MEAN[b]}, 0, v{base}")
        a(f"v_cvt_pk_bf16_f32 v{base+1}, 0, v{base+1}")
        a(f"v_add_f32 v{base+1}, 0x3727c5ac, v{base+1}")
        a(f"v_cvt_pk_bf16_f32 v{base+1}, 0, v{base+1}")
        a(f"v_sqrt_f32 v{base+1}, v{base+1}")
        a(f"v_cvt_pk_bf16_f32 v{base+1}, 0, v{base+1}")
        a(f"v_rcp_f32 v{RINV[b]}, v{base+1}")
    a("v_lshl_add_u32 v14, v1, 4, v10")
    a("v_mul_u32_u24 v15, 48, v15")
    for aa in range(2):
        for c in range(4):
            if aa == 1 and c == 2:
                a("s_cmp_eq_u32 s30, 3")
                a("s_cbranch_scc1 K1_STG")
            a(f"v_add_u32 v16, {8*aa + 2*c}, v14")
            a("v_mul_u32_u24 v17, 52429, v16")
            a("v_lshrrev_b32 v17, 18, v17")
            a("v_mul_u32_u24 v18, 5, v17")
            a("v_sub_u32 v18, v16, v18")
            a("v_mul_u32_u24 v17, 3072, v17")
            a("v_lshl_add_u32 v17, v18, 3, v17")
            a("v_add_u32 v17, v17, v15")
            for b in range(2):
                d = ACC + (aa*2 + b)*16 + 4*c
                cs = 72 + aa*16 + 4*c
                for e in range(4):
                    a(f"v_fma_f32 v{d+e}, -v{MEAN[b]}, v{cs+e}, v{d+e}")
                    a(f"v_mul_f32 v{d+e}, v{d+e}, v{RINV[b]}")
                t = 40 + 2*b
                a(f"v_cvt_pk_bf16_f32 v{t}, v{d}, v{d+1}")
                a(f"v_cvt_pk_bf16_f32 v{t+1}, v{d+2}, v{d+3}")
                a(f"ds_write_b64 v17, v[{t}:{t+1}] offset:{b*1536}")
    a.label("K1_STG")
    a.fence(4)
    a("v_mul_u32_u24 v16, 48, v2")
    a("s_mul_i32 s36, s30, 9216")
    a("v_add_u32 v16, s36, v16")
    a("v_mov_b32 v40, v7"); a("v_mov_b32 v41, v7")
    for hh in range(3):
        a(f"ds_write_b64 v16, v[40:41] offset:{hh*3072 + 40}")
    a("s_branch K1_COPY")
    a.label("K1_PROD")
    a.fence(4)
    a("s_sub_u32 s31, s30, 4")
    a("s_and_b32 s32, s31, 1")
    a("s_mul_i32 s33, s29, 81920")
    a("s_waitcnt lgkmcnt(0)")
    srd(a, 12, 4, 2621440)
    srd(a, 16, 6, 2457600)
    srd(a, 20, 8, 1280)
    srd(a, 24, 10, WS_SIZE)
    a("s_cmp_ge_u32 s31, 2")
    a("s_cbranch_scc1 K1_PW")
    a("s_lshl_b32 s34, s32, 3")
    a("v_lshrrev_b32 v11, 3, v2")
    a("v_add_u32 v11, s34, v11")
    a("v_mul_u32_u24 v4, 1280, v11")
    a("s_lshl_b32 s34, s32, 2")
    a("v_lshrrev_b32 v13, 4, v2")
    a("v_add_u32 v13, s34, v13")
    a("v_and_b32 v12, 7, v2")
    a("v_xor_b32 v12, v12, v13")
    a("v_lshl_add_u32 v4, v12, 4, v4")
    a("s_lshl_b32 s34, s32, 10")
    def xslot(slot):
        a("s_lshl_b32 s40, s43, 7")
        a("s_add_u32 s40, s40, s33")
        a("s_add_u32 s43, s43, 1")
        a("s_cmp_eq_u32 s43, 10")
        a("s_cselect_b32 s43, 0, s43")
        for t in range(4):
            a(f"s_add_u32 m0, s34, {slot*8192 + t*2048}")
            if t: a(f"s_add_u32 s40, s40, {16*1280}")
            a("buffer_load_dwordx4 v4, s[12:15], s40 offen lds")
    XPRE = 5
    for slot in range(XPRE): xslot(slot)
    X = 40; WR = 60
    a("v_and_b32 v3, 15, v2")
    a("v_lshrrev_b32 v9, 4, v2")
    a("v_lshlrev_b32 v10, 4, v3")
    a("s_lshl_b32 s35, s28, 3")
    a("s_lshl_b32 s36, s31, 2")
    a("s_add_u32 s35, s35, s36")
    a("v_add_u32 v11, s35, v9")
    a("v_mul_u32_u24 v6, 1280, v11")
    a("v_add_u32 v6, v6, v10")
    a("v_lshrrev_b32 v20, 5, v2")
    a("v_and_b32 v15, 31, v2")
    a("v_bfe_u32 v16, v2, 1, 3")
    a("v_xor_b32 v16, v16, v20")
    a("v_lshlrev_b32 v17, 7, v15")
    a("s_lshl_b32 s37, s32, 12")
    a("v_add_u32 v17, s37, v17")
    for q in range(4):
        a(f"v_xor_b32 v34, {2*q}, v16")
        a(f"v_lshl_add_u32 v{26+q}, v34, 4, v17")
        a(f"v_add_u32 v{30+q}, 40960, v{26+q}")
    for r in (21, 22, 23, 24): a(f"v_mov_b32 v{r}, 0")
    issued = XPRE; extra = 0
    for c in range(NCH):
        if c % 2 == 0: a(f"s_waitcnt vmcnt({extra + 4*(issued - (c//2 + 1))})")
        a("s_barrier")
        slot = c // 2
        for ks in range(2):
            a(f"ds_read_b128 v[{80+4*ks}:{83+4*ks}], v{26 + 4*(slot//5) + 2*(c&1) + ks} offset:{(slot%5)*8192}")
        if issued < 10:
            xslot(issued); issued += 1
        elif extra == 0:
            for i in range(5):
                a(f"buffer_load_dwordx4 v[{X+4*i}:{X+4*i+3}], v6, s[12:15], s33 offen offset:{i*256}")
                a(f"buffer_load_dwordx4 v[{WR+4*i}:{WR+4*i+3}], v10, s[20:23], 0 offen offset:{i*256}")
            extra = 10
        a("s_waitcnt lgkmcnt(0)")
        for q in range(8):
            a(f"v_lshlrev_b32 v88, 16, v{80+q}")
            a(f"v_and_b32 v89, v8, v{80+q}")
            a("v_add_f32 v21, v21, v88")
            a("v_add_f32 v22, v22, v89")
            a("v_fmac_f32 v23, v88, v88")
            a("v_fmac_f32 v24, v89, v89")
    a("v_add_f32 v22, v21, v22")
    a("v_add_f32 v23, v23, v24")
    a("v_lshlrev_b32 v16, 3, v15")
    a("v_lshl_add_u32 v16, v20, 8, v16")
    a("s_lshl_b32 s37, s32, 9")
    a(f"s_add_u32 s37, s37, {K1_STAT}")
    a("v_add_u32 v16, s37, v16")
    a("ds_write_b64 v16, v[22:23]")
    a("s_waitcnt lgkmcnt(0)")
    a("s_barrier")
    a("s_waitcnt vmcnt(0)")
    a("s_branch K1_PLN")
    a.label("K1_PW")
    a.fence(4)
    a("s_lshl_b32 s43, s43, 1")
    a("s_lshl_b32 s34, s32, 1")
    a("v_lshrrev_b32 v11, 5, v2")
    a("v_add_u32 v11, s34, v11")
    a("v_lshlrev_b32 v12, 2, v11")
    a("v_and_b32 v13, 31, v2")
    a("v_sub_u32 v13, v13, v12")
    a("v_and_b32 v13, 31, v13")
    a("v_lshlrev_b32 v13, 4, v13")
    a("v_mul_u32_u24 v5, 3840, v11")
    a("v_add_u32 v5, v5, v13")
    a("s_mul_i32 s34, s28, 480")
    a("v_add_u32 v5, s34, v5")
    a("s_lshl_b32 s34, s32, 10")
    def dma(c):
        buf = c % NBUF
        a(f"s_mul_i32 s40, s43, {32*3840}")
        a("s_add_u32 s43, s43, 1")
        a("s_cmp_eq_u32 s43, 20")
        a("s_cselect_b32 s43, 0, s43")
        for t in range(8):
            a(f"s_add_u32 m0, s34, {WB + buf*16384 + t*2048}")
            if t: a(f"s_add_u32 s40, s40, {4*3840}")
            a("buffer_load_dwordx4 v5, s[16:19], s40 offen lds")
    PRE = NBUF - 1
    for c in range(PRE): dma(c)
    for c in range(NCH):
        issued = min(NCH, c + PRE)
        younger = issued - (c + 1)
        a(f"s_waitcnt vmcnt({8*younger})")
        a("s_barrier")
        if c + PRE < NCH: dma(c + PRE)
    a("s_barrier")
    a("s_branch K1_PL1")
    a.label("K1_PLN")
    a.fence(4)
    xr = [X + k for k in range(20)]
    for k, r in enumerate(xr):
        acc = 10 + (k & 1); c = "0" if k < 2 else f"v{acc}"
        a(f"v_dot2_f32_bf16 v{acc}, v{r}, v7, {c}")
        acc2 = 12 + (k & 1); c = "0" if k < 2 else f"v{acc2}"
        a(f"v_dot2_f32_bf16 v{acc2}, v{r}, v{r}, {c}")
    a("v_add_f32 v10, v10, v11")
    a("v_add_f32 v12, v12, v13")
    dpp_rowsum(a, [10, 12])
    a(f"v_mul_f32 v10, {f32(1/640)}, v10")
    a(f"v_mul_f32 v12, {f32(1/640)}, v12")
    a("v_fma_f32 v12, -v10, v10, v12")
    a("v_max_f32 v12, 0, v12")
    a("v_cvt_pk_bf16_f32 v14, 0, v10")
    a("v_cvt_pk_bf16_f32 v12, 0, v12")
    a("v_add_f32 v12, 0x3727c5ac, v12")
    a("v_cvt_pk_bf16_f32 v12, 0, v12")
    a("v_sqrt_f32 v12, v12")
    a("v_cvt_pk_bf16_f32 v12, 0, v12")
    a("v_rcp_f32 v16, v12")
    a("v_sub_f32 v14, 0, v14")
    a("v_mov_b32 v15, v14")
    a("v_mov_b32 v17, v16")
    for k, r in enumerate(xr):
        t = 20 + 2*(k & 3)
        a(f"v_lshlrev_b32 v{t}, 16, v{r}")
        a(f"v_and_b32 v{t+1}, v8, v{r}")
        a(f"v_pk_add_f32 v[{t}:{t+1}], v[{t}:{t+1}], v[14:15]")
        a(f"v_cvt_pk_bf16_f32 v{r}, v{t}, v{t+1}")
        a(f"v_lshlrev_b32 v{t}, 16, v{r}")
        a(f"v_and_b32 v{t+1}, v8, v{r}")
        a(f"v_pk_mul_f32 v[{t}:{t+1}], v[{t}:{t+1}], v[16:17]")
        a(f"v_cvt_pk_bf16_f32 v{r}, v{t}, v{t+1}")
    a(f"s_add_u32 s36, s33, {WS_XN}")
    for i in range(5):
        a(f"buffer_store_dwordx4 v[{X+4*i}:{X+4*i+3}], v6, s[24:27], s36 offen offset:{i*256}")
    for k in range(20):
        acc = 10 + (k & 1); c = "0" if k < 2 else f"v{acc}"
        a(f"v_dot2_f32_bf16 v{acc}, v{X+k}, v{WR+k}, {c}")
    a("v_add_f32 v10, v10, v11")
    dpp_rowsum(a, [10])
    a("v_cvt_pk_bf16_f32 v10, 0, v10")
    a("v_add_u32 v11, s35, v9")
    a("v_lshlrev_b32 v11, 2, v11")
    a("s_lshl_b32 s36, s29, 8")
    a(f"s_add_u32 s36, s36, {WS_R}")
    a("v_cmp_eq_u32 vcc, 0, v3")
    a("s_and_saveexec_b64 s[38:39], vcc")
    a("buffer_store_dword v10, v11, s[24:27], s36 offen")
    a("s_mov_b64 exec, s[38:39]")
    a.label("K1_PL1")
    a.fence(4)
    a("s_cmp_lg_u32 s2, 0")
    a("s_cbranch_scc1 K1_NOZ")
    a("s_cmp_lg_u32 s31, 3")
    a("s_cbranch_scc1 K1_NOZ")
    for i in range(4): a(f"v_mov_b32 v{12+i}, 0")
    a("v_lshlrev_b32 v10, 4, v2")
    a(f"s_mov_b32 s36, {WS_YP}")
    for i in range(4):
        a(f"buffer_store_dwordx4 v[12:15], v10, s[24:27], s36 offen offset:{i*1024}")
    a(f"s_mov_b32 s36, {WS_YP + 4096}")
    a("buffer_store_dwordx4 v[12:15], v10, s[24:27], s36 offen")
    a.label("K1_NOZ")
    a.fence(4)
    a.label("K1_COPY")
    a.fence(4)
    a("s_waitcnt lgkmcnt(0)")
    a("s_barrier")
    a("v_lshlrev_b32 v16, 4, v2")
    a("s_lshl_b32 s36, s30, 10")
    a("v_add_u32 v17, s36, v16")
    for i in range(5):
        if i == 4:
            a("s_cmp_ge_u32 s30, 4")
            a("s_cbranch_scc1 K1_CP2")
        a(f"ds_read_b128 v[{40+4*i}:{43+4*i}], v17 offset:{i*8192}")
    a.label("K1_CP2")
    a("s_mul_i32 s37, s28, 12")
    a("s_mul_i32 s38, s29, 3072")
    for i in range(5):
        a(f"s_add_u32 s39, s30, {8*i}")
        a("s_mul_i32 s40, s39, 43691")
        a("s_lshr_b32 s40, s40, 17")
        a("s_mul_i32 s41, s40, 3")
        a("s_sub_u32 s41, s39, s41")
        a("s_add_u32 s40, s40, s37")
        a(f"s_mul_i32 s40, s40, {HEADB}")
        a("s_lshl_b32 s41, s41, 10")
        a("s_add_u32 s40, s40, s41")
        a(f"s_add_u32 s{44+i}, s40, s38")
    a("s_waitcnt lgkmcnt(0)")
    for i in range(5):
        if i == 4:
            a("s_cmp_ge_u32 s30, 4")
            a("s_cbranch_scc1 K1_FIN")
        a(f"buffer_store_dwordx4 v[{40+4*i}:{43+4*i}], v16, s[24:27], s{44+i} offen")
    a.label("K1_FIN")
    if instr:
        a("s_waitcnt vmcnt(0)")
        st()
        a("s_cmp_ge_u32 s30, 4")
        a("s_cbranch_scc1 K1_END")
        st.dump(0, 30, 2)
    a.label("K1_END")
    a("s_endpgm")
    return a.text(), K1B_VGPR
```

```python
import math
from asmlib import Asm
from gen import *

K2_BUF = 24576
K2_FLAG = 3 * K2_BUF
K2_LDS = K2_FLAG + 256
LOG2E = 1.4426950408889634
C32 = struct.unpack("<f", struct.pack("<I", 0x3e64f92e))[0]

L_TARGET = -100
L_THRESH = "0x3f800000"
K2_VGPR = 176

def gen_k2(mode="plain", instr=False, slots=None, abl=""):
    a = Asm()
    st = Stamps(a, instr, base=74)
    st()
    if instr:
        a("s_memtime s[64:65]")
        a("s_memrealtime s[66:67]")
    a("s_cmp_ge_u32 s2, 256")
    a("s_cbranch_scc1 K2_MOE")
    a("s_load_dwordx2 s[10:11], s[0:1], 80")
    a("s_and_b32 s28, s2, 7")
    a("s_lshr_b32 s29, s2, 3")
    a("s_lshr_b32 s30, s29, 3")
    a("s_lshl_b32 s28, s28, 2")
    a("s_add_u32 s28, s28, s30")
    a("s_and_b32 s29, s29, 7")
    a("v_lshrrev_b32 v1, 6, v0")
    a("v_and_b32 v2, 63, v0")
    a("v_readfirstlane_b32 s30, v1")
    QH = [4, 16]; QL = [8, 20]; QX = [12, 24]
    KA = [28, 36]; KX = [32, 40]; V0 = 44
    S = [52, 68]; PP = [84, 92]; O = [100, 116]; T = 132
    NEG = [140, 141]
    vKl, vXl, vVl, vKc, vXc, vVc, vKn, vXn, vDma = range(142, 151)
    a("v_lshrrev_b32 v3, 5, v2")
    a(f"v_and_b32 v{T}, 31, v2")
    a(f"v_mul_u32_u24 v{T+1}, 48, v{T}")
    a(f"v_lshl_add_u32 v{vKl}, v3, 4, v{T+1}")
    a(f"v_add_u32 v{vXl}, 32, v{T+1}")
    a(f"v_bfe_u32 v{T+2}, v2, 2, 2")
    a(f"v_lshl_add_u32 v{T+2}, v3, 2, v{T+2}")
    a(f"v_mul_u32_u24 v{T+2}, 48, v{T+2}")
    a(f"v_bfe_u32 v{T+3}, v2, 4, 1")
    a(f"v_and_b32 v{T+4}, 3, v2")
    a(f"v_lshl_add_u32 v{T+3}, v{T+3}, 2, v{T+4}")
    a(f"v_min_u32 v{T+3}, 5, v{T+3}")
    a(f"v_lshl_add_u32 v{T+2}, v{T+3}, 3, v{T+2}")
    a(f"v_add_u32 v{vVl}, 12288, v{T+2}")
    a(f"v_lshlrev_b32 v{vDma}, 4, v2")
    a("s_waitcnt lgkmcnt(0)")
    srd(a, 24, 10, WS_SIZE)
    a(f"s_mul_i32 s31, s28, {HEADB}")
    a(f"s_add_u32 s32, s31, {WS_K}")
    a("s_mov_b32 s50, 0")
    a("s_cmp_eq_u32 s30, 4")
    a("s_cbranch_scc1 K2_PROD")
    a("s_lshl_b32 s34, s29, 8")
    a("s_lshl_b32 s35, s30, 6")
    a("s_add_u32 s34, s34, s35")
    a("s_mul_i32 s35, s34, 48")
    a("s_add_u32 s35, s35, s31")
    for sd in range(2):
        a(f"buffer_load_dwordx4 v[{S[sd]}:{S[sd]+3}], v{vKl}, s[24:27], s35 offen offset:{sd*1536}")
        a(f"buffer_load_dwordx2 v[{S[sd]+4}:{S[sd]+5}], v{vXl}, s[24:27], s35 offen offset:{sd*1536}")
    a("s_mov_b32 s72, 0")
    def dma(chunk_sgpr_off, ldsbase_sgpr):
        for g in range(6):
            a(f"s_add_u32 m0, s{ldsbase_sgpr}, {g*4096}")
            a(f"s_add_u32 s48, s{chunk_sgpr_off}, {(g % 3)*4096 + (g // 3)*(WS_V - WS_K)}")
            for i in range(4):
                a(f"buffer_load_dwordx4 v{vDma}, s[24:27], s48 offen offset:{i*1024} lds")
    def mm(d, x, y, c):
        cc = "0" if c is None else f"v[{c}:{c+15}]"
        a(f"v_mfma_f32_32x32x16_bf16 v[{d}:{d+15}], v[{x}:{x+3}], v[{y}:{y+3}], {cc}")
    def qk(sd, kb):
        mm(S[sd], KA[kb], QH[sd], None); mm(S[sd], KA[kb], QL[sd], S[sd]); mm(S[sd], KX[kb], QX[sd], S[sd])
    def kread(aK, aX, t, kb):
        a(f"ds_read_b128 v[{KA[kb]}:{KA[kb]+3}], v{aK} offset:{t*1536}")
        a(f"ds_read_b128 v[{KX[kb]}:{KX[kb]+3}], v{aX} offset:{t*1536}")
    def vread(addr, t):
        for aa in range(2):
            for hi in range(2):
                r = V0 + aa*4 + hi*2
                a(f"ds_read_b64_tr_b16 v[{r}:{r+1}], v{addr} offset:{t*1536 + aa*768 + hi*384}")
    def halfmax(r, tmp):
        a(f"v_mov_b32 v{tmp}, v{r}")
        a(f"v_permlane32_swap_b32 v{r}, v{tmp}")
        a(f"v_max_f32 v{r}, v{r}, v{tmp}")
    def split_neg(sd):
        a(f"v_cvt_pk_bf16_f32 v{T+2}, 0, v{NEG[sd]}")
        a(f"v_sub_f32 v{T+3}, v{NEG[sd]}, v{T+2}")
        a(f"v_cvt_pk_bf16_f32 v{T+4}, 0, v{T+3}")
        a(f"v_sub_f32 v{T+3}, v{T+3}, v{T+4}")
        a("s_mov_b64 exec, 0xffffffff")
        a(f"v_cvt_pk_bf16_f32 v{QX[sd]+2}, v{T+2}, v{T+4}")
        a(f"v_cvt_pk_bf16_f32 v{QX[sd]+3}, v{T+3}, 0")
        a("s_mov_b64 exec, -1")
    a(f"v_mov_b32 v{T}, {K2_FLAG}")
    a(f"v_mov_b32 v{T+1}, 0")
    a(f"ds_write_b32 v{T}, v{T+1}")
    a("s_waitcnt vmcnt(0)")
    cl = f32(C32*LOG2E)
    for sd in range(2):
        for i in range(6):
            src = S[sd] + i
            a(f"v_lshlrev_b32 v{T}, 16, v{src}")
            a(f"v_and_b32 v{T+1}, 0xffff0000, v{src}")
            a(f"v_mul_f32 v{T}, {cl}, v{T}")
            a(f"v_mul_f32 v{T+1}, {cl}, v{T+1}")
            hi = QH[sd] + i if i < 4 else S[sd] + 8 + (i-4)
            lo = QL[sd] + i if i < 4 else S[sd] + 10 + (i-4)
            a(f"v_cvt_pk_bf16_f32 v{hi}, v{T}, v{T+1}")
            a(f"v_lshlrev_b32 v{T+2}, 16, v{hi}")
            a(f"v_and_b32 v{T+3}, 0xffff0000, v{hi}")
            a(f"v_sub_f32 v{T}, v{T}, v{T+2}")
            a(f"v_sub_f32 v{T+1}, v{T+1}, v{T+3}")
            a(f"v_cvt_pk_bf16_f32 v{lo}, v{T}, v{T+1}")
        a(f"v_mov_b32 v{QX[sd]}, v{S[sd]+10}")
        a(f"v_mov_b32 v{QX[sd]+1}, v{S[sd]+11}")
        a(f"v_mov_b32 v{QX[sd]+2}, 0")
        a(f"v_mov_b32 v{QX[sd]+3}, 0")
        a("s_mov_b64 exec, 0xffffffff")
        a(f"v_mov_b32 v{QX[sd]}, v{S[sd]+8}")
        a(f"v_mov_b32 v{QX[sd]+1}, v{S[sd]+9}")
        a("s_mov_b64 exec, -1")
    a.label("K2_MAIN")
    a.fence(4)
    a("s_mov_b32 s40, 0")
    a(f"s_mov_b32 s41, {K2_BUF}")
    a(f"s_mov_b32 s42, {2*K2_BUF}")
    for i in range(32): a(f"v_mov_b32 v{O[0]+i}, 0")
    for i in range(8): a(f"v_mov_b32 v{PP[1]+i}, 0")
    for i in range(8): a(f"v_mov_b32 v{V0+i}, 0")
    a("s_waitcnt lgkmcnt(0)")
    st()
    a("s_barrier")
    st()
    a(f"v_mov_b32 v{vKc}, v{vKl}")
    a(f"v_mov_b32 v{vXc}, v{vXl}")
    a(f"v_mov_b32 v{vVc}, v{vVl}")
    a(f"v_add_u32 v{vKn}, {K2_BUF}, v{vKl}")
    a(f"v_add_u32 v{vXn}, {K2_BUF}, v{vXl}")
    kread(vKc, vXc, 0, 0)
    a("s_waitcnt lgkmcnt(0)")
    qk(0, 0)
    a("s_cmp_lg_u32 s50, 0")
    a("s_cbranch_scc1 K2_SKIPMAX")
    qk(1, 0)
    for sd in range(2):
        a(f"v_max3_f32 v{T}, v{S[sd]}, v{S[sd]+1}, v{S[sd]+2}")
        for i in range(3, 15, 2):
            a(f"v_max3_f32 v{T}, v{T}, v{S[sd]+i}, v{S[sd]+i+1}")
        a(f"v_max_f32 v{T}, v{T}, v{S[sd]+15}")
        halfmax(T, T+1)
        a(f"v_sub_f32 v{NEG[sd]}, {f32(float(L_TARGET))}, v{T}")
        split_neg(sd)
    for i in range(16): a(f"v_add_f32 v{S[0]+i}, v{S[0]+i}, v{NEG[0]}")
    a.label("K2_SKIPMAX")
    a.fence(16)
    a("s_mov_b32 s44, 0")
    a("s_mov_b64 vcc, 0")
    st()
    a.label("K2_LOOP")
    if slots is None: slots = [8, 40, 72, 104, 136]
    for t in range(8):
        for sd in range(2):
            Sc = S[sd]; Pc = PP[sd]; ot = sd ^ 1
            if sd == 0 and t % 4 == 0 and "nochk" not in abl:
                a(f"s_cbranch_vccnz K2_RC{t}")
                a.label(f"K2_NR{t}")
            if sd == 0 and t == 7 and "nobar" not in abl:
                a("s_barrier")
            E = []
            for i in range(8):
                E.append((f"v_exp_f32 v{Sc+2*i}, v{Sc+2*i}", 8))
                E.append((f"v_exp_f32 v{Sc+2*i+1}, v{Sc+2*i+1}", 8))
                if i > 0: E.append((f"v_cvt_pk_bf16_f32 v{Pc+i-1}, v{Sc+2*i-2}, v{Sc+2*i-1}", 4))
            E.append((f"v_cvt_pk_bf16_f32 v{Pc+7}, v{Sc+14}, v{Sc+15}", 4))
            names = ["qkA", "qkB", "qkC", "pv0", "pv1"]
            kb = (t % 2) if sd == 0 else ((t+1) % 2)
            pos = 0; k = 0; n = 0
            for ins, cst in E:
                while k < 5 and pos >= slots[k]:
                    what = names[k]; k += 1
                    if what == "qkA":
                        if sd == 1: a("s_waitcnt lgkmcnt(4)")
                        mm(S[ot], KA[kb], QH[ot], None)
                    elif what == "qkB": mm(S[ot], KA[kb], QL[ot], S[ot])
                    elif what == "qkC": mm(S[ot], KX[kb], QX[ot], S[ot])
                    elif what == "pv0":
                        if sd == 1: a("s_waitcnt lgkmcnt(0)")
                        mm(O[ot], V0, PP[ot], O[ot])
                    elif what == "pv1":
                        mm(O[ot], V0+4, PP[ot]+4, O[ot])
                        if sd == 0: vread(vVc, t)
                a(ins); pos += cst; n += 1
                if sd == 1 and t % 4 == 3 and n == 8 and "nochk" not in abl:
                    a(f"v_max_f32 v{T}, v{O[0]+12}, v{O[1]+12}")
                    a(f"v_cmp_lt_f32 vcc, {'0x7f000000' if 'norc' in abl else L_THRESH}, v{T}")
                if sd == 0 and n == 1:
                    if t + 1 < 8: kread(vKc, vXc, t+1, (t+1) % 2)
                    else: kread(vKn, vXn, 0, 0)
            assert k == 5
    a("s_mov_b32 s45, s40")
    a("s_mov_b32 s40, s41")
    a("s_mov_b32 s41, s42")
    a("s_mov_b32 s42, s45")
    a(f"v_add_u32 v{vKc}, s40, v{vKl}")
    a(f"v_add_u32 v{vXc}, s40, v{vXl}")
    a(f"v_add_u32 v{vVc}, s40, v{vVl}")
    a(f"v_add_u32 v{vKn}, s41, v{vKl}")
    a(f"v_add_u32 v{vXn}, s41, v{vXl}")
    a("s_add_u32 s44, s44, 1")
    a("s_cmp_lt_u32 s44, 8")
    a("s_cbranch_scc1 K2_LOOP")
    st()
    mm(O[1], V0, PP[1], O[1])
    mm(O[1], V0+4, PP[1]+4, O[1])
    a("s_cmp_lg_u32 s50, 0")
    a("s_cbranch_scc1 K2_EPI")
    a(f"v_mul_f32 v{T}, 0, v{O[0]}")
    for sd in range(2):
        for i in range(13):
            if sd or i: a(f"v_fma_f32 v{T}, v{O[sd]+i}, 0, v{T}")
    a(f"v_cmp_u_f32 vcc, v{T}, v{T}")
    a(f"v_mov_b32 v{T+1}, {K2_FLAG}")
    a(f"v_mov_b32 v{T+2}, 1")
    a("s_and_saveexec_b64 s[46:47], vcc")
    a("s_cbranch_execz K2_NOFLAG")
    a(f"ds_write_b32 v{T+1}, v{T+2}")
    a.label("K2_NOFLAG")
    a("s_mov_b64 exec, s[46:47]")
    a("s_waitcnt lgkmcnt(0)")
    a("s_barrier")
    a(f"ds_read_b32 v{T+2}, v{T+1}")
    a("s_waitcnt lgkmcnt(0)")
    a(f"v_readfirstlane_b32 s46, v{T+2}")
    a("s_cmp_eq_u32 s46, 0")
    if abl: a("s_branch K2_EPI")
    a("s_cbranch_scc1 K2_EPI")
    a("s_mov_b32 s50, 1")
    a("s_mov_b32 s44, 0")
    for sd in range(2):
        a(f"v_mov_b32 v{QX[sd]+2}, 0")
        a(f"v_mov_b32 v{QX[sd]+3}, 0")
        a(f"v_mov_b32 v{T+6+sd}, 0xff800000")
    a.label("K2_MAXLOOP")
    a("s_barrier")
    a("s_barrier")
    for t in range(8):
        kread(vKl, vXl, t, 0)
        a("s_waitcnt lgkmcnt(0)")
        qk(0, 0); qk(1, 0)
        for sd in range(2):
            for i in range(0, 16, 2):
                a(f"v_max3_f32 v{T+6+sd}, v{T+6+sd}, v{S[sd]+i}, v{S[sd]+i+1}")
    a("s_add_u32 s44, s44, 1")
    a("s_cmp_lt_u32 s44, 8")
    a("s_cbranch_scc1 K2_MAXLOOP")
    for sd in range(2):
        halfmax(T+6+sd, T+1)
        a(f"v_sub_f32 v{NEG[sd]}, {f32(float(L_TARGET))}, v{T+6+sd}")
        split_neg(sd)
    a("s_barrier")
    a("s_branch K2_MAIN")
    a.label("K2_EPI")
    a.fence(16)
    st()
    a("v_and_b32 v20, 31, v2")
    a("v_add_u32 v20, s34, v20")
    a("v_mul_u32_u24 v20, 1280, v20")
    a("s_mul_i32 s35, s28, 5")
    a(f"s_mov_b32 s36, {WS_O}")
    a(f"s_mov_b32 s37, {WS_O + 32*1280}")
    for c in range(3):
        a(f"v_add_u32 v21, {2*c}, v3")
        a("v_add_u32 v21, s35, v21")
        a("v_and_b32 v22, 3, v21")
        a("v_lshlrev_b32 v22, 1, v22")
        a("v_bfe_u32 v23, v21, 2, 1")
        a("v_add_u32 v22, v22, v23")
        a("v_and_b32 v21, 0xfffffff8, v21")
        a("v_add_u32 v21, v21, v22")
        a(f"v_lshl_add_u32 v{24+c}, v21, 3, v20")
    for sd in range(2):
        a(f"v_rcp_f32 v{T}, v{O[sd]+12}")
        for i in range(12): a(f"v_mul_f32 v{O[sd]+i}, v{O[sd]+i}, v{T}")
        for i in range(6): a(f"v_cvt_pk_bf16_f32 v{PP[sd]+i}, v{O[sd]+2*i}, v{O[sd]+2*i+1}")
        a(f"buffer_store_dwordx2 v[{PP[sd]}:{PP[sd]+1}], v24, s[24:27], s{36+sd} offen")
        a(f"buffer_store_dwordx2 v[{PP[sd]+2}:{PP[sd]+3}], v25, s[24:27], s{36+sd} offen")
    a("s_mov_b64 exec, 0xffffffff")
    for sd in range(2):
        a(f"buffer_store_dwordx2 v[{PP[sd]+4}:{PP[sd]+5}], v26, s[24:27], s{36+sd} offen")
    if instr:
        a("s_memtime s[68:69]")
        a("s_memrealtime s[70:71]")
        a("s_waitcnt lgkmcnt(0)")
        a("s_sub_u32 s68, s68, s64")
        a("s_sub_u32 s70, s70, s66")
        a("v_mov_b32 v20, s68")
        a("v_mov_b32 v21, s70")
        a("v_mov_b32 v22, s50")
        a("v_mov_b32 v23, s72")
        a("s_lshl_b32 s36, s2, 2")
        a("s_add_u32 s36, s36, s30")
        a("s_lshl_b32 s36, s36, 4")
        a(f"s_add_u32 s36, s36, {WS_YP + 0x80000}")
        a("v_mov_b32 v24, 0")
        a("s_mov_b64 exec, 1")
        a("buffer_store_dwordx4 v[20:23], v24, s[24:27], s36 offen")
        a("s_waitcnt vmcnt(0)")
        st()
        st.dump(1, 30, 2)
    a("s_endpgm")
    for t in (0, 4):
        a.label(f"K2_RC{t}")
        a("s_call_b64 s[60:61], K2_RECENTER")
        a(f"s_branch K2_NR{t}")
    a.label("K2_RECENTER")
    a.fence(16)
    a("s_add_u32 s72, s72, 1")
    mm(O[1], V0, PP[1], O[1])
    mm(O[1], V0+4, PP[1]+4, O[1])
    for i in range(8): a(f"v_mov_b32 v{PP[1]+i}, 0")
    for sd in range(2):
        a(f"v_frexp_exp_i32_f32 v{T}, v{O[sd]+12}")
        a(f"v_sub_u32 v{T}, {L_TARGET+1}, v{T}")
        for i in range(13): a(f"v_ldexp_f32 v{O[sd]+i}, v{O[sd]+i}, v{T}")
        a(f"v_cvt_f32_i32 v{T}, v{T}")
        a(f"v_add_f32 v{NEG[sd]}, v{NEG[sd]}, v{T}")
        if sd == 0:
            for i in range(16): a(f"v_add_f32 v{S[0]+i}, v{S[0]+i}, v{T}")
        split_neg(sd)
    a("s_nop 3")
    a("s_setpc_b64 s[60:61]")
    a.label("K2_PROD")
    a.fence(4)
    a("s_mov_b32 s40, 0")
    a(f"s_mov_b32 s41, {K2_BUF}")
    a(f"s_mov_b32 s42, {2*K2_BUF}")
    a("s_mov_b32 s43, s32")
    dma(43, 40)
    a("s_add_u32 s43, s43, 12288")
    dma(43, 41)
    a("s_add_u32 s43, s43, 12288")
    a("s_waitcnt vmcnt(24)")
    a("s_barrier")
    a("s_mov_b32 s44, 0")
    a.label("K2_PLOOP")
    a("s_waitcnt vmcnt(0)")
    a("s_barrier")
    a("s_cmp_ge_u32 s44, 6")
    a("s_cbranch_scc1 K2_PNODMA")
    dma(43, 42)
    a("s_add_u32 s43, s43, 12288")
    a.label("K2_PNODMA")
    a("s_mov_b32 s45, s40")
    a("s_mov_b32 s40, s41")
    a("s_mov_b32 s41, s42")
    a("s_mov_b32 s42, s45")
    a("s_add_u32 s44, s44, 1")
    a("s_cmp_lt_u32 s44, 8")
    a("s_cbranch_scc1 K2_PLOOP")
    a("s_cmp_lg_u32 s50, 0")
    a("s_cbranch_scc1 K2_PEND")
    a("s_barrier")
    a(f"v_mov_b32 v{T+1}, {K2_FLAG}")
    a(f"ds_read_b32 v{T+2}, v{T+1}")
    a("s_waitcnt lgkmcnt(0)")
    a(f"v_readfirstlane_b32 s46, v{T+2}")
    a("s_cmp_eq_u32 s46, 0")
    if abl: a("s_branch K2_PEND")
    a("s_cbranch_scc1 K2_PEND")
    a("s_mov_b32 s50, 1")
    a("s_mov_b32 s43, s32")
    a("s_mov_b32 s40, 0")
    a("s_mov_b32 s44, 0")
    a.label("K2_PMAX")
    a("s_barrier")
    dma(43, 40)
    a("s_add_u32 s43, s43, 12288")
    a("s_waitcnt vmcnt(0)")
    a("s_barrier")
    a("s_add_u32 s44, s44, 1")
    a("s_cmp_lt_u32 s44, 8")
    a("s_cbranch_scc1 K2_PMAX")
    a("s_barrier")
    a("s_branch K2_PROD")
    a.label("K2_PEND")
    a("s_endpgm")
    a.label("K2_MOE")
    gen_moe(a)
    return a.text(), K2_VGPR

def gen_moe(a):
    XS = 0
    PART = 5120
    HS = PART + 16384
    TOP = HS + 256
    a("s_sub_u32 s28, s2, 256")
    a(f"s_cmp_ge_u32 s28, {NM}")
    a("s_cbranch_scc1 K2_MOE_END")
    a("v_lshrrev_b32 v1, 6, v0")
    a("v_readfirstlane_b32 s30, v1")
    a("s_cmp_ge_u32 s30, 4")
    a("s_cbranch_scc1 K2_MOE_END")
    a("s_load_dwordx4 s[4:7], s[0:1], 40")
    a("s_load_dwordx2 s[8:9], s[0:1], 56")
    a("s_load_dwordx2 s[10:11], s[0:1], 80")
    a("v_lshrrev_b32 v1, 6, v0")
    a("v_and_b32 v2, 63, v0")
    a("v_and_b32 v4, 7, v2")
    a("v_lshrrev_b32 v5, 3, v0")
    a("v_mul_u32_u24 v6, 3456, v5")
    a("v_lshl_add_u32 v6, v4, 3, v6")
    a("s_lshl_b32 s29, s28, 6")
    a("v_add_u32 v6, s29, v6")
    a("v_lshlrev_b32 v7, 5, v0")
    a("v_lshlrev_b32 v3, 3, v0")
    a("s_waitcnt lgkmcnt(0)")
    srd(a, 12, 4, 640*3456)
    srd(a, 16, 6, 640*3456)
    srd(a, 20, 8, 1728*1280)
    srd(a, 24, 10, WS_SIZE)
    a(f"s_mov_b32 s30, {WS_R}")
    a("buffer_load_dwordx4 v[16:19], v7, s[24:27], s30 offen")
    a("buffer_load_dwordx4 v[20:23], v7, s[24:27], s30 offen offset:16")
    G = 32; U = 72; D = 112
    for i in range(20):
        a(f"s_mov_b32 s30, {i*110592}")
        a(f"buffer_load_dwordx2 v[{G+2*i}:{G+2*i+1}], v6, s[12:15], s30 offen")
        a(f"buffer_load_dwordx2 v[{U+2*i}:{U+2*i+1}], v6, s[16:19], s30 offen")
    a("s_waitcnt vmcnt(40)")
    a("v_sub_u32 v9, 2047, v3")
    for i in range(8):
        a(f"v_ashrrev_i32 v10, 31, v{16+i}")
        a("v_or_b32 v10, 0x80000000, v10")
        a(f"v_xor_b32 v{16+i}, v{16+i}, v10")
        a(f"v_and_b32 v{16+i}, 0xffff0000, v{16+i}")
        a(f"v_subrev_u32 v10, {i}, v9")
        a(f"v_or_b32 v{16+i}, v{16+i}, v10")
    def combine(n1, n2):
        a(f"v_min_u32 v10, v12, v{n1}")
        a(f"v_max_u32 v12, v12, v{n1}")
        a(f"v_max3_u32 v13, v10, v13, v{n2}")
    a("v_max_u32 v12, v16, v17"); a("v_min_u32 v13, v16, v17")
    for p in (18, 20, 22):
        a(f"v_max_u32 v14, v{p}, v{p+1}"); a(f"v_min_u32 v15, v{p}, v{p+1}")
        combine(14, 15)
    for stp in (1, 2, 4, 8, 16, 32):
        a(f"v_xor_b32 v11, {stp}, v2")
        a("v_lshlrev_b32 v11, 2, v11")
        a("ds_bpermute_b32 v14, v11, v12")
        a("ds_bpermute_b32 v15, v11, v13")
        a("s_waitcnt lgkmcnt(0)")
        combine(14, 15)
    a(f"v_lshlrev_b32 v11, 3, v1")
    a(f"ds_write_b64 v11, v[12:13] offset:{TOP}")
    a("s_waitcnt lgkmcnt(0)")
    a("s_barrier")
    a("v_mov_b32 v11, 0")
    a(f"ds_read_b128 v[16:19], v11 offset:{TOP}")
    a(f"ds_read_b128 v[20:23], v11 offset:{TOP+16}")
    a("s_waitcnt lgkmcnt(0)")
    a("v_mov_b32 v12, v16"); a("v_mov_b32 v13, v17")
    for b in (18, 20, 22): combine(b, b+1)
    a("v_and_b32 v12, 0xffff, v12"); a("v_and_b32 v13, 0xffff, v13")
    a("v_sub_u32 v12, 2047, v12"); a("v_sub_u32 v13, 2047, v13")
    a("v_readfirstlane_b32 s32, v12")
    a("v_readfirstlane_b32 s33, v13")
    a("s_mul_i32 s34, s32, 1280"); a(f"s_add_u32 s34, s34, {WS_XN}")
    a("s_mul_i32 s35, s33, 1280"); a(f"s_add_u32 s35, s35, {WS_XN}")
    a("buffer_load_dwordx2 v[16:17], v3, s[24:27], s34 offen")
    a("buffer_load_dwordx2 v[18:19], v3, s[24:27], s35 offen")
    a("s_lshl_b32 s36, s32, 2"); a(f"s_add_u32 s36, s36, {WS_R}")
    a("s_lshl_b32 s37, s33, 2"); a(f"s_add_u32 s37, s37, {WS_R}")
    a("buffer_load_dword v30, v11, s[24:27], s36 offen")
    a("buffer_load_dword v31, v11, s[24:27], s37 offen")
    a("s_mul_i32 s31, s28, 40960")
    for f in range(32):
        if f % 3 == 0:
            a(f"s_add_u32 s30, s31, {f*1280}")
        a(f"buffer_load_dwordx2 v[{D+2*f}:{D+2*f+1}], v3, s[20:23], s30 offen offset:{(f%3)*1280}")
    a("s_waitcnt vmcnt(34)")
    a("v_lshlrev_b32 v20, 16, v16"); a("v_lshlrev_b32 v21, 16, v18")
    a("v_and_b32 v22, 0xffff0000, v16"); a("v_and_b32 v23, 0xffff0000, v18")
    a("v_lshlrev_b32 v24, 16, v17"); a("v_lshlrev_b32 v25, 16, v19")
    a("v_and_b32 v26, 0xffff0000, v17"); a("v_and_b32 v27, 0xffff0000, v19")
    a("v_cmp_gt_u32 vcc, 160, v0")
    a("s_and_saveexec_b64 s[38:39], vcc")
    a(f"ds_write_b128 v7, v[20:23] offset:{XS}")
    a(f"ds_write_b128 v7, v[24:27] offset:{XS+16}")
    a("s_mov_b64 exec, s[38:39]")
    a("s_waitcnt lgkmcnt(0)")
    a("s_barrier")
    A0 = 12
    for jx in range(16): a(f"v_mov_b32 v{A0+jx}, 0")
    a("v_lshlrev_b32 v11, 3, v5")
    for i in range(20):
        x1 = 28; x2 = 29
        a(f"ds_read_b64 v[28:29], v11 offset:{XS + i*256}")
        a("s_waitcnt lgkmcnt(0)")
        for mat, R in ((0, G), (1, U)):
            for d in range(2):
                a(f"v_lshlrev_b32 v8, 16, v{R+2*i+d}")
                a(f"v_and_b32 v9, 0xffff0000, v{R+2*i+d}")
                a(f"v_fmac_f32 v{A0+mat*8+2*d}, v8, v{x1}")
                a(f"v_fmac_f32 v{A0+mat*8+2*d+1}, v9, v{x1}")
                a(f"v_fmac_f32 v{A0+mat*8+4+2*d}, v8, v{x2}")
                a(f"v_fmac_f32 v{A0+mat*8+4+2*d+1}, v9, v{x2}")
    a("v_lshlrev_b32 v11, 6, v0")
    for q in range(4):
        a(f"ds_write_b128 v11, v[{A0+4*q}:{A0+4*q+3}] offset:{PART+16*q}")
    a("s_waitcnt lgkmcnt(0)")
    a("s_barrier")
    a("v_readfirstlane_b32 s30, v1")
    a("s_cmp_lg_u32 s30, 0")
    a("s_cbranch_scc1 K2_MOE_W")
    a("v_lshrrev_b32 v11, 3, v2")
    a("v_lshlrev_b32 v11, 6, v11")
    a("v_lshl_add_u32 v11, v4, 2, v11")
    a("v_mov_b32 v20, 0"); a("v_mov_b32 v21, 0")
    for g in range(0, 32, 8):
        for q in range(8):
            a(f"ds_read_b32 v{G+q}, v11 offset:{PART + (g+q)*512}")
            a(f"ds_read_b32 v{G+8+q}, v11 offset:{PART + (g+q)*512 + 32}")
        a("s_waitcnt lgkmcnt(0)")
        for q in range(8):
            a(f"v_add_f32 v20, v20, v{G+q}")
            a(f"v_add_f32 v21, v21, v{G+8+q}")
    a("v_cvt_pk_bf16_f32 v20, 0, v20")
    a("v_cvt_pk_bf16_f32 v21, 0, v21")
    a(f"v_mul_f32 v22, {f32(-LOG2E)}, v20")
    a("v_exp_f32 v22, v22")
    a("v_add_f32 v22, 1.0, v22")
    a("v_rcp_f32 v22, v22")
    a("v_mul_f32 v22, v20, v22")
    a("v_cvt_pk_bf16_f32 v22, 0, v22")
    a("v_mul_f32 v22, v22, v21")
    a("v_cvt_pk_bf16_f32 v22, 0, v22")
    a("v_lshrrev_b32 v11, 3, v2")
    a("v_lshlrev_b32 v11, 5, v11")
    a("v_and_b32 v10, 3, v2")
    a("v_lshl_add_u32 v11, v10, 3, v11")
    a("v_bfe_u32 v10, v2, 2, 1")
    a("v_lshl_add_u32 v11, v10, 2, v11")
    a(f"ds_write_b32 v11, v22 offset:{HS}")
    a("s_cmp_lg_u32 s28, 0")
    a("s_cbranch_scc1 K2_MOE_W")
    a("s_waitcnt vmcnt(32)")
    for r in (30, 31):
        a(f"v_mul_f32 v{r}, {f32(-LOG2E)}, v{r}")
        a(f"v_exp_f32 v{r}, v{r}")
        a(f"v_add_f32 v{r}, 1.0, v{r}")
        a(f"v_rcp_f32 v{r}, v{r}")
        a(f"v_cvt_pk_bf16_f32 v{r}, 0, v{r}")
    a("v_mov_b32 v28, s32"); a("v_mov_b32 v29, s33")
    a("v_mov_b32 v11, 0")
    a(f"s_mov_b32 s30, {WS_IDX}")
    a("s_mov_b64 exec, 1")
    a("buffer_store_dwordx4 v[28:31], v11, s[24:27], s30 offen")
    a("s_mov_b64 exec, -1")
    a.label("K2_MOE_W")
    a.fence(4)
    a("s_waitcnt vmcnt(0) lgkmcnt(0)")
    a("s_barrier")
    for jx in range(8): a(f"v_mov_b32 v{A0+jx}, 0")
    a("v_mov_b32 v11, 0")
    for f in range(0, 32, 2):
        a(f"ds_read_b128 v[20:23], v11 offset:{HS + f*8}")
        a("s_waitcnt lgkmcnt(0)")
        for ff in range(2):
            for d in range(2):
                a(f"v_lshlrev_b32 v8, 16, v{D+2*(f+ff)+d}")
                a(f"v_and_b32 v9, 0xffff0000, v{D+2*(f+ff)+d}")
                a(f"v_fmac_f32 v{A0+2*d}, v8, v{20+2*ff}")
                a(f"v_fmac_f32 v{A0+2*d+1}, v9, v{20+2*ff}")
                a(f"v_fmac_f32 v{A0+4+2*d}, v8, v{21+2*ff}")
                a(f"v_fmac_f32 v{A0+4+2*d+1}, v9, v{21+2*ff}")
    a("v_lshlrev_b32 v11, 4, v0")
    a("v_cmp_gt_u32 vcc, 160, v0")
    a("s_and_saveexec_b64 s[38:39], vcc")
    a("s_cbranch_execz K2_MOE_END")
    a(f"s_mov_b32 s30, {WS_YP}")
    for tok in range(2):
        for c in range(4):
            a(f"buffer_atomic_add_f32 v{A0+tok*4+c}, v11, s[24:27], s30 offen offset:{tok*2560 + c*4}")
    a.label("K2_MOE_END")
    a("s_endpgm")

if __name__ == "__main__":
    import sys
    mode = sys.argv[1] if len(sys.argv) > 1 else "mimic6"
    b1, v1 = gen_k1()
    b2, v2 = gen_k2(mode, instr=len(sys.argv) > 2)
    ks = [("k1_kernel", b1, v1, 256, 256, K1_LDS), ("k2_kernel", b2, v2, 256, 512, K2_LDS)]
    build(ks, "k12.s")
```

```python
from asmlib import Asm
from gen import *

K3_LDS = 102400

def gen_k3(eps=0.0, instr=False):
    a = Asm()
    st = Stamps(a, instr)
    st()
    a("s_cmp_ge_u32 s2, 256")
    a("s_cbranch_scc1 K3_END")
    a("s_load_dwordx2 s[4:5], s[0:1], 0")
    a("s_load_dwordx2 s[6:7], s[0:1], 16")
    a("s_load_dwordx2 s[8:9], s[0:1], 64")
    a("s_load_dwordx2 s[10:11], s[0:1], 80")
    a("s_and_b32 s28, s2, 7")
    a("s_lshr_b32 s29, s2, 3")
    a("v_lshrrev_b32 v1, 6, v0")
    a("v_and_b32 v2, 63, v0")
    a("v_readfirstlane_b32 s30, v1")
    a("v_and_b32 v3, 15, v2")
    a("v_lshrrev_b32 v4, 4, v2")
    a("s_mul_i32 s31, s28, 160")
    for ii in range(5):
        a(f"v_add_u32 v5, {ii*64}, v2")
        a("v_mul_u32_u24 v6, 52429, v5")
        a("v_lshrrev_b32 v6, 19, v6")
        a("v_mul_u32_u24 v7, 10, v6")
        a("v_sub_u32 v7, v5, v7")
        a("v_mul_u32_u24 v6, 1280, v6")
        a("v_lshl_add_u32 v6, v7, 4, v6")
        a(f"v_add_u32 v{10+ii}, s31, v6")
    a("s_lshl_b32 s32, s29, 6")
    a("s_lshl_b32 s33, s30, 4")
    a("s_add_u32 s32, s32, s33")
    a("v_add_u32 v5, s32, v3")
    a("v_mul_u32_u24 v5, 1280, v5")
    a("v_lshl_add_u32 v15, v4, 4, v5")
    a("v_lshl_add_u32 v16, v4, 3, v5")
    a("v_add_u32 v16, s31, v16")
    a("v_bfe_u32 v5, v2, 2, 2")
    a("v_lshl_add_u32 v5, v4, 2, v5")
    a("v_mul_u32_u24 v5, 160, v5")
    a("v_and_b32 v6, 3, v2")
    a("v_lshl_add_u32 v17, v6, 3, v5")
    a("v_add_u32 v18, 51200, v17")
    a("s_waitcnt lgkmcnt(0)")
    st()
    srd(a, 12, 4, 2621440)
    srd(a, 16, 6, 819200)
    srd(a, 20, 8, 2621440)
    srd(a, 24, 10, WS_SIZE)
    a(f"s_mov_b32 s38, {WS_IDX}")
    a("s_load_dwordx4 s[44:47], s[10:11], s38")
    OB = 40
    XR = 120
    ACC = 20
    AF = 140
    a(f"s_mov_b32 s36, {WS_O}")
    a(f"s_mov_b32 s37, {WS_XN}")
    a("s_mul_i32 s34, s30, 40960")
    a("s_mul_i32 s35, s30, 5120")
    for i in range(5):
        for ii in range(5):
            a(f"s_add_u32 m0, s35, {i*4*5120 + ii*1024}")
            if ii == 0: a(f"s_add_u32 s38, s34, {i*4*40960}")
            a(f"buffer_load_dwordx4 v{10+ii}, s[16:19], s38 offen lds")
        for q in range(4):
            ks = 4*i + q
            a(f"buffer_load_dwordx4 v[{OB+4*ks}:{OB+4*ks+3}], v15, s[24:27], s36 offen offset:{ks*64}")
    for nt in range(5):
        a(f"buffer_load_dwordx2 v[{XR+2*nt}:{XR+2*nt+1}], v16, s[12:15], 0 offen offset:{nt*32}")
        a(f"buffer_load_dwordx2 v[{XR+10+2*nt}:{XR+11+2*nt}], v16, s[24:27], s37 offen offset:{nt*32}")
    st()
    def areads(ks):
        st = AF + (ks % 2)*20
        ad = 17 if ks < 10 else 18
        for nt in range(5):
            for hi in range(2):
                r = st + nt*4 + hi*2
                a(f"ds_read_b64_tr_b16 v[{r}:{r+1}], v{ad} offset:{(ks%10)*5120 + nt*32 + hi*2560}")
    def mf(ks):
        st = AF + (ks % 2)*20
        for nt in range(5):
            d = ACC + 4*nt
            cc = "0" if ks == 0 else f"v[{d}:{d+3}]"
            a(f"v_mfma_f32_16x16x32_bf16 v[{d}:{d+3}], v[{st+nt*4}:{st+nt*4+3}], v[{OB+4*ks}:{OB+4*ks+3}], {cc}")
    for i in range(5):
        a(f"s_waitcnt vmcnt({(4-i)*9 + 10})" + (" lgkmcnt(0)" if i == 0 else ""))
        if i == 0: st()
        a("s_barrier")
        if i in (0, 4): st()
        for q in range(4):
            ks = 4*i + q
            areads(ks)
            if ks > 0:
                a("s_waitcnt lgkmcnt(10)")
                mf(ks - 1)
    a("s_waitcnt lgkmcnt(0)")
    mf(19)
    a("s_waitcnt vmcnt(0)")
    st()
    a("s_lshr_b32 s33, s32, 4")
    for tok in range(2):
        a(f"s_lshr_b32 s38, s{44+tok}, 4")
        a("s_cmp_lg_u32 s38, s33")
        a(f"s_cbranch_scc1 K3_NOMOE{tok}")
        a(f"s_and_b32 s38, s{44+tok}, 15")
        a("v_cmp_eq_u32 vcc, s38, v3")
        a("s_and_saveexec_b64 s[40:41], vcc")
        a("v_lshlrev_b32 v5, 4, v4")
        a("s_mul_i32 s39, s28, 320")
        a(f"s_add_u32 s39, s39, {WS_YP + tok*2560}")
        for nt in range(5):
            a(f"buffer_load_dwordx4 v[{AF+4*nt}:{AF+4*nt+3}], v5, s[24:27], s39 offen offset:{nt*64}")
        a("s_waitcnt vmcnt(0)")
        for nt in range(5):
            for e in range(4):
                y = AF + 4*nt + e
                a(f"v_cvt_pk_bf16_f32 v{y}, 0, v{y}")
                a(f"v_mul_f32 v{y}, s{46+tok}, v{y}")
                a(f"v_cvt_pk_bf16_f32 v{y}, 0, v{y}")
            for d in range(2):
                xn = XR + 10 + 2*nt + d
                a(f"v_lshlrev_b32 v6, 16, v{xn}")
                a(f"v_and_b32 v7, 0xffff0000, v{xn}")
                a(f"v_add_f32 v6, v6, v{AF+4*nt+2*d}")
                a(f"v_add_f32 v7, v7, v{AF+4*nt+2*d+1}")
                a(f"v_cvt_pk_bf16_f32 v{xn}, v6, v7")
        a("s_mov_b64 exec, s[40:41]")
        a.label(f"K3_NOMOE{tok}")
        a.fence(4)
    for nt in range(5):
        for d in range(2):
            A0 = ACC + 4*nt + 2*d
            x = XR + 2*nt + d; xn = XR + 10 + 2*nt + d
            a(f"v_cvt_pk_bf16_f32 v{A0}, 0, v{A0}")
            a(f"v_cvt_pk_bf16_f32 v{A0+1}, 0, v{A0+1}")
            a(f"v_lshlrev_b32 v6, 16, v{x}")
            a(f"v_and_b32 v7, 0xffff0000, v{x}")
            a(f"v_add_f32 v{A0}, v{A0}, v6")
            a(f"v_add_f32 v{A0+1}, v{A0+1}, v7")
            a(f"v_cvt_pk_bf16_f32 v{A0}, 0, v{A0}")
            a(f"v_cvt_pk_bf16_f32 v{A0+1}, 0, v{A0+1}")
            a(f"v_lshlrev_b32 v6, 16, v{xn}")
            a(f"v_and_b32 v7, 0xffff0000, v{xn}")
            a(f"v_add_f32 v{A0}, v{A0}, v6")
            a(f"v_add_f32 v{A0+1}, v{A0+1}, v7")
            if eps:
                a(f"v_mul_f32 v{A0}, {f32(1+eps)}, v{A0}")
                a(f"v_mul_f32 v{A0+1}, {f32(1+eps)}, v{A0+1}")
            a(f"v_cvt_pk_bf16_f32 v{x}, v{A0}, v{A0+1}")
        a(f"buffer_store_dwordx2 v[{XR+2*nt}:{XR+2*nt+1}], v16, s[20:23], 0 offen offset:{nt*32}")
    if instr:
        a("s_waitcnt vmcnt(0)")
        st()
        st.dump(2, 30, 2)
    a.label("K3_END")
    a("s_endpgm")
    return a.text(), 180
```

```python
import sys
from gen import *
from k2 import *
from k3 import *
from k1 import *
mode = sys.argv[1] if len(sys.argv) > 1 else "mimic6"
out = sys.argv[2] if len(sys.argv) > 2 else "parallel_sum__softmax_full_mha__moe_arch_mod__prompt.s"
instr = len(sys.argv) > 3
b1, v1 = gen_k1b(instr)
b2, v2 = gen_k2(mode, instr=instr)
b3, v3 = gen_k3(instr=instr)
ks = [("k1_kernel", b1, v1, 256, 512, K1B_LDS), ("k2_kernel", b2, v2, 256 + NM, 320, K2_LDS), ("k3_kernel", b3, v3, 256, 256, K3_LDS)]
build(ks, out)
```

```python
import sys, struct
sys.path.insert(0, "gen")
from asmlib import Asm

def f32(x): return "0x%08x" % struct.unpack("<I", struct.pack("<f", x))[0]

WS_Q = 0; WS_K = 0x300000; WS_V = 0x600000; WS_XN = 0x900000; WS_O = 0xB80000
WS_R = 0xE00000; WS_IDX = 0xE02000; WS_YP = 0xE10000; WS_SIZE = 0x1000000
HEADB = 98304
NM = 54

def srd(a, d, base, size):
    a(f"s_mov_b32 s{d}, s{base}")
    a(f"s_and_b32 s{d+1}, s{base+1}, 0xffff")
    a(f"s_mov_b32 s{d+2}, {size}")
    a(f"s_mov_b32 s{d+3}, 0x00020000")

def dpp_rowsum(a, regs):
    for sh in (8, 4, 2, 1):
        for r in regs:
            a(f"v_add_f32_dpp v{r}, v{r}, v{r} row_ror:{sh} row_mask:0xf bank_mask:0xf")

import os
RT_STAMPS = bool(os.environ.get('RT'))
WS_DBG = 0xE80000
class Stamps:
    def __init__(self, a, on, base=64):
        self.a, self.on, self.n, self.base = a, on, 0, base
    def __call__(self):
        if self.on:
            r = self.base + 2*self.n
            self.a(f"s_memrealtime s[{r}:{r+1}]" if RT_STAMPS else f"s_memtime s[{r}:{r+1}]")
            self.n += 1
    def dump(self, region, wave_sgpr, nwaves_log2, srdr=24):
        if not self.on: return
        a = self.a
        a("s_waitcnt lgkmcnt(0)")
        a("s_mov_b64 exec, 1")
        for i in range(8):
            a(f"v_mov_b32 v{4+i}, " + (f"s{self.base+2*i}" if i < self.n else "0"))
        a(f"s_lshl_b32 s62, s2, {nwaves_log2}")
        a(f"s_add_u32 s62, s62, s{wave_sgpr}")
        a("s_lshl_b32 s62, s62, 5")
        a(f"s_add_u32 s62, s62, {WS_DBG + region*0x20000}")
        a("v_mov_b32 v3, 0")
        a(f"buffer_store_dwordx4 v[4:7], v3, s[{srdr}:{srdr+3}], s62 offen")
        a(f"buffer_store_dwordx4 v[8:11], v3, s[{srdr}:{srdr+3}], s62 offen offset:16")

K1_XN_STRIDE = 1296
K1_WBUF = 64 * K1_XN_STRIDE
K1_LDS = K1_WBUF + 4 * 16384

def gen_k1(instr=False, rot=0):
    a = Asm()
    st = Stamps(a, instr)
    st()
    a("s_cmp_ge_u32 s2, 256")
    a("s_cbranch_scc1 K1_END")
    a("s_load_dwordx4 s[4:7], s[0:1], 0")
    a("s_load_dwordx2 s[8:9], s[0:1], 32")
    a("s_load_dwordx2 s[10:11], s[0:1], 80")
    a("s_and_b32 s28, s2, 7")
    a("s_lshr_b32 s29, s2, 3")
    a("v_lshrrev_b32 v1, 6, v0")
    a("v_and_b32 v2, 63, v0")
    a("v_readfirstlane_b32 s30, v1")
    a("v_and_b32 v3, 15, v2")
    a("v_lshrrev_b32 v9, 4, v2")
    a("v_lshlrev_b32 v4, 4, v1")
    a("v_add_u32 v4, v4, v9")
    a("v_mul_u32_u24 v6, %d, v4" % K1_XN_STRIDE)
    a("v_mul_u32_u24 v4, 1280, v4")
    a("v_lshlrev_b32 v10, 4, v3")
    a("v_add_u32 v4, v4, v10")
    a("v_add_u32 v6, v6, v10")
    a("v_lshrrev_b32 v11, 5, v2")
    a("v_lshl_add_u32 v11, v1, 1, v11")
    a("v_and_b32 v12, 3, v11")
    a("v_lshlrev_b32 v12, 2, v12")
    a("v_and_b32 v13, 31, v2")
    a("v_sub_u32 v13, v13, v12")
    a("v_and_b32 v13, 31, v13")
    a("v_lshlrev_b32 v13, 4, v13")
    a("v_mul_u32_u24 v5, 3840, v11")
    a("v_add_u32 v5, v5, v13")
    a("s_mul_i32 s31, s28, 480")
    a("v_add_u32 v5, s31, v5")
    a("v_mov_b32 v7, 0x3f803f80")
    a("v_mov_b32 v8, 0xffff0000")
    a("s_waitcnt lgkmcnt(0)")
    st()
    srd(a, 12, 4, 2621440)
    srd(a, 16, 6, 2457600)
    srd(a, 20, 8, 1280)
    srd(a, 24, 10, WS_SIZE)
    X = 40; WR = 120
    for i in range(5):
        a(f"buffer_load_dwordx4 v[{WR+4*i}:{WR+4*i+3}], v10, s[20:23], 0 offen offset:{i*256}")
    a("s_mul_i32 s32, s29, 81920")
    for p in range(4):
        if p: a(f"s_add_u32 s{32+p}, s32, {p*5120}")
    for p in range(4):
        for i in range(5):
            r = X + 20*p + 4*i
            a(f"buffer_load_dwordx4 v[{r}:{r+3}], v4, s[12:15], s{32+p} offen offset:{i*256}")
    a("s_lshl_b32 s31, s30, 10")
    a(f"s_add_u32 s31, s31, {K1_WBUF}")
    if rot:
        a(f"s_mul_i32 s41, s29, {rot}")
        a("s_mul_i32 s42, s41, 52429")
        a("s_lshr_b32 s42, s42, 20")
        a("s_mul_i32 s42, s42, 20")
        a("s_sub_u32 s41, s41, s42")
        a("s_mov_b32 s43, s41")
        a("s_mov_b32 s44, s41")
    def dma(c):
        buf = c % 4
        if rot:
            a(f"s_mul_i32 s42, s43, {32*3840}")
            a("s_add_u32 s43, s43, 1")
            a("s_cmp_eq_u32 s43, 20")
            a("s_cselect_b32 s43, 0, s43")
        for t in range(4):
            a(f"s_add_u32 m0, s31, {buf*16384 + t*4096}")
            if rot: a(f"s_add_u32 s40, s42, {8*t*3840}")
            else: a(f"s_mov_b32 s40, {(32*c + 8*t)*3840}")
            a("buffer_load_dwordx4 v5, s[16:19], s40 offen lds")
    for c in range(3): dma(c)
    for p in range(4):
        a(f"s_waitcnt vmcnt({12 + 15 - 5*p})")
        if p == 0: st()
        xr = [X + 20*p + k for k in range(20)]
        for k, r in enumerate(xr):
            acc = 10 + (k & 1)
            c = "0" if k < 2 else f"v{acc}"
            a(f"v_dot2_f32_bf16 v{acc}, v{r}, v7, {c}")
            acc2 = 12 + (k & 1)
            c = "0" if k < 2 else f"v{acc2}"
            a(f"v_dot2_f32_bf16 v{acc2}, v{r}, v{r}, {c}")
        a("v_add_f32 v10, v10, v11")
        a("v_add_f32 v12, v12, v13")
        dpp_rowsum(a, [10, 12])
        a(f"v_mul_f32 v10, {f32(1/640)}, v10")
        a(f"v_mul_f32 v12, {f32(1/640)}, v12")
        a("v_fma_f32 v12, -v10, v10, v12")
        a("v_max_f32 v12, 0, v12")
        a("v_cvt_pk_bf16_f32 v14, 0, v10")
        a("v_cvt_pk_bf16_f32 v12, 0, v12")
        a("v_add_f32 v12, 0x3727c5ac, v12")
        a("v_cvt_pk_bf16_f32 v12, 0, v12")
        a("v_sqrt_f32 v12, v12")
        a("v_cvt_pk_bf16_f32 v12, 0, v12")
        a("v_rcp_f32 v16, v12")
        a("v_sub_f32 v14, 0, v14")
        a("v_mov_b32 v15, v14")
        a("v_mov_b32 v17, v16")
        for k, r in enumerate(xr):
            t = 20 + 2*(k & 3)
            a(f"v_lshlrev_b32 v{t}, 16, v{r}")
            a(f"v_and_b32 v{t+1}, v8, v{r}")
            a(f"v_pk_add_f32 v[{t}:{t+1}], v[{t}:{t+1}], v[14:15]")
            a(f"v_cvt_pk_bf16_f32 v{r}, v{t}, v{t+1}")
            a(f"v_lshlrev_b32 v{t}, 16, v{r}")
            a(f"v_and_b32 v{t+1}, v8, v{r}")
            a(f"v_pk_mul_f32 v[{t}:{t+1}], v[{t}:{t+1}], v[16:17]")
            a(f"v_cvt_pk_bf16_f32 v{r}, v{t}, v{t+1}")
        for i in range(5):
            r = X + 20*p + 4*i
            a(f"ds_write_b128 v6, v[{r}:{r+3}] offset:{p*4*K1_XN_STRIDE + i*256}")
    st()
    a("s_lshr_b32 s36, s28, 1")
    a("s_cmp_lg_u32 s36, s30")
    a("s_cbranch_scc1 K1_NOSTORE")
    a("s_and_b32 s36, s28, 1")
    a("s_cmp_lg_u32 s36, 0")
    a("s_cbranch_scc1 K1_ST1")
    for half in range(2):
        if half == 1:
            a("s_branch K1_NOSTORE")
            a.label("K1_ST1")
            a.fence(4)
        for p in (2*half, 2*half+1):
            a(f"s_add_u32 s36, s{32+p}, {WS_XN}")
            for i in range(5):
                r = X + 20*p + 4*i
                a(f"buffer_store_dwordx4 v[{r}:{r+3}], v4, s[24:27], s36 offen offset:{i*256}")
            for k in range(20):
                acc = 10 + (k & 1)
                c = "0" if k < 2 else f"v{acc}"
                a(f"v_dot2_f32_bf16 v{acc}, v{X+20*p+k}, v{WR+k}, {c}")
            a("v_add_f32 v10, v10, v11")
            dpp_rowsum(a, [10])
            a("v_cvt_pk_bf16_f32 v10, 0, v10")
            a("v_lshl_add_u32 v11, v1, 4, v9")
            a(f"v_add_u32 v11, {4*p}, v11")
            a("v_lshlrev_b32 v11, 2, v11")
            a("s_lshl_b32 s36, s29, 8")
            a(f"s_add_u32 s36, s36, {WS_R}")
            a("v_cmp_eq_u32 vcc, 0, v3")
            a("s_and_saveexec_b64 s[38:39], vcc")
            a("buffer_store_dword v10, v11, s[24:27], s36 offen")
            a("s_mov_b64 exec, s[38:39]")
    a.label("K1_NOSTORE")
    a.fence(4)
    a("s_lshl_b32 s36, s28, 2")
    a("s_add_u32 s36, s36, s30")
    a(f"s_mul_i32 s36, s36, {HEADB}")
    a("s_mul_i32 s37, s29, %d" % (64*48))
    a("s_add_u32 s36, s36, s37")
    a(f"s_add_u32 s36, s36, {WS_V + 40}")
    a("v_mul_u32_u24 v10, 48, v2")
    a("v_mov_b32 v12, v7")
    a("v_mov_b32 v13, v7")
    a("buffer_store_dwordx2 v[12:13], v10, s[24:27], s36 offen")
    a(f"s_sub_u32 s36, s36, {WS_V - WS_K}")
    a("buffer_store_dwordx2 v[12:13], v10, s[24:27], s36 offen")
    a("s_cmp_lg_u32 s2, 0")
    a("s_cbranch_scc1 K1_NOZ")
    for i in range(4): a(f"v_mov_b32 v{12+i}, 0")
    a("v_lshlrev_b32 v10, 4, v0")
    a(f"s_mov_b32 s36, {WS_YP}")
    a("buffer_store_dwordx4 v[12:15], v10, s[24:27], s36 offen")
    a(f"s_mov_b32 s36, {WS_YP + 4096}")
    a("buffer_store_dwordx4 v[12:15], v10, s[24:27], s36 offen")
    a.label("K1_NOZ")
    a.fence(4)
    a("v_lshrrev_b32 v10, 5, v2")
    a("v_bfe_u32 v11, v2, 4, 1")
    a("v_bfe_u32 v12, v2, 2, 2")
    a("v_and_b32 v13, 3, v2")
    a("v_lshl_add_u32 v14, v10, 3, v12")
    a("v_lshlrev_b32 v14, 9, v14")
    a("v_and_b32 v15, 1, v13")
    a("v_lshl_add_u32 v14, v15, 3, v14")
    a(f"v_add_u32 v14, {K1_WBUF}, v14")
    a("v_lshlrev_b32 v15, 3, v1")
    a("v_lshl_add_u32 v15, v11, 1, v15")
    a("v_lshrrev_b32 v16, 1, v13")
    a("v_add_u32 v15, v15, v16")
    a("v_lshl_add_u32 v15, v12, 2, v15")
    a("v_and_b32 v16, 31, v15")
    a("v_lshl_add_u32 v30, v16, 4, v14")
    a("v_add_u32 v15, 4, v15")
    a("v_and_b32 v16, 31, v15")
    a("v_lshl_add_u32 v31, v16, 4, v14")
    a("v_and_b32 v15, 31, v2")
    a(f"v_mul_u32_u24 v32, {K1_XN_STRIDE}, v15")
    a("v_lshl_add_u32 v32, v10, 4, v32")
    SETS = [(40, 56), (72, 88)]
    ACC = 104
    def reads(c):
        A0, B0 = SETS[c % 2]
        buf = c % 4
        if rot:
            a("s_lshl_b32 s45, s44, 6")
            a("v_add_u32 v33, s45, v32")
            a("s_add_u32 s44, s44, 1")
            a("s_cmp_eq_u32 s44, 20")
            a("s_cselect_b32 s44, 0, s44")
        for ks in range(2):
            for aa in range(2):
                for hi in range(2):
                    r = A0 + (ks*2 + aa)*4 + hi*2
                    a(f"ds_read_b64_tr_b16 v[{r}:{r+1}], v{30+aa} offset:{buf*16384 + ks*8192 + hi*2048}")
            for b in range(2):
                r = B0 + (ks*2 + b)*4
                if rot: a(f"ds_read_b128 v[{r}:{r+3}], v33 offset:{b*32*K1_XN_STRIDE + ks*32}")
                else: a(f"ds_read_b128 v[{r}:{r+3}], v32 offset:{b*32*K1_XN_STRIDE + c*64 + ks*32}")
    def mfmas(c):
        A0, B0 = SETS[c % 2]
        for ks in range(2):
            for aa in range(2):
                for b in range(2):
                    d = ACC + (aa*2 + b)*16
                    ra = A0 + (ks*2 + aa)*4; rb = B0 + (ks*2 + b)*4
                    cc = "0" if (c == 0 and ks == 0) else f"v[{d}:{d+15}]"
                    a(f"v_mfma_f32_32x32x16_bf16 v[{d}:{d+15}], v[{ra}:{ra+3}], v[{rb}:{rb+3}], {cc}")
    NCH = 20
    for c in range(NCH):
        younger = min(NCH-1, c+2) - c
        a(f"s_waitcnt vmcnt({4*younger}) lgkmcnt(0)")
        a("s_barrier")
        if c in (0, 10): st()
        if c + 3 < NCH: dma(c + 3)
        reads(c)
        if c > 0: mfmas(c - 1)
    a("s_waitcnt lgkmcnt(0)")
    mfmas(NCH - 1)
    st()
    a("s_mul_i32 s36, s28, 60")
    a("s_lshl_b32 s37, s30, 4")
    a("s_add_u32 s36, s36, s37")
    a("v_add_u32 v14, s36, v10")
    a("v_and_b32 v15, 31, v2")
    a("v_mul_u32_u24 v15, 48, v15")
    a("s_mul_i32 s37, s29, %d" % (64*48))
    a(f"s_add_u32 s38, s37, {32*48}")
    a(f"s_mov_b32 s39, {HEADB}")
    for aa in range(2):
        for c in range(4):
            o = 40 + aa*4 + c
            a(f"v_add_u32 v16, {8*aa + 2*c}, v14")
            a("v_mul_u32_u24 v17, 52429, v16")
            a("v_lshrrev_b32 v17, 18, v17")
            a("v_mul_u32_u24 v18, 5, v17")
            a("v_sub_u32 v18, v16, v18")
            a("v_mul_lo_u32 v17, v17, s39")
            a("v_lshl_add_u32 v17, v18, 3, v17")
            a(f"v_add_u32 v{o}, v17, v15")
    for aa in range(2):
        for c in range(4):
            if aa == 1 and c == 2:
                a("s_cmp_eq_u32 s30, 3")
                a("s_cbranch_scc1 K1_FIN")
            for b in range(2):
                d = ACC + (aa*2 + b)*16 + 4*c
                t = 50 + 2*b
                a(f"v_cvt_pk_bf16_f32 v{t}, v{d}, v{d+1}")
                a(f"v_cvt_pk_bf16_f32 v{t+1}, v{d+2}, v{d+3}")
                a(f"buffer_store_dwordx2 v[{t}:{t+1}], v{40+aa*4+c}, s[24:27], s{37+b} offen")
    a.label("K1_FIN")
    if instr:
        a("s_waitcnt vmcnt(0)")
        st()
        st.dump(0, 30, 2)
    a.label("K1_END")
    a("s_endpgm")
    return a.text(), 168

def kernel_block(name, body):
    return f""".globl {name}
.p2align 8
.type {name},@function
{name}:
{body}"""

def desc(name, vgpr, sgpr=100):
    return f""".amdhsa_kernel {name}
  .amdhsa_next_free_vgpr {vgpr}
  .amdhsa_next_free_sgpr {sgpr}
  .amdhsa_accum_offset {(vgpr+3)//4*4}
  .amdhsa_group_segment_fixed_size 0
  .amdhsa_kernarg_size 88
  .amdhsa_user_sgpr_count 2
  .amdhsa_user_sgpr_kernarg_segment_ptr 1
  .amdhsa_system_sgpr_workgroup_id_x 1
  .amdhsa_float_denorm_mode_32 3
.end_amdhsa_kernel
"""

HEADER = open("parallel_sum__softmax_full_mha__moe_arch_mod__prompt.s.ref").read().split("; Override")[0]

def build(kernels, path):
    s = HEADER
    for (name, body, vgpr, grid, block, lds) in kernels:
        s += f"; @launch kernel={name} grid=({grid},1,1) block=({block},1,1) lds={lds}\n"
    s += '.amdgcn_target "amdgcn-amd-amdhsa--gfx950"\n.text\n'
    for (name, body, vgpr, grid, block, lds) in kernels:
        s += kernel_block(name, body)
    s += '.section .rodata,"a"\n'
    for (name, body, vgpr, grid, block, lds) in kernels:
        s += ".p2align 6\n" + desc(name, vgpr)
    open(path, "w").write(s)

if __name__ == "__main__":
    b1, v1 = gen_k1()
    ks = [("k1_kernel", b1, v1, 256, 256, K1_LDS)]
    build(ks, "k1only.s")
```

```python
from asmlib import Asm
from gen import *

NBUF = 4
WB = 81920
K1_STAT = WB + NBUF * 16384
K1_CS = K1_STAT + 4096
K1B_LDS = K1_CS + 1024
K1B_VGPR = 176

def gen_k1b(instr=False, rot=3, J=4, rotj=2, KEYS=False, QSCALE=1.0):
    a = Asm()
    st = Stamps(a, instr)
    st()
    a("s_cmp_ge_u32 s2, 256")
    a("s_cbranch_scc1 K1_END")
    a("s_load_dwordx4 s[4:7], s[0:1], 0")
    a("s_load_dwordx2 s[8:9], s[0:1], 32")
    a("s_load_dwordx2 s[10:11], s[0:1], 80")
    lj = {1: 0, 2: 1, 4: 2, 8: 3}[J]
    a("s_and_b32 s40, s2, 7")
    a("s_lshr_b32 s41, s2, 3")
    a(f"s_and_b32 s28, s40, {8//J - 1}")
    a(f"s_lshl_b32 s28, s28, {lj}")
    a(f"s_and_b32 s42, s41, {J-1}")
    a("s_add_u32 s28, s28, s42")
    a(f"s_lshr_b32 s29, s40, {3-lj}")
    a(f"s_lshl_b32 s29, s29, {5-lj}")
    a(f"s_lshr_b32 s42, s41, {lj}")
    a("s_add_u32 s29, s29, s42")
    a("v_lshrrev_b32 v1, 6, v0")
    a("v_and_b32 v2, 63, v0")
    a("v_readfirstlane_b32 s30, v1")
    a("v_mov_b32 v7, 0x3f803f80")
    a("v_mov_b32 v8, 0xffff0000")
    a(f"s_mul_i32 s41, s29, {rot}")
    a(f"s_mul_i32 s42, s28, {rotj}")
    a("s_add_u32 s41, s41, s42")
    a("s_mul_i32 s42, s41, 52429")
    a("s_lshr_b32 s42, s42, 19")
    a("s_mul_i32 s42, s42, 10")
    a("s_sub_u32 s43, s41, s42")
    a("s_cmp_ge_u32 s30, 4")
    a("s_cbranch_scc1 K1_PROD")
    a("v_lshrrev_b32 v10, 5, v2")
    a("v_bfe_u32 v11, v2, 4, 1")
    a("v_bfe_u32 v12, v2, 2, 2")
    a("v_and_b32 v13, 3, v2")
    a("v_lshl_add_u32 v14, v10, 3, v12")
    a("v_lshlrev_b32 v14, 9, v14")
    a("v_and_b32 v15, 1, v13")
    a("v_lshl_add_u32 v14, v15, 3, v14")
    a(f"v_add_u32 v14, {WB}, v14")
    a("v_lshlrev_b32 v15, 3, v1")
    a("v_lshl_add_u32 v15, v11, 1, v15")
    a("v_lshrrev_b32 v16, 1, v13")
    a("v_add_u32 v15, v15, v16")
    a("v_lshl_add_u32 v15, v12, 2, v15")
    a("v_and_b32 v16, 31, v15")
    a("v_lshl_add_u32 v24, v16, 4, v14")
    a("v_add_u32 v15, 4, v15")
    a("v_and_b32 v16, 31, v15")
    a("v_lshl_add_u32 v25, v16, 4, v14")
    a("v_and_b32 v15, 31, v2")
    a("v_bfe_u32 v16, v2, 1, 3")
    a("v_xor_b32 v16, v16, v10")
    a("v_lshlrev_b32 v17, 7, v15")
    for q in range(4):
        a(f"v_xor_b32 v34, {2*q}, v16")
        a(f"v_lshl_add_u32 v{26+q}, v34, 4, v17")
        a(f"v_add_u32 v{30+q}, 40960, v{26+q}")
    SETS = [(40, 56), (72, 88)]
    ACC = 104
    CSUM = (168, 172); SUM = (20, 21); SQ = (22, 23); SEL = 36
    for r in SUM + SQ: a(f"v_mov_b32 v{r}, 0")
    a("v_and_b32 v34, 15, v2")
    a("v_cmp_eq_u32 vcc, v34, v11")
    a(f"v_cndmask_b32 v{SEL}, 0, v7, vcc")
    for q in range(1, 4): a(f"v_mov_b32 v{SEL+q}, v{SEL}")
    a("s_waitcnt lgkmcnt(0)")
    srd(a, 24, 10, WS_SIZE)
    def reads(c):
        A0, B0 = SETS[c % 2]
        buf = c % NBUF
        slot = c // 2
        L = []
        for ks in range(2):
            for aa in range(2):
                for hi in range(2):
                    r = A0 + (ks*2 + aa)*4 + hi*2
                    L.append(f"ds_read_b64_tr_b16 v[{r}:{r+1}], v{24+aa} offset:{buf*16384 + ks*8192 + hi*2048}")
            for b in range(2):
                r = B0 + (ks*2 + b)*4
                L.append(f"ds_read_b128 v[{r}:{r+3}], v{26 + 4*(slot//5) + 2*(c&1) + ks} offset:{(slot%5)*8192 + b*4096}")
        return L
    def mfmas(c):
        A0, B0 = SETS[c % 2]
        L = []
        for ks in range(2):
            for aa in range(2):
                ra = A0 + (ks*2 + aa)*4
                for b in range(2):
                    d = ACC + (aa*2 + b)*16
                    rb = B0 + (ks*2 + b)*4
                    cc = "0" if (c == 0 and ks == 0) else f"v[{d}:{d+15}]"
                    L.append(f"v_mfma_f32_32x32x16_bf16 v[{d}:{d+15}], v[{ra}:{ra+3}], v[{rb}:{rb+3}], {cc}")
                d = CSUM[aa]
                cc = "0" if (c == 0 and ks == 0) else f"v[{d}:{d+3}]"
                L.append(f"v_mfma_f32_16x16x32_bf16 v[{d}:{d+3}], v[{ra}:{ra+3}], v[{SEL}:{SEL+3}], {cc}")
        return L
    NCH = 20
    for c in range(NCH):
        a("s_waitcnt lgkmcnt(0)")
        a("s_barrier")
        if c in (0, 10): st()
        R = reads(c)
        M = mfmas(c - 1) if c > 0 else []
        k = 0
        for m in M:
            a(m)
            for _ in range(2):
                if k < len(R): a(R[k]); k += 1
        while k < len(R): a(R[k]); k += 1
    a("s_waitcnt lgkmcnt(0)")
    for m in mfmas(NCH - 1): a(m)
    st()
    a.fence(4)
    a("v_and_b32 v15, 31, v2")
    a("v_and_b32 v34, 15, v2")
    a("v_lshlrev_b32 v17, 6, v34")
    a("v_lshrrev_b32 v35, 4, v2")
    a("v_lshl_add_u32 v17, v35, 4, v17")
    a("v_lshl_add_u32 v17, v1, 8, v17")
    a(f"v_add_u32 v17, {K1_CS}, v17")
    a("v_cmp_gt_u32 vcc, 2, v34")
    a("s_and_saveexec_b64 s[38:39], vcc")
    a(f"ds_write_b128 v17, v[{CSUM[0]}:{CSUM[0]+3}]")
    a(f"ds_write_b128 v17, v[{CSUM[1]}:{CSUM[1]+3}] offset:128")
    a("s_mov_b64 exec, s[38:39]")
    a("s_waitcnt lgkmcnt(0)")
    a("s_barrier")
    a("v_lshlrev_b32 v16, 3, v15")
    a(f"v_add_u32 v16, {K1_STAT}, v16")
    for b in range(2):
        for p in range(2):
            a(f"ds_read_b64 v[{40+b*16+2*p}:{41+b*16+2*p}], v16 offset:{b*512 + p*256}")
    a("v_lshlrev_b32 v17, 4, v10")
    a("v_lshl_add_u32 v17, v1, 8, v17")
    a(f"v_add_u32 v17, {K1_CS}, v17")
    for aa in range(2):
        for c in range(4):
            r = 72 + aa*16 + 4*c
            a(f"ds_read_b128 v[{r}:{r+3}], v17 offset:{aa*128 + c*32}")
    a("s_waitcnt lgkmcnt(0)")
    MEAN = (20, 21); RINV = (22, 23)
    for b in range(2):
        base = 40 + b*16
        for p in range(1, 2):
            a(f"v_add_f32 v{base}, v{base}, v{base+2*p}")
            a(f"v_add_f32 v{base+1}, v{base+1}, v{base+2*p+1}")
        a(f"v_mul_f32 v{base}, {f32(1/640)}, v{base}")
        a(f"v_mul_f32 v{base+1}, {f32(1/640)}, v{base+1}")
        a(f"v_fma_f32 v{base+1}, -v{base}, v{base}, v{base+1}")
        a(f"v_max_f32 v{base+1}, 0, v{base+1}")
        a(f"v_cvt_pk_bf16_f32 v{MEAN[b]}, 0, v{base}")
        a(f"v_cvt_pk_bf16_f32 v{base+1}, 0, v{base+1}")
        a(f"v_add_f32 v{base+1}, 0x3727c5ac, v{base+1}")
        a(f"v_cvt_pk_bf16_f32 v{base+1}, 0, v{base+1}")
        a(f"v_sqrt_f32 v{base+1}, v{base+1}")
        a(f"v_cvt_pk_bf16_f32 v{base+1}, 0, v{base+1}")
        a(f"v_rcp_f32 v{RINV[b]}, v{base+1}")
    QS = (24, 25, 26, 27)
    a("s_mul_i32 s36, s28, 240")
    a("s_lshl_b32 s37, s30, 6")
    a("s_add_u32 s36, s36, s37")
    for aa in range(2):
        a(f"s_add_u32 s37, s36, {32*aa}")
        a("s_cmp_lt_u32 s37, 640")
        a(f"s_cselect_b32 s37, {f32(QSCALE)}, 1.0")
        for b in range(2):
            a(f"v_mul_f32 v{QS[aa*2+b]}, s37, v{RINV[b]}")
    a("v_lshl_add_u32 v14, v1, 4, v10")
    a("v_mul_u32_u24 v15, 48, v15")
    for aa in range(2):
        for c in range(4):
            if aa == 1 and c == 2:
                a("s_cmp_eq_u32 s30, 3")
                a("s_cbranch_scc1 K1_STG")
            a(f"v_add_u32 v16, {8*aa + 2*c}, v14")
            a("v_mul_u32_u24 v17, 52429, v16")
            a("v_lshrrev_b32 v17, 18, v17")
            a("v_mul_u32_u24 v18, 5, v17")
            a("v_sub_u32 v18, v16, v18")
            a("v_mul_u32_u24 v17, 3072, v17")
            a("v_lshl_add_u32 v17, v18, 3, v17")
            a("v_add_u32 v17, v17, v15")
            for b in range(2):
                d = ACC + (aa*2 + b)*16 + 4*c
                cs = 72 + aa*16 + 4*c
                for e in range(4):
                    a(f"v_fma_f32 v{d+e}, -v{MEAN[b]}, v{cs+e}, v{d+e}")
                    a(f"v_mul_f32 v{d+e}, v{d+e}, v{QS[aa*2+b]}")
                t = 40 + 2*b
                a(f"v_cvt_pk_bf16_f32 v{t}, v{d}, v{d+1}")
                a(f"v_cvt_pk_bf16_f32 v{t+1}, v{d+2}, v{d+3}")
                a(f"ds_write_b64 v17, v[{t}:{t+1}] offset:{b*1536}")
    a.label("K1_STG")
    a.fence(4)
    a("v_mul_u32_u24 v16, 48, v2")
    a("s_mul_i32 s36, s30, 9216")
    a("v_add_u32 v16, s36, v16")
    a("v_mov_b32 v40, v7"); a("v_mov_b32 v41, v7")
    for hh in range(3):
        a(f"ds_write_b64 v16, v[40:41] offset:{hh*3072 + 40}")
    a("s_branch K1_COPY")
    a.label("K1_PROD")
    a.fence(4)
    a("s_sub_u32 s31, s30, 4")
    a("s_and_b32 s32, s31, 1")
    a("s_mul_i32 s33, s29, 81920")
    a("s_waitcnt lgkmcnt(0)")
    srd(a, 12, 4, 2621440)
    srd(a, 16, 6, 2457600)
    srd(a, 20, 8, 1280)
    srd(a, 24, 10, WS_SIZE)
    a("s_cmp_ge_u32 s31, 2")
    a("s_cbranch_scc1 K1_PW")
    a("s_lshl_b32 s34, s32, 3")
    a("v_lshrrev_b32 v11, 3, v2")
    a("v_add_u32 v11, s34, v11")
    a("v_mul_u32_u24 v4, 1280, v11")
    a("s_lshl_b32 s34, s32, 2")
    a("v_lshrrev_b32 v13, 4, v2")
    a("v_add_u32 v13, s34, v13")
    a("v_and_b32 v12, 7, v2")
    a("v_xor_b32 v12, v12, v13")
    a("v_lshl_add_u32 v4, v12, 4, v4")
    a("s_lshl_b32 s34, s32, 10")
    def xslot(slot):
        a("s_lshl_b32 s40, s43, 7")
        a("s_add_u32 s40, s40, s33")
        a("s_add_u32 s43, s43, 1")
        a("s_cmp_eq_u32 s43, 10")
        a("s_cselect_b32 s43, 0, s43")
        for t in range(4):
            a(f"s_add_u32 m0, s34, {slot*8192 + t*2048}")
            if t: a(f"s_add_u32 s40, s40, {16*1280}")
            a("buffer_load_dwordx4 v4, s[12:15], s40 offen lds")
    XPRE = 5
    for slot in range(XPRE): xslot(slot)
    X = 40; WR = 60
    a("v_and_b32 v3, 15, v2")
    a("v_lshrrev_b32 v9, 4, v2")
    a("v_lshlrev_b32 v10, 4, v3")
    a("s_lshl_b32 s35, s28, 3")
    a("s_lshl_b32 s36, s31, 2")
    a("s_add_u32 s35, s35, s36")
    a("v_add_u32 v11, s35, v9")
    a("v_mul_u32_u24 v6, 1280, v11")
    a("v_add_u32 v6, v6, v10")
    a("v_lshrrev_b32 v20, 5, v2")
    a("v_and_b32 v15, 31, v2")
    a("v_bfe_u32 v16, v2, 1, 3")
    a("v_xor_b32 v16, v16, v20")
    a("v_lshlrev_b32 v17, 7, v15")
    a("s_lshl_b32 s37, s32, 12")
    a("v_add_u32 v17, s37, v17")
    for q in range(4):
        a(f"v_xor_b32 v34, {2*q}, v16")
        a(f"v_lshl_add_u32 v{26+q}, v34, 4, v17")
        a(f"v_add_u32 v{30+q}, 40960, v{26+q}")
    for r in (21, 22, 23, 24): a(f"v_mov_b32 v{r}, 0")
    issued = XPRE; extra = 0
    for c in range(NCH):
        if c % 2 == 0: a(f"s_waitcnt vmcnt({extra + 4*(issued - (c//2 + 1))})")
        a("s_barrier")
        slot = c // 2
        for ks in range(2):
            a(f"ds_read_b128 v[{80+4*ks}:{83+4*ks}], v{26 + 4*(slot//5) + 2*(c&1) + ks} offset:{(slot%5)*8192}")
        if issued < 10:
            xslot(issued); issued += 1
        elif extra == 0:
            for i in range(5):
                a(f"buffer_load_dwordx4 v[{X+4*i}:{X+4*i+3}], v6, s[12:15], s33 offen offset:{i*256}")
                a(f"buffer_load_dwordx4 v[{WR+4*i}:{WR+4*i+3}], v10, s[20:23], 0 offen offset:{i*256}")
            extra = 10
        a("s_waitcnt lgkmcnt(0)")
        for q in range(8):
            a(f"v_lshlrev_b32 v88, 16, v{80+q}")
            a(f"v_and_b32 v89, v8, v{80+q}")
            a("v_add_f32 v21, v21, v88")
            a("v_add_f32 v22, v22, v89")
            a("v_fmac_f32 v23, v88, v88")
            a("v_fmac_f32 v24, v89, v89")
    a("v_add_f32 v22, v21, v22")
    a("v_add_f32 v23, v23, v24")
    a("v_lshlrev_b32 v16, 3, v15")
    a("v_lshl_add_u32 v16, v20, 8, v16")
    a("s_lshl_b32 s37, s32, 9")
    a(f"s_add_u32 s37, s37, {K1_STAT}")
    a("v_add_u32 v16, s37, v16")
    a("ds_write_b64 v16, v[22:23]")
    a("s_waitcnt lgkmcnt(0)")
    a("s_barrier")
    a("s_waitcnt vmcnt(0)")
    a("s_branch K1_PLN")
    a.label("K1_PW")
    a.fence(4)
    a("s_lshl_b32 s43, s43, 1")
    a("s_lshl_b32 s34, s32, 1")
    a("v_lshrrev_b32 v11, 5, v2")
    a("v_add_u32 v11, s34, v11")
    a("v_lshlrev_b32 v12, 2, v11")
    a("v_and_b32 v13, 31, v2")
    a("v_sub_u32 v13, v13, v12")
    a("v_and_b32 v13, 31, v13")
    a("v_lshlrev_b32 v13, 4, v13")
    a("v_mul_u32_u24 v5, 3840, v11")
    a("v_add_u32 v5, v5, v13")
    a("s_mul_i32 s34, s28, 480")
    a("v_add_u32 v5, s34, v5")
    a("s_lshl_b32 s34, s32, 10")
    def dma(c):
        buf = c % NBUF
        a(f"s_mul_i32 s40, s43, {32*3840}")
        a("s_add_u32 s43, s43, 1")
        a("s_cmp_eq_u32 s43, 20")
        a("s_cselect_b32 s43, 0, s43")
        for t in range(8):
            a(f"s_add_u32 m0, s34, {WB + buf*16384 + t*2048}")
            if t: a(f"s_add_u32 s40, s40, {4*3840}")
            a("buffer_load_dwordx4 v5, s[16:19], s40 offen lds")
    PRE = NBUF - 1
    for c in range(PRE): dma(c)
    for c in range(NCH):
        issued = min(NCH, c + PRE)
        younger = issued - (c + 1)
        a(f"s_waitcnt vmcnt({8*younger})")
        a("s_barrier")
        if c + PRE < NCH: dma(c + PRE)
    a("s_barrier")
    a("s_branch K1_PL1")
    a.label("K1_PLN")
    a.fence(4)
    xr = [X + k for k in range(20)]
    for k, r in enumerate(xr):
        acc = 10 + (k & 1); c = "0" if k < 2 else f"v{acc}"
        a(f"v_dot2_f32_bf16 v{acc}, v{r}, v7, {c}")
        acc2 = 12 + (k & 1); c = "0" if k < 2 else f"v{acc2}"
        a(f"v_dot2_f32_bf16 v{acc2}, v{r}, v{r}, {c}")
    a("v_add_f32 v10, v10, v11")
    a("v_add_f32 v12, v12, v13")
    dpp_rowsum(a, [10, 12])
    a(f"v_mul_f32 v10, {f32(1/640)}, v10")
    a(f"v_mul_f32 v12, {f32(1/640)}, v12")
    a("v_fma_f32 v12, -v10, v10, v12")
    a("v_max_f32 v12, 0, v12")
    a("v_cvt_pk_bf16_f32 v14, 0, v10")
    a("v_cvt_pk_bf16_f32 v12, 0, v12")
    a("v_add_f32 v12, 0x3727c5ac, v12")
    a("v_cvt_pk_bf16_f32 v12, 0, v12")
    a("v_sqrt_f32 v12, v12")
    a("v_cvt_pk_bf16_f32 v12, 0, v12")
    a("v_rcp_f32 v16, v12")
    a("v_sub_f32 v14, 0, v14")
    a("v_mov_b32 v15, v14")
    a("v_mov_b32 v17, v16")
    for k, r in enumerate(xr):
        t = 20 + 2*(k & 3)
        a(f"v_lshlrev_b32 v{t}, 16, v{r}")
        a(f"v_and_b32 v{t+1}, v8, v{r}")
        a(f"v_pk_add_f32 v[{t}:{t+1}], v[{t}:{t+1}], v[14:15]")
        a(f"v_cvt_pk_bf16_f32 v{r}, v{t}, v{t+1}")
        a(f"v_lshlrev_b32 v{t}, 16, v{r}")
        a(f"v_and_b32 v{t+1}, v8, v{r}")
        a(f"v_pk_mul_f32 v[{t}:{t+1}], v[{t}:{t+1}], v[16:17]")
        a(f"v_cvt_pk_bf16_f32 v{r}, v{t}, v{t+1}")
    a(f"s_add_u32 s36, s33, {WS_XN}")
    for i in range(5):
        a(f"buffer_store_dwordx4 v[{X+4*i}:{X+4*i+3}], v6, s[24:27], s36 offen offset:{i*256}")
    for k in range(20):
        acc = 10 + (k & 1); c = "0" if k < 2 else f"v{acc}"
        a(f"v_dot2_f32_bf16 v{acc}, v{X+k}, v{WR+k}, {c}")
    a("v_add_f32 v10, v10, v11")
    dpp_rowsum(a, [10])
    a("v_cvt_pk_bf16_f32 v10, 0, v10")
    a("v_add_u32 v11, s35, v9")
    if KEYS:
        a("v_ashrrev_i32 v12, 31, v10")
        a("v_or_b32 v12, 0x80000000, v12")
        a("v_xor_b32 v10, v10, v12")
        a("v_and_b32 v10, 0xffff0000, v10")
        a("s_lshl_b32 s36, s29, 6")
        a("v_add_u32 v12, s36, v11")
        a("v_sub_u32 v12, 2047, v12")
        a("v_or_b32 v10, v10, v12")
    a("v_lshlrev_b32 v11, 2, v11")
    a("s_lshl_b32 s36, s29, 8")
    a(f"s_add_u32 s36, s36, {WS_R}")
    a("v_cmp_eq_u32 vcc, 0, v3")
    a("s_and_saveexec_b64 s[38:39], vcc")
    a("buffer_store_dword v10, v11, s[24:27], s36 offen")
    a("s_mov_b64 exec, s[38:39]")
    a.label("K1_PL1")
    a.fence(4)
    a("s_cmp_lg_u32 s2, 0")
    a("s_cbranch_scc1 K1_NOZ")
    a("s_cmp_lg_u32 s31, 3")
    a("s_cbranch_scc1 K1_NOZ")
    for i in range(4): a(f"v_mov_b32 v{12+i}, 0")
    a("v_lshlrev_b32 v10, 4, v2")
    a(f"s_mov_b32 s36, {WS_YP}")
    for i in range(4):
        a(f"buffer_store_dwordx4 v[12:15], v10, s[24:27], s36 offen offset:{i*1024}")
    a(f"s_mov_b32 s36, {WS_YP + 4096}")
    for i in range(4):
        a(f"buffer_store_dwordx4 v[12:15], v10, s[24:27], s36 offen offset:{i*1024}")
    a(f"s_mov_b32 s36, {WS_YP + 8192}")
    a("buffer_store_dwordx4 v[12:15], v10, s[24:27], s36 offen")
    a.label("K1_NOZ")
    a.fence(4)
    a.label("K1_COPY")
    a.fence(4)
    a("s_waitcnt lgkmcnt(0)")
    a("s_barrier")
    a("v_lshlrev_b32 v16, 4, v2")
    a("s_lshl_b32 s36, s30, 10")
    a("v_add_u32 v17, s36, v16")
    for i in range(5):
        if i == 4:
            a("s_cmp_ge_u32 s30, 4")
            a("s_cbranch_scc1 K1_CP2")
        a(f"ds_read_b128 v[{40+4*i}:{43+4*i}], v17 offset:{i*8192}")
    a.label("K1_CP2")
    a("s_mul_i32 s37, s28, 12")
    a("s_mul_i32 s38, s29, 3072")
    for i in range(5):
        a(f"s_add_u32 s39, s30, {8*i}")
        a("s_mul_i32 s40, s39, 43691")
        a("s_lshr_b32 s40, s40, 17")
        a("s_mul_i32 s41, s40, 3")
        a("s_sub_u32 s41, s39, s41")
        a("s_add_u32 s40, s40, s37")
        a(f"s_mul_i32 s40, s40, {HEADB}")
        a("s_lshl_b32 s41, s41, 10")
        a("s_add_u32 s40, s40, s41")
        a(f"s_add_u32 s{44+i}, s40, s38")
    a("s_waitcnt lgkmcnt(0)")
    for i in range(5):
        if i == 4:
            a("s_cmp_ge_u32 s30, 4")
            a("s_cbranch_scc1 K1_FIN")
        a(f"buffer_store_dwordx4 v[{40+4*i}:{43+4*i}], v16, s[24:27], s{44+i} offen")
    a.label("K1_FIN")
    if instr:
        a("s_waitcnt vmcnt(0)")
        st()
        a("s_cmp_ge_u32 s30, 4")
        a("s_cbranch_scc1 K1_END")
        st.dump(0, 30, 2)
    a.label("K1_END")
    a("s_endpgm")
    return a.text(), K1B_VGPR
```

```python
from asmlib import Asm
from gen import *

KVB = 24576
F_FLAG = 3 * KVB
REG = F_FLAG + 256
K2F_LDS = REG + 16 * 5120
LOG2E = 1.4426950408889634
C32 = struct.unpack("<f", struct.pack("<I", 0x3e64f92e))[0]
L_TARGET = -100
L_THRESH = "0x3f800000"
K2F_VGPR = 192
NM2 = 108
WG_, WU_, WD_ = REG, REG + 20480, REG + 40960
XS_ = REG + 61440
HB_ = XS_ + 2560
SPIN_MAX = 1 << 20
POLL_SLEEP = 4
WS_CNT = WS_YP + 5120 + 1024

def gen_k2f(instr=False, slots=None):
    a = Asm()
    st = Stamps(a, instr, base=74)
    st()
    a("s_cmp_ge_u32 s2, 256")
    a("s_cbranch_scc1 K2_END")
    a("s_load_dwordx2 s[10:11], s[0:1], 80")
    a("s_load_dwordx2 s[6:7], s[0:1], 16")
    a("s_load_dwordx2 s[8:9], s[0:1], 0")
    a("s_load_dwordx2 s[52:53], s[0:1], 64")
    a("s_and_b32 s28, s2, 7")
    a("s_lshr_b32 s29, s2, 3")
    a("s_lshr_b32 s30, s29, 3")
    a("s_lshl_b32 s28, s28, 2")
    a("s_add_u32 s28, s28, s30")
    a("s_and_b32 s29, s29, 7")
    a("v_lshrrev_b32 v1, 6, v0")
    a("v_and_b32 v2, 63, v0")
    a("v_readfirstlane_b32 s30, v1")
    QH = [4, 16]; QL = [8, 20]; QX = [12, 24]
    KA = [28, 36]; KX = [32, 40]; V0 = 44
    S = [52, 68]; PP = [84, 92]; O = [100, 116]; T = 132
    NEG = [140, 141]
    vKl, vXl, vVl, vKc, vXc, vVc, vKn, vXn, vDma = range(142, 151)
    a("v_lshrrev_b32 v3, 5, v2")
    a(f"v_lshlrev_b32 v{vDma}, 4, v2")
    a("s_lshr_b32 s54, s28, 3")
    a("s_lshl_b32 s55, s29, 2")
    a("s_add_u32 s54, s54, s55")
    a("s_and_b32 s55, s28, 7")
    a("s_mul_i32 s56, s55, 160")
    a("s_waitcnt lgkmcnt(0)")
    srd(a, 24, 10, WS_SIZE)
    a(f"s_mul_i32 s31, s28, {HEADB}")
    a(f"s_add_u32 s32, s31, {WS_K}")
    a("s_mov_b32 s50, 0")
    a("s_cmp_lg_u32 s30, 4")
    a("s_cbranch_scc1 K2_COMP")
    a("s_setprio 3")
    for g in range(6):
        a(f"s_mov_b32 m0, {g*4096}")
        a(f"s_add_u32 s48, s32, {(g % 3)*4096 + (g // 3)*(WS_V - WS_K)}")
        for i in range(4):
            a(f"buffer_load_dwordx4 v{vDma}, s[24:27], s48 offen offset:{i*1024} lds")
    a("s_branch K2_PROD")
    a.label("K2_COMP")
    a(f"v_and_b32 v{T}, 31, v2")
    a(f"v_mul_u32_u24 v{T+1}, 48, v{T}")
    a(f"v_lshl_add_u32 v{vKl}, v3, 4, v{T+1}")
    a(f"v_add_u32 v{vXl}, 32, v{T+1}")
    a("s_lshl_b32 s34, s29, 8")
    a("s_lshl_b32 s35, s30, 6")
    a("s_add_u32 s34, s34, s35")
    a("s_mul_i32 s35, s34, 48")
    a("s_add_u32 s35, s35, s31")
    for sd in range(2):
        for i in range(4): a(f"v_mov_b32 v{QX[sd]+i}, 0")
        a(f"buffer_load_dwordx4 v[{QH[sd]}:{QH[sd]+3}], v{vKl}, s[24:27], s35 offen offset:{sd*1536}")
    a("s_mov_b64 exec, 0xffffffff")
    for sd in range(2):
        a(f"buffer_load_dwordx2 v[{QX[sd]}:{QX[sd]+1}], v{vXl}, s[24:27], s35 offen offset:{sd*1536}")
    a("s_mov_b64 exec, -1")
    a(f"v_bfe_u32 v{T+2}, v2, 2, 2")
    a(f"v_lshl_add_u32 v{T+2}, v3, 2, v{T+2}")
    a(f"v_mul_u32_u24 v{T+2}, 48, v{T+2}")
    a(f"v_bfe_u32 v{T+3}, v2, 4, 1")
    a(f"v_and_b32 v{T+4}, 3, v2")
    a(f"v_lshl_add_u32 v{T+3}, v{T+3}, 2, v{T+4}")
    a(f"v_min_u32 v{T+3}, 5, v{T+3}")
    a(f"v_lshl_add_u32 v{T+2}, v{T+3}, 3, v{T+2}")
    a(f"v_add_u32 v{vVl}, 12288, v{T+2}")
    a("s_mov_b32 s72, 0")
    def mm(d, x, y, c):
        cc = "0" if c is None else f"v[{c}:{c+15}]"
        a(f"v_mfma_f32_32x32x16_bf16 v[{d}:{d+15}], v[{x}:{x+3}], v[{y}:{y+3}], {cc}")
    def qk(sd, kb):
        mm(S[sd], KA[kb], QH[sd], None); mm(S[sd], KX[kb], QX[sd], S[sd])
    def kread(aK, aX, t, kb):
        a(f"ds_read_b128 v[{KA[kb]}:{KA[kb]+3}], v{aK} offset:{t*1536}")
        a(f"ds_read_b128 v[{KX[kb]}:{KX[kb]+3}], v{aX} offset:{t*1536}")
    def vread(addr, t):
        for aa in range(2):
            for hi in range(2):
                r = V0 + aa*4 + hi*2
                a(f"ds_read_b64_tr_b16 v[{r}:{r+1}], v{addr} offset:{t*1536 + aa*768 + hi*384}")
    def halfmax(r, tmp):
        a(f"v_mov_b32 v{tmp}, v{r}")
        a(f"v_permlane32_swap_b32 v{r}, v{tmp}")
        a(f"v_max_f32 v{r}, v{r}, v{tmp}")
    def split_neg(sd):
        a(f"v_cvt_pk_bf16_f32 v{T+2}, 0, v{NEG[sd]}")
        a(f"v_sub_f32 v{T+3}, v{NEG[sd]}, v{T+2}")
        a(f"v_cvt_pk_bf16_f32 v{T+4}, 0, v{T+3}")
        a(f"v_sub_f32 v{T+3}, v{T+3}, v{T+4}")
        a("s_mov_b64 exec, 0xffffffff")
        a(f"v_cvt_pk_bf16_f32 v{QX[sd]+2}, v{T+2}, v{T+4}")
        a(f"v_cvt_pk_bf16_f32 v{QX[sd]+3}, v{T+3}, 0")
        a("s_mov_b64 exec, -1")
    a(f"v_mov_b32 v{T}, {F_FLAG}")
    a(f"v_mov_b32 v{T+1}, 0")
    a(f"ds_write_b32 v{T}, v{T+1}")
    a("s_waitcnt vmcnt(0)")
    a.label("K2_MAIN")
    a.fence(4)
    a("s_mov_b32 s40, 0")
    a(f"s_mov_b32 s41, {KVB}")
    a(f"s_mov_b32 s42, {2*KVB}")
    for i in range(32): a(f"v_mov_b32 v{O[0]+i}, 0")
    for i in range(8): a(f"v_mov_b32 v{PP[1]+i}, 0")
    for i in range(8): a(f"v_mov_b32 v{V0+i}, 0")
    a("s_waitcnt lgkmcnt(0)")
    st()
    a("s_barrier")
    a(f"v_mov_b32 v{vKc}, v{vKl}")
    a(f"v_mov_b32 v{vXc}, v{vXl}")
    a(f"v_mov_b32 v{vVc}, v{vVl}")
    a(f"v_add_u32 v{vKn}, {KVB}, v{vKl}")
    a(f"v_add_u32 v{vXn}, {KVB}, v{vXl}")
    kread(vKc, vXc, 0, 0)
    a("s_waitcnt lgkmcnt(0)")
    qk(0, 0)
    a("s_cmp_lg_u32 s50, 0")
    a("s_cbranch_scc1 K2_SKIPMAX")
    qk(1, 0)
    for sd in range(2):
        a(f"v_max3_f32 v{T}, v{S[sd]}, v{S[sd]+1}, v{S[sd]+2}")
        for i in range(3, 15, 2):
            a(f"v_max3_f32 v{T}, v{T}, v{S[sd]+i}, v{S[sd]+i+1}")
        a(f"v_max_f32 v{T}, v{T}, v{S[sd]+15}")
        halfmax(T, T+1)
        a(f"v_sub_f32 v{NEG[sd]}, {f32(float(L_TARGET))}, v{T}")
        split_neg(sd)
    for i in range(16): a(f"v_add_f32 v{S[0]+i}, v{S[0]+i}, v{NEG[0]}")
    a.label("K2_SKIPMAX")
    a.fence(16)
    a("s_mov_b32 s44, 0")
    a("s_mov_b64 vcc, 0")
    st()
    a.label("K2_LOOP")
    if slots is None: slots = [8, 48, 88, 128]
    for t in range(8):
        for sd in range(2):
            Sc = S[sd]; Pc = PP[sd]; ot = sd ^ 1
            if sd == 0 and t % 4 == 0:
                a(f"s_cbranch_vccnz K2_RC{t}")
                a.label(f"K2_NR{t}")
            if sd == 0 and t == 7:
                a("s_barrier")
            E = []
            for i in range(8):
                E.append((f"v_exp_f32 v{Sc+2*i}, v{Sc+2*i}", 8))
                E.append((f"v_exp_f32 v{Sc+2*i+1}, v{Sc+2*i+1}", 8))
                if i > 0: E.append((f"v_cvt_pk_bf16_f32 v{Pc+i-1}, v{Sc+2*i-2}, v{Sc+2*i-1}", 4))
            E.append((f"v_cvt_pk_bf16_f32 v{Pc+7}, v{Sc+14}, v{Sc+15}", 4))
            names = ["qkA", "qkC", "pv0", "pv1"]
            kb = (t % 2) if sd == 0 else ((t+1) % 2)
            pos = 0; k = 0; n = 0
            for ins, cst in E:
                while k < 4 and pos >= slots[k]:
                    what = names[k]; k += 1
                    if what == "qkA":
                        if sd == 1: a("s_waitcnt lgkmcnt(4)")
                        mm(S[ot], KA[kb], QH[ot], None)
                    elif what == "qkB": mm(S[ot], KA[kb], QL[ot], S[ot])
                    elif what == "qkC": mm(S[ot], KX[kb], QX[ot], S[ot])
                    elif what == "pv0":
                        if sd == 1: a("s_waitcnt lgkmcnt(0)")
                        mm(O[ot], V0, PP[ot], O[ot])
                    elif what == "pv1":
                        mm(O[ot], V0+4, PP[ot]+4, O[ot])
                        if sd == 0: vread(vVc, t)
                a(ins); pos += cst; n += 1
                if sd == 1 and t % 4 == 3 and n == 8:
                    a(f"v_max_f32 v{T}, v{O[0]+12}, v{O[1]+12}")
                    a(f"v_cmp_lt_f32 vcc, {L_THRESH}, v{T}")
                if sd == 0 and n == 1:
                    if t + 1 < 8: kread(vKc, vXc, t+1, (t+1) % 2)
                    else: kread(vKn, vXn, 0, 0)
            assert k == 4
    a("s_mov_b32 s45, s40")
    a("s_mov_b32 s40, s41")
    a("s_mov_b32 s41, s42")
    a("s_mov_b32 s42, s45")
    a(f"v_add_u32 v{vKc}, s40, v{vKl}")
    a(f"v_add_u32 v{vXc}, s40, v{vXl}")
    a(f"v_add_u32 v{vVc}, s40, v{vVl}")
    a(f"v_add_u32 v{vKn}, s41, v{vKl}")
    a(f"v_add_u32 v{vXn}, s41, v{vXl}")
    a("s_add_u32 s44, s44, 1")
    a("s_cmp_lt_u32 s44, 8")
    a("s_cbranch_scc1 K2_LOOP")
    st()
    mm(O[1], V0, PP[1], O[1])
    mm(O[1], V0+4, PP[1]+4, O[1])
    a("s_waitcnt lgkmcnt(0)")
    a("s_cmp_lg_u32 s50, 0")
    a("s_cbranch_scc1 K2_VOTED")
    a(f"v_mul_f32 v{T}, 0, v{O[0]}")
    for sd in range(2):
        for i in range(13):
            if sd or i: a(f"v_fma_f32 v{T}, v{O[sd]+i}, 0, v{T}")
    a(f"v_cmp_u_f32 vcc, v{T}, v{T}")
    a(f"v_mov_b32 v{T+1}, {F_FLAG}")
    a(f"v_mov_b32 v{T+2}, 1")
    a("s_and_saveexec_b64 s[46:47], vcc")
    a("s_cbranch_execz K2_NOFLAG")
    a(f"ds_write_b32 v{T+1}, v{T+2}")
    a.label("K2_NOFLAG")
    a("s_mov_b64 exec, s[46:47]")
    a("s_waitcnt lgkmcnt(0)")
    a.label("K2_VOTED")
    a("s_barrier")
    a("s_cmp_lg_u32 s50, 0")
    a("s_cbranch_scc1 K2_EPI")
    a(f"ds_read_b32 v{T+2}, v{T+1}")
    a("s_waitcnt lgkmcnt(0)")
    a(f"v_readfirstlane_b32 s46, v{T+2}")
    a("s_cmp_eq_u32 s46, 0")
    a("s_cbranch_scc1 K2_EPI")
    a("s_mov_b32 s50, 1")
    a("s_mov_b32 s44, 0")
    for sd in range(2):
        a(f"v_mov_b32 v{QX[sd]+2}, 0")
        a(f"v_mov_b32 v{QX[sd]+3}, 0")
        a(f"v_mov_b32 v{T+6+sd}, 0xff800000")
    a.label("K2_MAXLOOP")
    a("s_barrier")
    a("s_barrier")
    a("s_mov_b32 s45, 0")
    a(f"v_mov_b32 v{vKc}, v{vKl}")
    a(f"v_mov_b32 v{vXc}, v{vXl}")
    a.label("K2_MAXT")
    kread(vKc, vXc, 0, 0)
    a(f"v_add_u32 v{vKc}, 1536, v{vKc}")
    a(f"v_add_u32 v{vXc}, 1536, v{vXc}")
    a("s_waitcnt lgkmcnt(0)")
    qk(0, 0); qk(1, 0)
    for sd in range(2):
        for i in range(0, 16, 2):
            a(f"v_max3_f32 v{T+6+sd}, v{T+6+sd}, v{S[sd]+i}, v{S[sd]+i+1}")
    a("s_add_u32 s45, s45, 1")
    a("s_cmp_lt_u32 s45, 8")
    a("s_cbranch_scc1 K2_MAXT")
    a("s_add_u32 s44, s44, 1")
    a("s_cmp_lt_u32 s44, 8")
    a("s_cbranch_scc1 K2_MAXLOOP")
    for sd in range(2):
        halfmax(T+6+sd, T+1)
        a(f"v_sub_f32 v{NEG[sd]}, {f32(float(L_TARGET))}, v{T+6+sd}")
        split_neg(sd)
    a("s_barrier")
    a("s_branch K2_MAIN")
    a.label("K2_EPI")
    a.fence(16)
    a("v_and_b32 v20, 31, v2")
    a("v_add_u32 v20, s34, v20")
    a("v_lshrrev_b32 v21, 4, v20")
    a("v_mul_u32_u24 v21, 20480, v21")
    a("v_and_b32 v20, 15, v20")
    a("v_lshl_add_u32 v20, v20, 4, v21")
    a(f"s_mov_b32 s36, {WS_O}")
    a(f"s_mov_b32 s37, {WS_O + 2*20480}")
    a("s_mul_i32 s35, s28, 5")
    a("s_add_u32 s33, s35, 1")
    a("s_lshr_b32 s33, s33, 1")
    a("v_add_u32 v21, s33, v3")
    a("v_lshl_add_u32 v24, v21, 8, v20")
    a("s_and_b32 s38, s28, 1")
    a("s_add_u32 s39, s33, 2")
    a("s_lshl_b32 s39, s39, 8")
    a("s_sub_u32 s33, s33, 1")
    a("s_lshl_b32 s33, s33, 8")
    a("s_add_u32 s33, s33, 8")
    a("s_cmp_eq_u32 s38, 0")
    a("s_cselect_b32 s33, s39, s33")
    a("v_add_u32 v25, s33, v20")
    for sd in range(2):
        a(f"v_rcp_f32 v{T}, v{O[sd]+12}")
        for i in range(12): a(f"v_mul_f32 v{O[sd]+i}, v{O[sd]+i}, v{T}")
        for i in range(6): a(f"v_cvt_pk_bf16_f32 v{PP[sd]+i}, v{O[sd]+2*i}, v{O[sd]+2*i+1}")
    a("s_cmp_lg_u32 s38, 0")
    a("s_cbranch_scc1 K2_ODDH")
    for sd in range(2):
        p = PP[sd]
        a(f"v_permlane32_swap_b32 v{p}, v{p+2}")
        a(f"v_permlane32_swap_b32 v{p+1}, v{p+3}")
        a(f"buffer_store_dwordx4 v[{p}:{p+3}], v24, s[24:27], s{36+sd} offen sc1")
    a("s_mov_b64 exec, 0xffffffff")
    for sd in range(2):
        a(f"buffer_store_dwordx2 v[{PP[sd]+4}:{PP[sd]+5}], v25, s[24:27], s{36+sd} offen sc1")
    a("s_mov_b64 exec, -1")
    a("s_branch K2_OST")
    a.label("K2_ODDH")
    a.fence(4)
    a("s_mov_b64 exec, 0xffffffff")
    for sd in range(2):
        a(f"buffer_store_dwordx2 v[{PP[sd]}:{PP[sd]+1}], v25, s[24:27], s{36+sd} offen sc1")
    a("s_mov_b64 exec, -1")
    for sd in range(2):
        p = PP[sd]; d = O[sd]
        a(f"v_permlane32_swap_b32 v{p}, v{p+4}")
        a(f"v_permlane32_swap_b32 v{p+1}, v{p+5}")
        a(f"v_mov_b32 v{d}, v{p+2}"); a(f"v_mov_b32 v{d+1}, v{p+3}")
        a(f"v_mov_b32 v{d+2}, v{p}"); a(f"v_mov_b32 v{d+3}, v{p+1}")
        a("s_mov_b64 exec, 0xffffffff")
        a(f"v_mov_b32 v{d}, v{p+4}"); a(f"v_mov_b32 v{d+1}, v{p+5}")
        a(f"v_mov_b32 v{d+2}, v{p+2}"); a(f"v_mov_b32 v{d+3}, v{p+3}")
        a("s_mov_b64 exec, -1")
        a(f"buffer_store_dwordx4 v[{d}:{d+3}], v24, s[24:27], s{36+sd} offen sc1")
    a.label("K2_OST")
    a.fence(4)
    OB = 40; XR = 120; ACC = 20; AF = 140
    a("v_and_b32 v3, 15, v2")
    a("v_lshrrev_b32 v4, 4, v2")
    a("s_lshl_b32 s57, s54, 6")
    a("s_lshl_b32 s33, s30, 4")
    a("s_add_u32 s57, s57, s33")
    a("v_add_u32 v5, s57, v3")
    a("v_mul_u32_u24 v5, 1280, v5")
    a("v_lshlrev_b32 v15, 4, v2")
    a("v_lshl_add_u32 v16, v4, 3, v5")
    a("v_add_u32 v16, s56, v16")
    a("v_bfe_u32 v5, v2, 2, 2")
    a("v_lshl_add_u32 v5, v4, 2, v5")
    a("v_mul_u32_u24 v5, 160, v5")
    a("v_and_b32 v6, 3, v2")
    a("v_lshl_add_u32 v19, v6, 3, v5")
    a(f"v_add_u32 v17, {REG}, v19")
    a(f"v_add_u32 v18, {REG + 40960}, v19")
    srd(a, 16, 8, 2621440)
    srd(a, 20, 52, 2621440)
    a("s_waitcnt vmcnt(0)")
    st()
    a("s_barrier")
    a(f"s_mov_b32 s37, {WS_XN}")
    a("s_cmp_lg_u32 s30, 0")
    a("s_cbranch_scc1 K2_NOSIG")
    a("v_mov_b32 v6, 1")
    a("s_lshl_b32 s33, s29, 8")
    a(f"s_add_u32 s33, s33, {WS_CNT}")
    a("v_mov_b32 v7, 0")
    a("s_mov_b64 exec, 1")
    a("buffer_atomic_add v6, v7, s[24:27], s33 offen sc1")
    a("s_mov_b64 exec, -1")
    a.label("K2_NOSIG")
    for nt in range(5):
        a(f"buffer_load_dwordx2 v[{XR+2*nt}:{XR+2*nt+1}], v16, s[16:19], 0 offen offset:{nt*32}")
        a(f"buffer_load_dwordx2 v[{XR+10+2*nt}:{XR+11+2*nt}], v16, s[24:27], s37 offen offset:{nt*32}")
    a("s_barrier")
    st()
    a("s_lshr_b32 s36, s57, 4")
    a("s_mul_i32 s36, s36, 20480")
    a(f"s_add_u32 s36, s36, {WS_O}")
    for ks in range(20):
        if ks % 4 == 0 and ks: a("s_add_u32 s36, s36, 4096")
        a(f"buffer_load_dwordx4 v[{OB+4*ks}:{OB+4*ks+3}], v15, s[24:27], s36 offen offset:{(ks%4)*1024} sc1")
    a("v_mov_b32 v6, 0")
    a(f"s_mov_b32 s38, {WS_IDX}")
    a("buffer_load_dwordx4 v[8:11], v6, s[24:27], s38 offen sc1")
    def areads(ks):
        stt = AF + (ks % 2)*20
        ad = 17 if ks < 8 else (18 if ks < 16 else 19)
        for nt in range(5):
            for hi in range(2):
                r = stt + nt*4 + hi*2
                a(f"ds_read_b64_tr_b16 v[{r}:{r+1}], v{ad} offset:{(ks%8)*5120 + nt*32 + hi*2560}")
    def mf(ks):
        stt = AF + (ks % 2)*20
        for nt in range(5):
            d = ACC + 4*nt
            cc = "0" if ks == 0 else f"v[{d}:{d+3}]"
            a(f"v_mfma_f32_16x16x32_bf16 v[{d}:{d+3}], v[{stt+nt*4}:{stt+nt*4+3}], v[{OB+4*ks}:{OB+4*ks+3}], {cc}")
    areads(0)
    for ks in range(20):
        if ks + 1 < 20:
            areads(ks + 1)
            a(f"s_waitcnt vmcnt({20 - ks}) lgkmcnt(10)")
        else:
            a("s_waitcnt vmcnt(0) lgkmcnt(0)")
        mf(ks)
    st()
    for i in range(4): a(f"v_readfirstlane_b32 s{44+i}, v{8+i}")
    a("s_lshr_b32 s33, s57, 4")
    for tok in range(2):
        a(f"s_lshr_b32 s38, s{44+tok}, 4")
        a("s_cmp_lg_u32 s38, s33")
        a(f"s_cbranch_scc1 K2_NOMOE{tok}")
        a(f"s_and_b32 s38, s{44+tok}, 15")
        a("v_cmp_eq_u32 vcc, s38, v3")
        a("s_and_saveexec_b64 s[40:41], vcc")
        a("v_lshlrev_b32 v5, 4, v4")
        a("s_mul_i32 s39, s55, 320")
        a(f"s_add_u32 s39, s39, {WS_YP + tok*2560}")
        for nt in range(5):
            a(f"buffer_load_dwordx4 v[{AF+4*nt}:{AF+4*nt+3}], v5, s[24:27], s39 offen offset:{nt*64} sc1")
        a("s_waitcnt vmcnt(0)")
        for nt in range(5):
            for e in range(4):
                y = AF + 4*nt + e
                a(f"v_cvt_pk_bf16_f32 v{y}, 0, v{y}")
                a(f"v_mul_f32 v{y}, s{46+tok}, v{y}")
                a(f"v_cvt_pk_bf16_f32 v{y}, 0, v{y}")
            for d in range(2):
                xn = XR + 10 + 2*nt + d
                a(f"v_lshlrev_b32 v6, 16, v{xn}")
                a(f"v_and_b32 v7, 0xffff0000, v{xn}")
                a(f"v_add_f32 v6, v6, v{AF+4*nt+2*d}")
                a(f"v_add_f32 v7, v7, v{AF+4*nt+2*d+1}")
                a(f"v_cvt_pk_bf16_f32 v{xn}, v6, v7")
        a("s_mov_b64 exec, s[40:41]")
        a.label(f"K2_NOMOE{tok}")
        a.fence(4)
    for nt in range(5):
        for d in range(2):
            A0 = ACC + 4*nt + 2*d
            x = XR + 2*nt + d; xn = XR + 10 + 2*nt + d
            a(f"v_cvt_pk_bf16_f32 v{A0}, 0, v{A0}")
            a(f"v_cvt_pk_bf16_f32 v{A0+1}, 0, v{A0+1}")
            a(f"v_lshlrev_b32 v6, 16, v{x}")
            a(f"v_and_b32 v7, 0xffff0000, v{x}")
            a(f"v_add_f32 v{A0}, v{A0}, v6")
            a(f"v_add_f32 v{A0+1}, v{A0+1}, v7")
            a(f"v_cvt_pk_bf16_f32 v{A0}, 0, v{A0}")
            a(f"v_cvt_pk_bf16_f32 v{A0+1}, 0, v{A0+1}")
            a(f"v_lshlrev_b32 v6, 16, v{xn}")
            a(f"v_and_b32 v7, 0xffff0000, v{xn}")
            a(f"v_add_f32 v{A0}, v{A0}, v6")
            a(f"v_add_f32 v{A0+1}, v{A0+1}, v7")
            a(f"v_cvt_pk_bf16_f32 v{x}, v{A0}, v{A0+1}")
        a(f"buffer_store_dwordx2 v[{XR+2*nt}:{XR+2*nt+1}], v16, s[20:23], 0 offen offset:{nt*32}")
    if instr:
        a("s_waitcnt vmcnt(0)")
        st()
        st.dump(1, 30, 2)
    a("s_endpgm")
    for t in (0, 4):
        a.label(f"K2_RC{t}")
        a("s_call_b64 s[60:61], K2_RECENTER")
        a(f"s_branch K2_NR{t}")
    a.label("K2_RECENTER")
    a.fence(16)
    a("s_add_u32 s72, s72, 1")
    mm(O[1], V0, PP[1], O[1])
    mm(O[1], V0+4, PP[1]+4, O[1])
    for i in range(8): a(f"v_mov_b32 v{PP[1]+i}, 0")
    for sd in range(2):
        a(f"v_frexp_exp_i32_f32 v{T}, v{O[sd]+12}")
        a(f"v_sub_u32 v{T}, {L_TARGET+1}, v{T}")
        for i in range(13): a(f"v_ldexp_f32 v{O[sd]+i}, v{O[sd]+i}, v{T}")
        a(f"v_cvt_f32_i32 v{T}, v{T}")
        a(f"v_add_f32 v{NEG[sd]}, v{NEG[sd]}, v{T}")
        if sd == 0:
            for i in range(16): a(f"v_add_f32 v{S[0]+i}, v{S[0]+i}, v{T}")
        split_neg(sd)
    a("s_nop 3")
    a("s_setpc_b64 s[60:61]")
    gen_producer(a, vDma)
    a.label("K2_END")
    a("s_endpgm")
    return a.text(), K2F_VGPR

def gen_producer(a, vDma):
    a.label("K2_KVDMA")
    for g in range(6):
        a(f"s_add_u32 m0, s42, {g*4096}")
        a(f"s_add_u32 s48, s43, {(g % 3)*4096 + (g // 3)*(WS_V - WS_K)}")
        for i in range(4):
            a(f"buffer_load_dwordx4 v{vDma}, s[24:27], s48 offen offset:{i*1024} lds")
    a("s_add_u32 s43, s43, 12288")
    a("s_mov_b32 s45, s40")
    a("s_mov_b32 s40, s41")
    a("s_mov_b32 s41, s42")
    a("s_mov_b32 s42, s45")
    a("s_setpc_b64 s[60:61]")
    a.label("K2_WODMA")
    for ii in range(5):
        a(f"s_add_u32 m0, s59, {ii*1024}")
        a(f"buffer_load_dwordx4 v{10+ii}, s[16:19], s58 offen lds")
    a("s_add_u32 s58, s58, 40960")
    a("s_add_u32 s59, s59, 5120")
    a("s_setpc_b64 s[62:63]")
    def kv(): a("s_call_b64 s[60:61], K2_KVDMA")
    def wo(n):
        for _ in range(n): a("s_call_b64 s[62:63], K2_WODMA")
    a.label("K2_PROD")
    a.fence(4)
    a("s_load_dwordx4 s[64:67], s[0:1], 40")
    a("s_load_dwordx2 s[68:69], s[0:1], 56")
    a(f"s_mov_b32 s40, {2*KVB}")
    a("s_mov_b32 s41, 0")
    a(f"s_mov_b32 s42, {KVB}")
    a("s_add_u32 s43, s32, 12288")
    kv()
    srd(a, 16, 6, 819200)
    for ii in range(5):
        a(f"v_add_u32 v5, {ii*64}, v2")
        a("v_mul_u32_u24 v6, 52429, v5")
        a("v_lshrrev_b32 v6, 19, v6")
        a("v_mul_u32_u24 v7, 10, v6")
        a("v_sub_u32 v7, v5, v7")
        a("v_and_b32 v8, 3, v6")
        a("v_bfe_u32 v9, v6, 2, 2")
        a("v_lshl_add_u32 v8, v9, 3, v8")
        a("v_lshrrev_b32 v9, 4, v6")
        a("v_lshl_add_u32 v6, v9, 2, v8")
        a("v_mul_u32_u24 v6, 1280, v6")
        a("v_lshl_add_u32 v6, v7, 4, v6")
        a(f"v_add_u32 v{10+ii}, s56, v6")
    a("s_mov_b32 s58, 0")
    a(f"s_mov_b32 s59, {REG}")
    a("s_and_b32 s51, s2, 7")
    a("s_mul_i32 s51, s51, 14")
    a("s_lshr_b32 s45, s2, 3")
    a("s_add_u32 s51, s51, s45")
    a("s_cmp_ge_u32 s45, 14")
    a("s_cbranch_scc1 K2_PPLAIN")
    a(f"s_cmp_ge_u32 s51, {NM2}")
    a("s_cbranch_scc1 K2_PPLAIN")
    a(f"s_mov_b32 s45, {WS_R}")
    for jx in range(8):
        if jx == 4: a(f"s_mov_b32 s45, {WS_R + 4096}")
        a(f"buffer_load_dwordx4 v[{32+4*jx}:{35+4*jx}], v{vDma}, s[24:27], s45 offen offset:{(jx%4)*1024}")
    a("s_waitcnt vmcnt(32) lgkmcnt(0)")
    a("s_barrier")
    srd(a, 84, 64, 640*3456)
    srd(a, 88, 66, 640*3456)
    srd(a, 92, 68, 1728*1280)
    a("v_lshrrev_b32 v5, 1, v2")
    a("v_mul_u32_u24 v16, 3456, v5")
    a("v_and_b32 v5, 1, v2")
    a("v_lshl_add_u32 v16, v5, 4, v16")
    a("s_lshl_b32 s45, s51, 5")
    a("v_add_u32 v16, s45, v16")
    a("s_waitcnt vmcnt(0)")
    def combine(n1, n2):
        a(f"v_min_u32 v20, v18, v{n1}")
        a(f"v_max_u32 v18, v18, v{n1}")
        a(f"v_max3_u32 v19, v20, v19, v{n2}")
    a("v_max_u32 v18, v32, v33"); a("v_min_u32 v19, v32, v33")
    for p in range(34, 64, 2):
        a(f"v_max_u32 v21, v{p}, v{p+1}"); a(f"v_min_u32 v22, v{p}, v{p+1}")
        combine(21, 22)
    for stp in (1, 2, 4, 8, 16, 32):
        a(f"v_xor_b32 v23, {stp}, v2")
        a("v_lshlrev_b32 v23, 2, v23")
        a("ds_bpermute_b32 v21, v23, v18")
        a("ds_bpermute_b32 v22, v23, v19")
        a("s_waitcnt lgkmcnt(0)")
        combine(21, 22)
    a("v_readfirstlane_b32 s70, v18")
    a("v_readfirstlane_b32 s71, v19")
    a("s_and_b32 s46, s70, 0xffff"); a("s_sub_u32 s46, 2047, s46")
    a("s_and_b32 s47, s71, 0xffff"); a("s_sub_u32 s47, 2047, s47")
    def wchunk(t0, t1):
        for t in range(t0, t1):
            a(f"s_mov_b32 s45, {t*110592}")
            a(f"s_mov_b32 m0, {WG_ + t*1024}")
            a("buffer_load_dwordx4 v16, s[84:87], s45 offen lds")
            a(f"s_mov_b32 m0, {WU_ + t*1024}")
            a("buffer_load_dwordx4 v16, s[88:91], s45 offen lds")
    for tok in range(2):
        a(f"s_mul_i32 s45, s{46+tok}, 1280")
        a(f"s_add_u32 s45, s45, {WS_XN}")
        a(f"s_mov_b32 m0, {XS_ + tok*1280}")
        a(f"buffer_load_dwordx4 v{vDma}, s[24:27], s45 offen lds")
        a("s_mov_b64 exec, 0xffff")
        a(f"buffer_load_dwordx4 v{vDma}, s[24:27], s45 offen offset:1024 lds")
        a("s_mov_b64 exec, -1")
    wchunk(0, 8)
    a("s_barrier")
    kv()
    wchunk(8, 20)
    a("s_waitcnt vmcnt(24)")
    a("s_barrier")
    kv()
    a("s_mul_i32 s45, s51, 20480")
    for g in range(5):
        a(f"s_mov_b32 m0, {WD_ + g*4096}")
        for i in range(4):
            a(f"buffer_load_dwordx4 v{vDma}, s[92:95], s45 offen offset:{i*1024} lds")
        if g < 4: a("s_add_u32 s45, s45, 4096")
    a("s_waitcnt vmcnt(20)")
    a("s_barrier")
    kv()
    a("v_lshrrev_b32 v4, 4, v2")
    a("v_and_b32 v5, 1, v2")
    a("v_mul_u32_u24 v20, 1280, v5")
    a("v_lshl_add_u32 v20, v4, 3, v20")
    a(f"v_add_u32 v20, {XS_}, v20")
    a("v_bfe_u32 v6, v2, 2, 2")
    a("v_lshl_add_u32 v6, v4, 2, v6")
    a("v_and_b32 v7, 3, v2")
    a("v_lshlrev_b32 v21, 5, v6")
    a("v_lshl_add_u32 v21, v7, 3, v21")
    a(f"v_add_u32 v21, {WG_}, v21")
    a("v_mul_u32_u24 v22, 1280, v6")
    a("v_lshl_add_u32 v22, v7, 3, v22")
    a(f"v_add_u32 v22, {WD_}, v22")
    for i in range(8): a(f"v_mov_b32 v{24+i}, 0")
    a("s_mov_b32 s45, 0")
    a.label("K2_GU")
    for u in range(2):
        b = 32 + u*12
        a(f"ds_read_b64 v[{b}:{b+1}], v20 offset:{u*64}")
        a(f"ds_read_b64 v[{b+2}:{b+3}], v20 offset:{u*64+32}")
        for mat in range(2):
            a(f"ds_read_b64_tr_b16 v[{b+4+4*mat}:{b+5+4*mat}], v21 offset:{mat*20480 + u*1024}")
            a(f"ds_read_b64_tr_b16 v[{b+6+4*mat}:{b+7+4*mat}], v21 offset:{mat*20480 + u*1024 + 512}")
    a("v_add_u32 v20, 128, v20")
    a("v_add_u32 v21, 2048, v21")
    a("s_waitcnt lgkmcnt(0)")
    for u in range(2):
        b = 32 + u*12
        for mat in range(2):
            a(f"v_mfma_f32_16x16x32_bf16 v[{24+4*mat}:{27+4*mat}], v[{b}:{b+3}], v[{b+4+4*mat}:{b+7+4*mat}], v[{24+4*mat}:{27+4*mat}]")
    a("s_add_u32 s45, s45, 1")
    a("s_cmp_lt_u32 s45, 10")
    a("s_cbranch_scc1 K2_GU")
    a("s_waitcnt vmcnt(0)")
    a("s_barrier")
    kv()
    for tok in range(2):
        g = 24 + tok; u = 28 + tok
        a(f"v_cvt_pk_bf16_f32 v{g}, 0, v{g}")
        a(f"v_cvt_pk_bf16_f32 v{u}, 0, v{u}")
        a(f"v_mul_f32 v32, {f32(-LOG2E)}, v{g}")
        a("v_exp_f32 v32, v32")
        a("v_add_f32 v32, 1.0, v32")
        a("v_rcp_f32 v32, v32")
        a(f"v_mul_f32 v32, v{g}, v32")
        a("v_cvt_pk_bf16_f32 v32, 0, v32")
        a(f"v_mul_f32 v32, v32, v{u}")
        a(f"v_cvt_pk_bf16_f32 v{33+tok}, v32, 0")
    a("v_lshlrev_b32 v23, 1, v2")
    a(f"v_add_u32 v23, {HB_}, v23")
    a("s_mov_b64 exec, 0xffff")
    a("ds_write_b16 v23, v33")
    a("ds_write_b16 v23, v34 offset:32")
    a("s_mov_b64 exec, -1")
    a("v_lshlrev_b32 v23, 5, v5")
    a("v_lshl_add_u32 v23, v4, 3, v23")
    a(f"v_add_u32 v23, {HB_}, v23")
    a("s_waitcnt lgkmcnt(0)")
    a("ds_read_b64 v[24:25], v23")
    a("v_mov_b32 v26, 0"); a("v_mov_b32 v27, 0")
    for q in range(4):
        a(f"v_mov_b32 v{34+4*q}, 0"); a(f"v_mov_b32 v{35+4*q}, 0")
    a("v_lshlrev_b32 v23, 2, v2")
    a(f"s_mov_b32 s46, {WS_YP}")
    a("s_mov_b32 s45, 0")
    a("s_waitcnt vmcnt(0)")
    a.label("K2_DN")
    for q in range(4):
        a(f"ds_read_b64_tr_b16 v[{32+4*q}:{33+4*q}], v22 offset:{q*32}")
    a("v_add_u32 v22, 128, v22")
    a("s_waitcnt lgkmcnt(0)")
    for q in range(4):
        a(f"v_mfma_f32_16x16x32_bf16 v[{48+4*q}:{51+4*q}], v[24:27], v[{32+4*q}:{35+4*q}], 0")
    a("s_mov_b64 exec, 0xffff")
    for q in range(4):
        for tok in range(2):
            a(f"buffer_atomic_add_f32 v{48+4*q+tok}, v23, s[24:27], s46 offen offset:{tok*2560 + q*64}")
    a("s_mov_b64 exec, -1")
    a("s_add_u32 s46, s46, 256")
    a("s_add_u32 s45, s45, 1")
    a("s_cmp_lt_u32 s45, 10")
    a("s_cbranch_scc1 K2_DN")
    a("s_cmp_lg_u32 s51, 0")
    a("s_cbranch_scc1 K2_NOIDX")
    for tok in range(2):
        k = 70 + tok
        a(f"s_and_b32 s45, s{k}, 0xffff")
        a("s_sub_u32 s45, 2047, s45")
        a(f"v_mov_b32 v{32+tok}, s45")
        a(f"s_and_b32 s45, s{k}, 0xffff0000")
        a("s_xor_b32 s46, s45, 0x80000000")
        a("s_xor_b32 s47, s45, 0xffff0000")
        a("s_bitcmp1_b32 s45, 31")
        a("s_cselect_b32 s45, s46, s47")
        a(f"v_mov_b32 v{34+tok}, s45")
        a(f"v_mul_f32 v{34+tok}, {f32(-LOG2E)}, v{34+tok}")
        a(f"v_exp_f32 v{34+tok}, v{34+tok}")
        a(f"v_add_f32 v{34+tok}, 1.0, v{34+tok}")
        a(f"v_rcp_f32 v{34+tok}, v{34+tok}")
        a(f"v_cvt_pk_bf16_f32 v{34+tok}, 0, v{34+tok}")
    a("v_mov_b32 v23, 0")
    a(f"s_mov_b32 s45, {WS_IDX}")
    a("s_mov_b64 exec, 1")
    a("buffer_store_dwordx4 v[32:35], v23, s[24:27], s45 offen sc1")
    a("s_mov_b64 exec, -1")
    a.label("K2_NOIDX")
    a.fence(4)
    a("s_barrier")
    kv()
    wo(5)
    a("s_waitcnt vmcnt(25)")
    a("s_barrier")
    a("v_mov_b32 v23, 0")
    a("v_mov_b32 v24, 1")
    a(f"s_mov_b32 s45, {WS_CNT + 2048}")
    a("s_mov_b64 exec, 1")
    a("buffer_atomic_add v24, v23, s[24:27], s45 offen sc1")
    a("s_mov_b64 exec, -1")
    kv()
    wo(5)
    a("s_waitcnt vmcnt(25)")
    a("s_barrier")
    wo(6)
    a("s_waitcnt vmcnt(30)")
    a("s_barrier")
    a("s_branch K2_PTAIL")
    a.label("K2_PPLAIN")
    a.fence(4)
    a("s_waitcnt vmcnt(24) lgkmcnt(0)")
    a("s_barrier")
    a("s_mov_b32 s44, 0")
    a("s_waitcnt vmcnt(0)")
    a.label("K2_PLOOP")
    a("s_barrier")
    a("s_cmp_ge_u32 s44, 6")
    a("s_cbranch_scc1 K2_PNODMA")
    kv()
    a.label("K2_PNODMA")
    a("s_cmp_lg_u32 s50, 0")
    a("s_cbranch_scc1 K2_PNOWO")
    wo(2)
    a("s_waitcnt vmcnt(10)")
    a("s_branch K2_PNEXT")
    a.label("K2_PNOWO")
    a("s_waitcnt vmcnt(0)")
    a.label("K2_PNEXT")
    a("s_add_u32 s44, s44, 1")
    a("s_cmp_lt_u32 s44, 8")
    a("s_cbranch_scc1 K2_PLOOP")
    a.label("K2_PTAIL")
    a.fence(4)
    a("v_mov_b32 v20, 0")
    a("s_mov_b32 s44, 0")
    a(f"s_mov_b32 s47, {WS_CNT + 2048}")
    a("buffer_load_dword v26, v20, s[24:27], s47 offen sc1")
    a("s_barrier")
    a("s_cmp_lg_u32 s50, 0")
    a("s_cbranch_scc1 K2_PGO")
    a(f"v_mov_b32 v28, {F_FLAG}")
    a("ds_read_b32 v29, v28")
    a("s_waitcnt lgkmcnt(0)")
    a("v_readfirstlane_b32 s46, v29")
    a("s_cmp_eq_u32 s46, 0")
    a("s_cbranch_scc1 K2_PGO")
    a("s_mov_b32 s50, 1")
    a("s_mov_b32 s43, s32")
    a("s_mov_b32 s44, 0")
    a.label("K2_PMAX")
    a("s_barrier")
    a("s_mov_b32 s42, 0")
    kv()
    a("s_waitcnt vmcnt(0)")
    a("s_barrier")
    a("s_add_u32 s44, s44, 1")
    a("s_cmp_lt_u32 s44, 8")
    a("s_cbranch_scc1 K2_PMAX")
    a("s_barrier")
    a(f"s_mov_b32 s40, {KVB}")
    a(f"s_mov_b32 s41, {2*KVB}")
    a("s_mov_b32 s42, 0")
    a("s_mov_b32 s43, s32")
    kv(); kv()
    a("s_branch K2_PPLAIN")
    a.label("K2_PGO")
    a.fence(4)
    a("s_mov_b32 s59, 0")
    wo(4)
    a("s_barrier")
    a("v_mov_b32 v20, 0")
    a("s_mov_b64 exec, 1")
    a("s_lshl_b32 s45, s29, 8")
    a(f"s_add_u32 s45, s45, {WS_CNT}")
    a.label("K2_POLL2")
    a("buffer_load_dword v22, v20, s[24:27], s45 offen sc1")
    a("s_waitcnt vmcnt(0)")
    a("v_readfirstlane_b32 s46, v22")
    a("s_cmp_ge_u32 s46, 32")
    a("s_cbranch_scc1 K2_PDONE")
    a(f"s_sleep {POLL_SLEEP}")
    a("s_add_u32 s44, s44, 1")
    a(f"s_cmp_lt_u32 s44, {SPIN_MAX}")
    a("s_cbranch_scc1 K2_POLL2")
    a.label("K2_PDONE")
    a(f"s_mov_b32 s47, {WS_CNT + 2048}")
    a.label("K2_POLL1")
    a("v_readfirstlane_b32 s46, v26")
    a(f"s_cmp_ge_u32 s46, {NM2}")
    a("s_cbranch_scc1 K2_POLL1_OK")
    a("s_add_u32 s44, s44, 1")
    a(f"s_cmp_ge_u32 s44, {SPIN_MAX}")
    a("s_cbranch_scc1 K2_POLL1_OK")
    a("s_sleep 4")
    a("buffer_load_dword v26, v20, s[24:27], s47 offen sc1")
    a("s_waitcnt vmcnt(0)")
    a("s_branch K2_POLL1")
    a.label("K2_POLL1_OK")
    a("s_barrier")
```

```python
import sys
from gen import *
from k1 import *
from k2f import *
out = sys.argv[1] if len(sys.argv) > 1 else "parallel_sum__softmax_full_mha__moe_arch_mod__prompt.s"
instr = len(sys.argv) > 2
b1, v1 = gen_k1b(instr, KEYS=True, QSCALE=C32*LOG2E)
b2, v2 = gen_k2f(instr)
ks = [("k1_kernel", b1, v1, 256, 512, K1B_LDS), ("k2_kernel", b2, v2, 256, 320, K2F_LDS)]
build(ks, out)
```

```python
import sys, struct
sys.path.insert(0, "gen")
from asmlib import Asm

def f32(x): return "0x%08x" % struct.unpack("<I", struct.pack("<f", x))[0]

WS_Q = 0; WS_K = 0x300000; WS_V = 0x600000; WS_XN = 0x900000; WS_O = 0xB80000
WS_R = 0xE00000; WS_IDX = 0xE02000; WS_YP = 0xE10000; WS_SIZE = 0x1000000
HEADB = 98304
RB = 40
HB2 = 2048 * RB
C_K = 32 * HB2; C_V = 64 * HB2
WS_ST = WS_XN
NM = 54

def srd(a, d, base, size):
    a(f"s_mov_b32 s{d}, s{base}")
    a(f"s_and_b32 s{d+1}, s{base+1}, 0xffff")
    a(f"s_mov_b32 s{d+2}, {size}")
    a(f"s_mov_b32 s{d+3}, 0x00020000")

def dpp_rowsum(a, regs):
    for sh in (8, 4, 2, 1):
        for r in regs:
            a(f"v_add_f32_dpp v{r}, v{r}, v{r} row_ror:{sh} row_mask:0xf bank_mask:0xf")

import os
RT_STAMPS = bool(os.environ.get('RT'))
WS_DBG = 0xE80000
class Stamps:
    def __init__(self, a, on, base=64):
        self.a, self.on, self.n, self.base = a, on, 0, base
    def __call__(self):
        if self.on:
            r = self.base + 2*self.n
            self.a(f"s_memrealtime s[{r}:{r+1}]" if RT_STAMPS else f"s_memtime s[{r}:{r+1}]")
            self.n += 1
    def dump(self, region, wave_sgpr, nwaves_log2, srdr=24):
        if not self.on: return
        a = self.a
        a("s_waitcnt lgkmcnt(0)")
        a("s_mov_b64 exec, 1")
        for i in range(8):
            a(f"v_mov_b32 v{4+i}, " + (f"s{self.base+2*i}" if i < self.n else "0"))
        a(f"s_lshl_b32 s62, s2, {nwaves_log2}")
        a(f"s_add_u32 s62, s62, s{wave_sgpr}")
        a("s_lshl_b32 s62, s62, 5")
        a(f"s_add_u32 s62, s62, {WS_DBG + region*0x20000}")
        a("v_mov_b32 v3, 0")
        a(f"buffer_store_dwordx4 v[4:7], v3, s[{srdr}:{srdr+3}], s62 offen")
        a(f"buffer_store_dwordx4 v[8:11], v3, s[{srdr}:{srdr+3}], s62 offen offset:16")

K1_XN_STRIDE = 1296
K1_WBUF = 64 * K1_XN_STRIDE
K1_LDS = K1_WBUF + 4 * 16384

def gen_k1(instr=False, rot=0):
    a = Asm()
    st = Stamps(a, instr)
    st()
    a("s_cmp_ge_u32 s2, 256")
    a("s_cbranch_scc1 K1_END")
    a("s_load_dwordx4 s[4:7], s[0:1], 0")
    a("s_load_dwordx2 s[8:9], s[0:1], 32")
    a("s_load_dwordx2 s[10:11], s[0:1], 80")
    a("s_and_b32 s28, s2, 7")
    a("s_lshr_b32 s29, s2, 3")
    a("v_lshrrev_b32 v1, 6, v0")
    a("v_and_b32 v2, 63, v0")
    a("v_readfirstlane_b32 s30, v1")
    a("v_and_b32 v3, 15, v2")
    a("v_lshrrev_b32 v9, 4, v2")
    a("v_lshlrev_b32 v4, 4, v1")
    a("v_add_u32 v4, v4, v9")
    a("v_mul_u32_u24 v6, %d, v4" % K1_XN_STRIDE)
    a("v_mul_u32_u24 v4, 1280, v4")
    a("v_lshlrev_b32 v10, 4, v3")
    a("v_add_u32 v4, v4, v10")
    a("v_add_u32 v6, v6, v10")
    a("v_lshrrev_b32 v11, 5, v2")
    a("v_lshl_add_u32 v11, v1, 1, v11")
    a("v_and_b32 v12, 3, v11")
    a("v_lshlrev_b32 v12, 2, v12")
    a("v_and_b32 v13, 31, v2")
    a("v_sub_u32 v13, v13, v12")
    a("v_and_b32 v13, 31, v13")
    a("v_lshlrev_b32 v13, 4, v13")
    a("v_mul_u32_u24 v5, 3840, v11")
    a("v_add_u32 v5, v5, v13")
    a("s_mul_i32 s31, s28, 480")
    a("v_add_u32 v5, s31, v5")
    a("v_mov_b32 v7, 0x3f803f80")
    a("v_mov_b32 v8, 0xffff0000")
    a("s_waitcnt lgkmcnt(0)")
    st()
    srd(a, 12, 4, 2621440)
    srd(a, 16, 6, 2457600)
    srd(a, 20, 8, 1280)
    srd(a, 24, 10, WS_SIZE)
    X = 40; WR = 120
    for i in range(5):
        a(f"buffer_load_dwordx4 v[{WR+4*i}:{WR+4*i+3}], v10, s[20:23], 0 offen offset:{i*256}")
    a("s_mul_i32 s32, s29, 81920")
    for p in range(4):
        if p: a(f"s_add_u32 s{32+p}, s32, {p*5120}")
    for p in range(4):
        for i in range(5):
            r = X + 20*p + 4*i
            a(f"buffer_load_dwordx4 v[{r}:{r+3}], v4, s[12:15], s{32+p} offen offset:{i*256}")
    a("s_lshl_b32 s31, s30, 10")
    a(f"s_add_u32 s31, s31, {K1_WBUF}")
    if rot:
        a(f"s_mul_i32 s41, s29, {rot}")
        a("s_mul_i32 s42, s41, 52429")
        a("s_lshr_b32 s42, s42, 20")
        a("s_mul_i32 s42, s42, 20")
        a("s_sub_u32 s41, s41, s42")
        a("s_mov_b32 s43, s41")
        a("s_mov_b32 s44, s41")
    def dma(c):
        buf = c % 4
        if rot:
            a(f"s_mul_i32 s42, s43, {32*3840}")
            a("s_add_u32 s43, s43, 1")
            a("s_cmp_eq_u32 s43, 20")
            a("s_cselect_b32 s43, 0, s43")
        for t in range(4):
            a(f"s_add_u32 m0, s31, {buf*16384 + t*4096}")
            if rot: a(f"s_add_u32 s40, s42, {8*t*3840}")
            else: a(f"s_mov_b32 s40, {(32*c + 8*t)*3840}")
            a("buffer_load_dwordx4 v5, s[16:19], s40 offen lds")
    for c in range(3): dma(c)
    for p in range(4):
        a(f"s_waitcnt vmcnt({12 + 15 - 5*p})")
        if p == 0: st()
        xr = [X + 20*p + k for k in range(20)]
        for k, r in enumerate(xr):
            acc = 10 + (k & 1)
            c = "0" if k < 2 else f"v{acc}"
            a(f"v_dot2_f32_bf16 v{acc}, v{r}, v7, {c}")
            acc2 = 12 + (k & 1)
            c = "0" if k < 2 else f"v{acc2}"
            a(f"v_dot2_f32_bf16 v{acc2}, v{r}, v{r}, {c}")
        a("v_add_f32 v10, v10, v11")
        a("v_add_f32 v12, v12, v13")
        dpp_rowsum(a, [10, 12])
        a(f"v_mul_f32 v10, {f32(1/640)}, v10")
        a(f"v_mul_f32 v12, {f32(1/640)}, v12")
        a("v_fma_f32 v12, -v10, v10, v12")
        a("v_max_f32 v12, 0, v12")
        a("v_cvt_pk_bf16_f32 v14, 0, v10")
        a("v_cvt_pk_bf16_f32 v12, 0, v12")
        a("v_add_f32 v12, 0x3727c5ac, v12")
        a("v_cvt_pk_bf16_f32 v12, 0, v12")
        a("v_sqrt_f32 v12, v12")
        a("v_cvt_pk_bf16_f32 v12, 0, v12")
        a("v_rcp_f32 v16, v12")
        a("v_sub_f32 v14, 0, v14")
        a("v_mov_b32 v15, v14")
        a("v_mov_b32 v17, v16")
        for k, r in enumerate(xr):
            t = 20 + 2*(k & 3)
            a(f"v_lshlrev_b32 v{t}, 16, v{r}")
            a(f"v_and_b32 v{t+1}, v8, v{r}")
            a(f"v_pk_add_f32 v[{t}:{t+1}], v[{t}:{t+1}], v[14:15]")
            a(f"v_cvt_pk_bf16_f32 v{r}, v{t}, v{t+1}")
            a(f"v_lshlrev_b32 v{t}, 16, v{r}")
            a(f"v_and_b32 v{t+1}, v8, v{r}")
            a(f"v_pk_mul_f32 v[{t}:{t+1}], v[{t}:{t+1}], v[16:17]")
            a(f"v_cvt_pk_bf16_f32 v{r}, v{t}, v{t+1}")
        for i in range(5):
            r = X + 20*p + 4*i
            a(f"ds_write_b128 v6, v[{r}:{r+3}] offset:{p*4*K1_XN_STRIDE + i*256}")
    st()
    a("s_lshr_b32 s36, s28, 1")
    a("s_cmp_lg_u32 s36, s30")
    a("s_cbranch_scc1 K1_NOSTORE")
    a("s_and_b32 s36, s28, 1")
    a("s_cmp_lg_u32 s36, 0")
    a("s_cbranch_scc1 K1_ST1")
    for half in range(2):
        if half == 1:
            a("s_branch K1_NOSTORE")
            a.label("K1_ST1")
            a.fence(4)
        for p in (2*half, 2*half+1):
            a(f"s_add_u32 s36, s{32+p}, {WS_XN}")
            for i in range(5):
                r = X + 20*p + 4*i
                a(f"buffer_store_dwordx4 v[{r}:{r+3}], v4, s[24:27], s36 offen offset:{i*256}")
            for k in range(20):
                acc = 10 + (k & 1)
                c = "0" if k < 2 else f"v{acc}"
                a(f"v_dot2_f32_bf16 v{acc}, v{X+20*p+k}, v{WR+k}, {c}")
            a("v_add_f32 v10, v10, v11")
            dpp_rowsum(a, [10])
            a("v_cvt_pk_bf16_f32 v10, 0, v10")
            a("v_lshl_add_u32 v11, v1, 4, v9")
            a(f"v_add_u32 v11, {4*p}, v11")
            a("v_lshlrev_b32 v11, 2, v11")
            a("s_lshl_b32 s36, s29, 8")
            a(f"s_add_u32 s36, s36, {WS_R}")
            a("v_cmp_eq_u32 vcc, 0, v3")
            a("s_and_saveexec_b64 s[38:39], vcc")
            a("buffer_store_dword v10, v11, s[24:27], s36 offen")
            a("s_mov_b64 exec, s[38:39]")
    a.label("K1_NOSTORE")
    a.fence(4)
    a("s_lshl_b32 s36, s28, 2")
    a("s_add_u32 s36, s36, s30")
    a(f"s_mul_i32 s36, s36, {HEADB}")
    a("s_mul_i32 s37, s29, %d" % (64*48))
    a("s_add_u32 s36, s36, s37")
    a(f"s_add_u32 s36, s36, {WS_V + 40}")
    a("v_mul_u32_u24 v10, 48, v2")
    a("v_mov_b32 v12, v7")
    a("v_mov_b32 v13, v7")
    a("buffer_store_dwordx2 v[12:13], v10, s[24:27], s36 offen")
    a(f"s_sub_u32 s36, s36, {WS_V - WS_K}")
    a("buffer_store_dwordx2 v[12:13], v10, s[24:27], s36 offen")
    a("s_cmp_lg_u32 s2, 0")
    a("s_cbranch_scc1 K1_NOZ")
    for i in range(4): a(f"v_mov_b32 v{12+i}, 0")
    a("v_lshlrev_b32 v10, 4, v0")
    a(f"s_mov_b32 s36, {WS_YP}")
    a("buffer_store_dwordx4 v[12:15], v10, s[24:27], s36 offen")
    a(f"s_mov_b32 s36, {WS_YP + 4096}")
    a("buffer_store_dwordx4 v[12:15], v10, s[24:27], s36 offen")
    a.label("K1_NOZ")
    a.fence(4)
    a("v_lshrrev_b32 v10, 5, v2")
    a("v_bfe_u32 v11, v2, 4, 1")
    a("v_bfe_u32 v12, v2, 2, 2")
    a("v_and_b32 v13, 3, v2")
    a("v_lshl_add_u32 v14, v10, 3, v12")
    a("v_lshlrev_b32 v14, 9, v14")
    a("v_and_b32 v15, 1, v13")
    a("v_lshl_add_u32 v14, v15, 3, v14")
    a(f"v_add_u32 v14, {K1_WBUF}, v14")
    a("v_lshlrev_b32 v15, 3, v1")
    a("v_lshl_add_u32 v15, v11, 1, v15")
    a("v_lshrrev_b32 v16, 1, v13")
    a("v_add_u32 v15, v15, v16")
    a("v_lshl_add_u32 v15, v12, 2, v15")
    a("v_and_b32 v16, 31, v15")
    a("v_lshl_add_u32 v30, v16, 4, v14")
    a("v_add_u32 v15, 4, v15")
    a("v_and_b32 v16, 31, v15")
    a("v_lshl_add_u32 v31, v16, 4, v14")
    a("v_and_b32 v15, 31, v2")
    a(f"v_mul_u32_u24 v32, {K1_XN_STRIDE}, v15")
    a("v_lshl_add_u32 v32, v10, 4, v32")
    SETS = [(40, 56), (72, 88)]
    ACC = 104
    def reads(c):
        A0, B0 = SETS[c % 2]
        buf = c % 4
        if rot:
            a("s_lshl_b32 s45, s44, 6")
            a("v_add_u32 v33, s45, v32")
            a("s_add_u32 s44, s44, 1")
            a("s_cmp_eq_u32 s44, 20")
            a("s_cselect_b32 s44, 0, s44")
        for ks in range(2):
            for aa in range(2):
                for hi in range(2):
                    r = A0 + (ks*2 + aa)*4 + hi*2
                    a(f"ds_read_b64_tr_b16 v[{r}:{r+1}], v{30+aa} offset:{buf*16384 + ks*8192 + hi*2048}")
            for b in range(2):
                r = B0 + (ks*2 + b)*4
                if rot: a(f"ds_read_b128 v[{r}:{r+3}], v33 offset:{b*32*K1_XN_STRIDE + ks*32}")
                else: a(f"ds_read_b128 v[{r}:{r+3}], v32 offset:{b*32*K1_XN_STRIDE + c*64 + ks*32}")
    def mfmas(c):
        A0, B0 = SETS[c % 2]
        for ks in range(2):
            for aa in range(2):
                for b in range(2):
                    d = ACC + (aa*2 + b)*16
                    ra = A0 + (ks*2 + aa)*4; rb = B0 + (ks*2 + b)*4
                    cc = "0" if (c == 0 and ks == 0) else f"v[{d}:{d+15}]"
                    a(f"v_mfma_f32_32x32x16_bf16 v[{d}:{d+15}], v[{ra}:{ra+3}], v[{rb}:{rb+3}], {cc}")
    NCH = 20
    for c in range(NCH):
        younger = min(NCH-1, c+2) - c
        a(f"s_waitcnt vmcnt({4*younger}) lgkmcnt(0)")
        a("s_barrier")
        if c in (0, 10): st()
        if c + 3 < NCH: dma(c + 3)
        reads(c)
        if c > 0: mfmas(c - 1)
    a("s_waitcnt lgkmcnt(0)")
    mfmas(NCH - 1)
    st()
    a("s_mul_i32 s36, s28, 60")
    a("s_lshl_b32 s37, s30, 4")
    a("s_add_u32 s36, s36, s37")
    a("v_add_u32 v14, s36, v10")
    a("v_and_b32 v15, 31, v2")
    a("v_mul_u32_u24 v15, 48, v15")
    a("s_mul_i32 s37, s29, %d" % (64*48))
    a(f"s_add_u32 s38, s37, {32*48}")
    a(f"s_mov_b32 s39, {HEADB}")
    for aa in range(2):
        for c in range(4):
            o = 40 + aa*4 + c
            a(f"v_add_u32 v16, {8*aa + 2*c}, v14")
            a("v_mul_u32_u24 v17, 52429, v16")
            a("v_lshrrev_b32 v17, 18, v17")
            a("v_mul_u32_u24 v18, 5, v17")
            a("v_sub_u32 v18, v16, v18")
            a("v_mul_lo_u32 v17, v17, s39")
            a("v_lshl_add_u32 v17, v18, 3, v17")
            a(f"v_add_u32 v{o}, v17, v15")
    for aa in range(2):
        for c in range(4):
            if aa == 1 and c == 2:
                a("s_cmp_eq_u32 s30, 3")
                a("s_cbranch_scc1 K1_FIN")
            for b in range(2):
                d = ACC + (aa*2 + b)*16 + 4*c
                t = 50 + 2*b
                a(f"v_cvt_pk_bf16_f32 v{t}, v{d}, v{d+1}")
                a(f"v_cvt_pk_bf16_f32 v{t+1}, v{d+2}, v{d+3}")
                a(f"buffer_store_dwordx2 v[{t}:{t+1}], v{40+aa*4+c}, s[24:27], s{37+b} offen")
    a.label("K1_FIN")
    if instr:
        a("s_waitcnt vmcnt(0)")
        st()
        st.dump(0, 30, 2)
    a.label("K1_END")
    a("s_endpgm")
    return a.text(), 168

def kernel_block(name, body):
    return f""".globl {name}
.p2align 8
.type {name},@function
{name}:
{body}"""

def desc(name, vgpr, sgpr=102):
    return f""".amdhsa_kernel {name}
  .amdhsa_next_free_vgpr {vgpr}
  .amdhsa_next_free_sgpr {sgpr}
  .amdhsa_accum_offset {(vgpr+3)//4*4}
  .amdhsa_group_segment_fixed_size 0
  .amdhsa_kernarg_size 88
  .amdhsa_user_sgpr_count 2
  .amdhsa_user_sgpr_kernarg_segment_ptr 1
  .amdhsa_system_sgpr_workgroup_id_x 1
  .amdhsa_float_denorm_mode_32 3
.end_amdhsa_kernel
"""

HEADER = open("parallel_sum__softmax_full_mha__moe_arch_mod__prompt.s.ref").read().split("; Override")[0]

def build(kernels, path):
    s = HEADER
    for (name, body, vgpr, grid, block, lds) in kernels:
        s += f"; @launch kernel={name} grid=({grid},1,1) block=({block},1,1) lds={lds}\n"
    s += '.amdgcn_target "amdgcn-amd-amdhsa--gfx950"\n.text\n'
    for (name, body, vgpr, grid, block, lds) in kernels:
        s += kernel_block(name, body)
    s += '.section .rodata,"a"\n'
    for (name, body, vgpr, grid, block, lds) in kernels:
        s += ".p2align 6\n" + desc(name, vgpr)
    open(path, "w").write(s)

if __name__ == "__main__":
    b1, v1 = gen_k1()
    ks = [("k1_kernel", b1, v1, 256, 256, K1_LDS)]
    build(ks, "k1only.s")
```

```python
from asmlib import Asm
from gen import *

NBUF = 6
XR_N = 6
WB = XR_N * 8192
K1_STAT = WB + NBUF * 16384
K1_CS = K1_STAT + 4096
K1C_LDS = K1_CS + 1024
K1C_VGPR = 176

def code_prefetch(a, first, last_label, nins, vtmp, stmp, tag):
    a(f"s_getpc_b64 s[{stmp}:{stmp+1}]")
    a.raw(f".Lpc_{tag}:")
    if first is not None:
        a(f"s_add_u32 s{stmp}, s{stmp}, {first} - .Lpc_{tag}")
        a(f"s_addc_u32 s{stmp+1}, s{stmp+1}, 0")
    a(f"v_lshlrev_b32 v{vtmp}, 6, v2")
    for i in range(nins):
        if i: a(f"v_add_u32 v{vtmp}, 4096, v{vtmp}")
        a(f"global_load_dword v{vtmp+1+i}, v{vtmp}, s[{stmp}:{stmp+1}]")

def gen_k1c(instr=False, rot=3, J=4, rotj=2, QSCALE=1.0, pf=True):
    a = Asm()
    st = Stamps(a, instr)
    st()
    a("s_cmp_ge_u32 s2, 256")
    a("s_cbranch_scc1 K1_END")
    if pf:
        a("s_getpc_b64 s[46:47]")
        a.raw(".Lpc_k1:")
        a("v_lshlrev_b32 v3, 6, v0")
        a("v_min_u32 v3, K2_END - .Lpc_k1, v3")
        a("global_load_dword v175, v3, s[46:47]")
    a("s_load_dwordx4 s[4:7], s[0:1], 0")
    a("s_load_dwordx2 s[8:9], s[0:1], 32")
    a("s_load_dwordx2 s[10:11], s[0:1], 80")
    lj = {1: 0, 2: 1, 4: 2, 8: 3}[J]
    a("s_and_b32 s40, s2, 7")
    a("s_lshr_b32 s41, s2, 3")
    a(f"s_and_b32 s28, s40, {8//J - 1}")
    a(f"s_lshl_b32 s28, s28, {lj}")
    a(f"s_and_b32 s42, s41, {J-1}")
    a("s_add_u32 s28, s28, s42")
    a(f"s_lshr_b32 s29, s40, {3-lj}")
    a(f"s_lshl_b32 s29, s29, {5-lj}")
    a(f"s_lshr_b32 s42, s41, {lj}")
    a("s_add_u32 s29, s29, s42")
    a("v_lshrrev_b32 v1, 6, v0")
    a("v_and_b32 v2, 63, v0")
    a("v_readfirstlane_b32 s30, v1")
    a(f"s_mul_i32 s41, s29, {rot}")
    a(f"s_mul_i32 s42, s28, {rotj}")
    a("s_add_u32 s41, s41, s42")
    a("s_mul_i32 s42, s41, 52429")
    a("s_lshr_b32 s42, s42, 19")
    a("s_mul_i32 s42, s42, 10")
    a("s_sub_u32 s43, s41, s42")
    a("s_cmp_lt_u32 s30, 4")
    a("s_cbranch_scc1 K1_COMP")
    a("s_setprio 3")
    NCH = 20
    a("s_sub_u32 s31, s30, 4")
    a("s_and_b32 s32, s31, 1")
    a("s_cmp_lt_u32 s31, 2")
    a("s_cbranch_scc1 K1_PX")
    a("s_lshl_b32 s43, s43, 1")
    a("s_lshl_b32 s34, s32, 1")
    a("v_lshrrev_b32 v11, 5, v2")
    a("v_add_u32 v11, s34, v11")
    a("v_lshlrev_b32 v12, 2, v11")
    a("v_and_b32 v13, 31, v2")
    a("v_sub_u32 v13, v13, v12")
    a("v_and_b32 v13, 31, v13")
    a("v_lshlrev_b32 v13, 4, v13")
    a("v_mul_u32_u24 v5, 3840, v11")
    a("v_add_u32 v5, v5, v13")
    a("s_mul_i32 s34, s28, 480")
    a("v_add_u32 v5, s34, v5")
    a("s_lshl_b32 s34, s32, 10")
    a(f"s_add_u32 s34, s34, {WB}")
    a("s_mov_b32 s44, 0")
    a("s_waitcnt lgkmcnt(0)")
    srd(a, 16, 6, 2457600)
    def wc(): a("s_call_b64 s[60:61], K1_WS")
    wc()
    a("s_barrier")
    wc()
    issued = 2
    for c in range(3):
        a(f"s_waitcnt vmcnt({8*(issued - (c+1))})")
        a("s_barrier")
        wc(); wc(); issued += 2
    X = 40; WR = 60
    srd(a, 12, 4, 2621440)
    srd(a, 20, 8, 1280)
    srd(a, 24, 10, WS_SIZE)
    a("s_mul_i32 s33, s29, 81920")
    a("v_mov_b32 v8, 0xffff0000")
    a("v_and_b32 v3, 15, v2")
    a("v_lshrrev_b32 v9, 4, v2")
    a("v_lshlrev_b32 v10, 4, v3")
    a("s_lshl_b32 s35, s28, 3")
    a("s_lshl_b32 s36, s32, 2")
    a("s_add_u32 s35, s35, s36")
    a("v_add_u32 v11, s35, v9")
    a("v_mul_u32_u24 v6, 1280, v11")
    a("v_add_u32 v6, v6, v10")
    for i in range(5):
        a(f"buffer_load_dwordx4 v[{X+4*i}:{X+4*i+3}], v6, s[12:15], s33 offen offset:{i*256}")
        a(f"buffer_load_dwordx4 v[{WR+4*i}:{WR+4*i+3}], v10, s[20:23], 0 offen offset:{i*256}")
    xr = [X + q for q in range(20)]
    pieces = []
    def P(f): pieces.append(f)
    def st_piece(lo, hi):
        def f():
            for r in xr[lo:hi]:
                a(f"v_lshlrev_b32 v20, 16, v{r}")
                a(f"v_and_b32 v21, v8, v{r}")
                a("v_add_f32 v10, v10, v20"); a("v_add_f32 v11, v11, v21")
                a("v_fmac_f32 v12, v20, v20"); a("v_fmac_f32 v13, v21, v21")
        return f
    def sc_piece():
        a("v_add_f32 v10, v10, v11")
        a("v_add_f32 v12, v12, v13")
        dpp_rowsum(a, [10, 12])
        a(f"v_mul_f32 v10, {f32(1/640)}, v10")
        a(f"v_mul_f32 v12, {f32(1/640)}, v12")
        a("v_fma_f32 v12, -v10, v10, v12")
        a("v_max_f32 v12, 0, v12")
        a("v_cvt_pk_bf16_f32 v14, 0, v10")
        a("v_cvt_pk_bf16_f32 v12, 0, v12")
        a("v_add_f32 v12, 0x3727c5ac, v12")
        a("v_cvt_pk_bf16_f32 v12, 0, v12")
        a("v_sqrt_f32 v12, v12")
        a("v_cvt_pk_bf16_f32 v12, 0, v12")
        a("v_rcp_f32 v16, v12")
        a("v_mov_b32 v10, 0"); a("v_mov_b32 v11, 0")
    def nm_piece(lo, hi):
        def f():
            for q in range(lo, hi):
                r = xr[q]; w = WR + q
                a(f"v_lshlrev_b32 v20, 16, v{r}")
                a(f"v_and_b32 v21, v8, v{r}")
                a("v_sub_f32 v20, v20, v14"); a("v_sub_f32 v21, v21, v14")
                a("v_cvt_pk_bf16_f32 v20, 0, v20"); a("v_cvt_pk_bf16_f32 v21, 0, v21")
                a("v_mul_f32 v20, v20, v16"); a("v_mul_f32 v21, v21, v16")
                a(f"v_cvt_pk_bf16_f32 v{r}, v20, v21")
                a(f"v_lshlrev_b32 v20, 16, v{r}"); a(f"v_and_b32 v21, v8, v{r}")
                a(f"v_lshlrev_b32 v22, 16, v{w}"); a(f"v_and_b32 v23, v8, v{w}")
                a("v_fmac_f32 v10, v20, v22"); a("v_fmac_f32 v11, v21, v23")
        return f
    def fin_piece():
        a("v_add_f32 v10, v10, v11")
        dpp_rowsum(a, [10])
        a("v_cvt_pk_bf16_f32 v10, 0, v10")
        a("v_add_u32 v11, s35, v9")
        a("v_ashrrev_i32 v12, 31, v10")
        a("v_or_b32 v12, 0x80000000, v12")
        a("v_xor_b32 v10, v10, v12")
        a("v_and_b32 v10, 0xffff0000, v10")
        a("s_lshl_b32 s36, s29, 6")
        a("v_add_u32 v12, s36, v11")
        a("v_sub_u32 v12, 2047, v12")
        a("v_or_b32 v10, v10, v12")
        a("v_lshlrev_b32 v11, 2, v11")
        a("s_lshl_b32 s36, s29, 8")
        a(f"s_add_u32 s36, s36, {WS_R}")
        a("v_cmp_eq_u32 vcc, 0, v3")
        a("s_and_saveexec_b64 s[38:39], vcc")
        a("buffer_store_dword v10, v11, s[24:27], s36 offen")
        a("v_mov_b32 v15, v16")
        a("v_lshlrev_b32 v11, 1, v11")
        a("s_lshl_b32 s36, s29, 9")
        a(f"s_add_u32 s36, s36, {WS_ST}")
        a("buffer_store_dwordx2 v[14:15], v11, s[24:27], s36 offen")
        a("s_mov_b64 exec, s[38:39]")
    work = {8: [lambda: [a(f"v_mov_b32 v{r}, 0") for r in (10, 11, 12, 13)], st_piece(0, 10)], 9: [st_piece(10, 20)], 10: [sc_piece, nm_piece(0, 4)],
            11: [nm_piece(4, 9)], 12: [nm_piece(9, 14)], 13: [nm_piece(14, 20)], 14: [fin_piece]}
    for c in range(3, 15):
        a(f"s_waitcnt vmcnt({32 + (10 if c <= 7 else 0)})")
        a("s_barrier")
        wc()
        for f in work.get(c, []): f()
    for rem in range(NBUF-2, -1, -1):
        a(f"s_waitcnt vmcnt({8*rem + 2})")
        a("s_barrier")
    a("s_barrier")
    a("s_cmp_lg_u32 s2, 0")
    a("s_cbranch_scc1 K1_COPY")
    a("s_cmp_lg_u32 s31, 3")
    a("s_cbranch_scc1 K1_COPY")
    for i in range(4): a(f"v_mov_b32 v{12+i}, 0")
    a("v_lshlrev_b32 v10, 4, v2")
    for blk in range(3):
        a(f"s_mov_b32 s36, {WS_YP + blk*4096}")
        for i in range(4 if blk < 2 else 1):
            a(f"buffer_store_dwordx4 v[12:15], v10, s[24:27], s36 offen offset:{i*1024}")
    a("s_branch K1_COPY")
    a.label("K1_PX")
    a.fence(2)
    a("s_mul_i32 s33, s29, 81920")
    a("s_lshl_b32 s34, s32, 3")
    a("v_lshrrev_b32 v11, 3, v2")
    a("v_add_u32 v11, s34, v11")
    a("v_mul_u32_u24 v4, 1280, v11")
    a("s_lshl_b32 s34, s32, 2")
    a("v_lshrrev_b32 v13, 4, v2")
    a("v_add_u32 v13, s34, v13")
    a("v_and_b32 v12, 7, v2")
    a("v_xor_b32 v12, v12, v13")
    a("v_lshl_add_u32 v4, v12, 4, v4")
    a("s_lshl_b32 s34, s32, 10")
    a("s_waitcnt lgkmcnt(0)")
    srd(a, 12, 4, 2621440)
    def xslot():
        a("s_lshl_b32 s40, s43, 7")
        a("s_add_u32 s40, s40, s33")
        a("s_add_u32 s43, s43, 1")
        a("s_cmp_eq_u32 s43, 10")
        a("s_cselect_b32 s43, 0, s43")
        for t in range(4):
            a(f"s_add_u32 m0, s34, {t*2048}")
            if t: a(f"s_add_u32 s40, s40, {16*1280}")
            a("buffer_load_dwordx4 v4, s[12:15], s40 offen lds")
        a("s_add_u32 s34, s34, 8192")
    a("s_call_b64 s[60:61], K1_XS")
    a("s_barrier")
    a("s_call_b64 s[60:61], K1_XS")
    srd(a, 24, 10, WS_SIZE)
    a("v_mov_b32 v8, 0xffff0000")
    a("v_lshrrev_b32 v20, 5, v2")
    a("v_and_b32 v15, 31, v2")
    a("v_bfe_u32 v16, v2, 1, 3")
    a("v_xor_b32 v16, v16, v20")
    a("v_lshlrev_b32 v17, 7, v15")
    a("s_lshl_b32 s37, s32, 12")
    a("v_add_u32 v17, s37, v17")
    for q in range(4):
        a(f"v_xor_b32 v34, {2*q}, v16")
        a(f"v_lshl_add_u32 v{26+q}, v34, 4, v17")
    for r in (21, 22, 23, 24): a(f"v_mov_b32 v{r}, 0")
    def stats(half):
        for ks in range(2):
            a(f"ds_read_b128 v[{80+4*ks}:{83+4*ks}], v{26 + 2*half + ks}")
    def stats2():
        a("s_waitcnt lgkmcnt(0)")
        for q in range(8):
            a(f"v_lshlrev_b32 v88, 16, v{80+q}")
            a(f"v_and_b32 v89, v8, v{80+q}")
            a("v_add_f32 v21, v21, v88")
            a("v_add_f32 v22, v22, v89")
            a("v_fmac_f32 v23, v88, v88")
            a("v_fmac_f32 v24, v89, v89")
    issued = 2; extra = 0
    for p in range(10):
        a(f"s_waitcnt vmcnt({extra + 4*(issued - (p+1))})")
        a("s_call_b64 s[60:61], K1_XB")
        if p == XR_N - 1:
            for q in range(4): a(f"v_subrev_u32 v{26+q}, {XR_N*8192}, v{26+q}")
        n = 0
        while issued < 10 and n < 3 and (issued < XR_N or issued - XR_N <= p - 1):
            a("s_call_b64 s[60:61], K1_XS"); issued += 1; n += 1
    a("v_add_f32 v22, v21, v22")
    a("v_add_f32 v23, v23, v24")
    a("v_lshlrev_b32 v16, 3, v15")
    a("v_lshl_add_u32 v16, v20, 8, v16")
    a("s_lshl_b32 s37, s32, 9")
    a(f"s_add_u32 s37, s37, {K1_STAT}")
    a("v_add_u32 v16, s37, v16")
    a("ds_write_b64 v16, v[22:23]")
    a("s_waitcnt lgkmcnt(0)")
    a("s_barrier")
    a("s_branch K1_COPY")
    a.label("K1_WS")
    a(f"s_mul_i32 s40, s43, {32*3840}")
    a("s_add_u32 s43, s43, 1")
    a("s_cmp_eq_u32 s43, 20")
    a("s_cselect_b32 s43, 0, s43")
    for t in range(8):
        a(f"s_add_u32 m0, s34, {t*2048}")
        if t: a(f"s_add_u32 s40, s40, {4*3840}")
        a("buffer_load_dwordx4 v5, s[16:19], s40 offen lds")
    a("s_add_u32 s34, s34, 16384")
    a(f"s_cmp_ge_u32 s34, {WB + NBUF*16384}")
    a(f"s_cselect_b32 s45, {NBUF*16384}, 0")
    a("s_sub_u32 s34, s34, s45")
    a("s_setpc_b64 s[60:61]")
    a.label("K1_XS")
    xslot()
    a(f"s_cmp_ge_u32 s34, {XR_N*8192}")
    a(f"s_cselect_b32 s45, {XR_N*8192}, 0")
    a("s_sub_u32 s34, s34, s45")
    a("s_setpc_b64 s[60:61]")
    a.label("K1_XB")
    a("s_barrier")
    stats(0); stats2()
    a("s_barrier")
    stats(1); stats2()
    for q in range(4): a(f"v_add_u32 v{26+q}, 8192, v{26+q}")
    a("s_setpc_b64 s[60:61]")
    a.label("K1_COMP")
    a.fence(2)
    a("s_barrier")
    a("v_mov_b32 v7, 0x3f803f80")
    a("v_lshrrev_b32 v10, 5, v2")
    a("v_bfe_u32 v11, v2, 4, 1")
    a("v_bfe_u32 v12, v2, 2, 2")
    a("v_and_b32 v13, 3, v2")
    a("v_lshl_add_u32 v14, v10, 3, v12")
    a("v_lshlrev_b32 v14, 9, v14")
    a("v_and_b32 v15, 1, v13")
    a("v_lshl_add_u32 v14, v15, 3, v14")
    a(f"v_add_u32 v14, {WB}, v14")
    a("v_lshlrev_b32 v15, 3, v1")
    a("v_lshl_add_u32 v15, v11, 1, v15")
    a("v_lshrrev_b32 v16, 1, v13")
    a("v_add_u32 v15, v15, v16")
    a("v_lshl_add_u32 v15, v12, 2, v15")
    a("v_and_b32 v16, 31, v15")
    a("v_lshl_add_u32 v24, v16, 4, v14")
    a("v_add_u32 v15, 4, v15")
    a("v_and_b32 v16, 31, v15")
    a("v_lshl_add_u32 v25, v16, 4, v14")
    a("v_and_b32 v15, 31, v2")
    a("v_bfe_u32 v16, v2, 1, 3")
    a("v_xor_b32 v16, v16, v10")
    a("v_lshlrev_b32 v17, 7, v15")
    for q in range(4):
        a(f"v_xor_b32 v34, {2*q}, v16")
        a(f"v_lshl_add_u32 v{26+q}, v34, 4, v17")
    SETS = [(40, 56), (72, 88)]
    ACC = 104
    CSUM = (168, 172); SEL = 36
    a("v_and_b32 v34, 15, v2")
    a("v_cmp_eq_u32 vcc, v34, v11")
    a(f"v_cndmask_b32 v{SEL}, 0, v7, vcc")
    for q in range(1, 4): a(f"v_mov_b32 v{SEL+q}, v{SEL}")
    a("s_waitcnt vmcnt(0) lgkmcnt(0)")
    for r in range(72, 176): a(f"v_mov_b32 v{r}, 0")
    srd(a, 24, 10, WS_SIZE)
    def reads(c):
        A0, B0 = SETS[c % 2]
        L = []
        for ks in range(2):
            for aa in range(2):
                for hi in range(2):
                    r = A0 + (ks*2 + aa)*4 + hi*2
                    L.append(f"ds_read_b64_tr_b16 v[{r}:{r+1}], v{30+aa} offset:{(c&1)*16384 + ks*8192 + hi*2048}")
            for b in range(2):
                r = B0 + (ks*2 + b)*4
                L.append(f"ds_read_b128 v[{r}:{r+3}], v{32 + 2*(c&1) + ks - 14} offset:{b*4096}")
        return L
    def mfmas(c):
        A0, B0 = SETS[c % 2]
        L = []
        for ks in range(2):
            for aa in range(2):
                ra = A0 + (ks*2 + aa)*4
                for b in range(2):
                    d = ACC + (aa*2 + b)*16
                    rb = B0 + (ks*2 + b)*4
                    L.append(f"v_mfma_f32_32x32x16_bf16 v[{d}:{d+15}], v[{ra}:{ra+3}], v[{rb}:{rb+3}], v[{d}:{d+15}]")
                d = CSUM[aa]
                L.append(f"v_mfma_f32_16x16x32_bf16 v[{d}:{d+3}], v[{ra}:{ra+3}], v[{SEL}:{SEL+3}], v[{d}:{d+3}]")
        return L
    a("s_mov_b32 s44, 0")
    a("s_mov_b32 s45, 0")
    a("s_mov_b32 s46, 0")
    st()
    a.label("K1_LOOP")
    a("v_add_u32 v30, s45, v24")
    a("v_add_u32 v31, s45, v25")
    for q in range(4): a(f"v_add_u32 v{18+q}, s46, v{26+q}")
    for c in range(2):
        a("s_waitcnt lgkmcnt(0)")
        a("s_barrier")
        if instr and c == 0:
            for it in (0, 4):
                a(f"s_cmp_lg_u32 s44, {it}")
                a(f"s_cbranch_scc1 K1_NST{it}")
                st()
                a.label(f"K1_NST{it}")
        R = reads(c); M = mfmas(c - 1)
        kk = 0
        for m in M:
            a(m)
            for _ in range(2):
                if kk < len(R): a(R[kk]); kk += 1
        while kk < len(R): a(R[kk]); kk += 1
    a("s_add_u32 s45, s45, 32768")
    a(f"s_cmp_eq_u32 s45, {NBUF*16384}")
    a("s_cselect_b32 s45, 0, s45")
    a("s_add_u32 s46, s46, 8192")
    a(f"s_cmp_eq_u32 s46, {XR_N*8192}")
    a("s_cselect_b32 s46, 0, s46")
    a("s_add_u32 s44, s44, 1")
    a("s_cmp_lt_u32 s44, 10")
    a("s_cbranch_scc1 K1_LOOP")
    a("s_waitcnt lgkmcnt(0)")
    for m in mfmas(1): a(m)
    st()
    a("v_and_b32 v15, 31, v2")
    a("v_and_b32 v34, 15, v2")
    a("v_lshlrev_b32 v17, 6, v34")
    a("v_lshrrev_b32 v35, 4, v2")
    a("v_lshl_add_u32 v17, v35, 4, v17")
    a("v_lshl_add_u32 v17, v1, 8, v17")
    a(f"v_add_u32 v17, {K1_CS}, v17")
    a("v_cmp_gt_u32 vcc, 2, v34")
    a("s_and_saveexec_b64 s[38:39], vcc")
    a(f"ds_write_b128 v17, v[{CSUM[0]}:{CSUM[0]+3}]")
    a(f"ds_write_b128 v17, v[{CSUM[1]}:{CSUM[1]+3}] offset:128")
    a("s_mov_b64 exec, s[38:39]")
    a("s_waitcnt lgkmcnt(0)")
    a("s_barrier")
    a("v_lshlrev_b32 v16, 3, v15")
    a(f"v_add_u32 v16, {K1_STAT}, v16")
    for b in range(2):
        for p in range(2):
            a(f"ds_read_b64 v[{40+b*16+2*p}:{41+b*16+2*p}], v16 offset:{b*512 + p*256}")
    a("v_lshlrev_b32 v17, 4, v10")
    a("v_lshl_add_u32 v17, v1, 8, v17")
    a(f"v_add_u32 v17, {K1_CS}, v17")
    for aa in range(2):
        for c in range(4):
            r = 72 + aa*16 + 4*c
            a(f"ds_read_b128 v[{r}:{r+3}], v17 offset:{aa*128 + c*32}")
    a("s_waitcnt lgkmcnt(0)")
    MEAN = (20, 21); RINV = (22, 23)
    for b in range(2):
        base = 40 + b*16
        a(f"v_add_f32 v{base}, v{base}, v{base+2}")
        a(f"v_add_f32 v{base+1}, v{base+1}, v{base+3}")
        a(f"v_mul_f32 v{base}, {f32(1/640)}, v{base}")
        a(f"v_mul_f32 v{base+1}, {f32(1/640)}, v{base+1}")
        a(f"v_fma_f32 v{base+1}, -v{base}, v{base}, v{base+1}")
        a(f"v_max_f32 v{base+1}, 0, v{base+1}")
        a(f"v_cvt_pk_bf16_f32 v{MEAN[b]}, 0, v{base}")
        a(f"v_cvt_pk_bf16_f32 v{base+1}, 0, v{base+1}")
        a(f"v_add_f32 v{base+1}, 0x3727c5ac, v{base+1}")
        a(f"v_cvt_pk_bf16_f32 v{base+1}, 0, v{base+1}")
        a(f"v_sqrt_f32 v{base+1}, v{base+1}")
        a(f"v_cvt_pk_bf16_f32 v{base+1}, 0, v{base+1}")
        a(f"v_rcp_f32 v{RINV[b]}, v{base+1}")
    QS = (24, 25, 26, 27)
    a("s_mul_i32 s36, s28, 240")
    a("s_lshl_b32 s37, s30, 6")
    a("s_add_u32 s36, s36, s37")
    for aa in range(2):
        a(f"s_add_u32 s37, s36, {32*aa}")
        a("s_cmp_lt_u32 s37, 640")
        a(f"s_cselect_b32 s37, {f32(QSCALE)}, 1.0")
        for b in range(2):
            a(f"v_mul_f32 v{QS[aa*2+b]}, s37, v{RINV[b]}")
    a("v_lshl_add_u32 v14, v1, 4, v10")
    a(f"v_mul_u32_u24 v15, {RB}, v15")
    for aa in range(2):
        for c in range(4):
            if aa == 1 and c == 2:
                a("s_cmp_eq_u32 s30, 3")
                a("s_cbranch_scc1 K1_STG")
            a(f"v_add_u32 v16, {8*aa + 2*c}, v14")
            a("v_mul_u32_u24 v17, 52429, v16")
            a("v_lshrrev_b32 v17, 18, v17")
            a("v_mul_u32_u24 v18, 5, v17")
            a("v_sub_u32 v18, v16, v18")
            a(f"v_mul_u32_u24 v17, {64*RB}, v17")
            a("v_lshl_add_u32 v17, v18, 3, v17")
            a("v_add_u32 v17, v17, v15")
            for b in range(2):
                d = ACC + (aa*2 + b)*16 + 4*c
                cs = 72 + aa*16 + 4*c
                for e in range(4):
                    a(f"v_fma_f32 v{d+e}, -v{MEAN[b]}, v{cs+e}, v{d+e}")
                    a(f"v_mul_f32 v{d+e}, v{d+e}, v{QS[aa*2+b]}")
                t = 40 + 2*b
                a(f"v_cvt_pk_bf16_f32 v{t}, v{d}, v{d+1}")
                a(f"v_cvt_pk_bf16_f32 v{t+1}, v{d+2}, v{d+3}")
                a(f"ds_write_b64 v17, v[{t}:{t+1}] offset:{b*32*RB}")
    a.label("K1_STG")
    a.fence(4)
    a.label("K1_COPY")
    a.fence(4)
    a("v_lshlrev_b32 v17, 4, v0")
    a("s_mul_i32 s37, s28, 12")
    a(f"s_mul_i32 s37, s37, {HB2}")
    a(f"s_mul_i32 s38, s29, {64*RB}")
    a("s_add_u32 s37, s37, s38")
    a(f"s_mov_b32 s39, {HB2}")
    for i in range(4):
        a(f"v_add_u32 v18, {512*i}, v0")
        a("v_mul_u32_u24 v19, 52429, v18")
        a("v_lshrrev_b32 v19, 23, v19")
        a("v_mul_u32_u24 v20, 160, v19")
        a("v_sub_u32 v20, v18, v20")
        a("v_mul_lo_u32 v19, v19, s39")
        a(f"v_lshl_add_u32 v{24+i}, v20, 4, v19")
    a("s_waitcnt lgkmcnt(0)")
    a("s_barrier")
    for i in range(4):
        if i == 3:
            a("s_cmp_ge_u32 s30, 6")
            a("s_cbranch_scc1 K1_CP2")
        a(f"ds_read_b128 v[{40+4*i}:{43+4*i}], v17 offset:{i*8192}")
    a.label("K1_CP2")
    for i in range(4):
        if i == 3:
            a("s_cmp_ge_u32 s30, 6")
            a("s_cbranch_scc1 K1_FIN")
        a(f"s_waitcnt lgkmcnt({max(0, 2-i)})" if i < 3 else "s_waitcnt lgkmcnt(0)")
        a(f"buffer_store_dwordx4 v[{40+4*i}:{43+4*i}], v{24+i}, s[24:27], s37 offen")
    a.label("K1_FIN")
    if instr:
        a("s_waitcnt vmcnt(0)")
        st()
        a("s_cmp_ge_u32 s30, 4")
        a("s_cbranch_scc1 K1_END")
        st.dump(0, 30, 2)
    a.label("K1_END")
    a("s_endpgm")
    return a.text(), K1C_VGPR
```

```python
from asmlib import Asm
from gen import *

KH = 256 * RB
KVB = 2 * KH
TS = 32 * RB
ONES = 3 * KVB
F_FLAG = ONES + KH
REG = F_FLAG + 256
K2F_LDS = REG + 16 * 5120
LOG2E = 1.4426950408889634
C32 = struct.unpack("<f", struct.pack("<I", 0x3e64f92e))[0]
L_TARGET = -100
L_THRESH = "0x3f800000"
K2F_VGPR = 192
NM2 = 108
WG_, WU_, WD_ = REG, REG + 20480, REG + 40960
XS_ = REG + 61440
HB_ = XS_ + 2560
SPIN_MAX = 1 << 20
POLL_SLEEP = 4
WS_CNT = WS_YP + 5120 + 1024

def gen_k2f(instr=False, slots=None):
    a = Asm()
    st = Stamps(a, instr, base=74)
    st()
    a("s_cmp_ge_u32 s2, 256")
    a("s_cbranch_scc1 K2_END")
    a("s_load_dwordx2 s[10:11], s[0:1], 80")
    a("s_load_dwordx2 s[6:7], s[0:1], 16")
    a("s_load_dwordx2 s[8:9], s[0:1], 0")
    a("s_load_dwordx2 s[52:53], s[0:1], 64")
    a("s_and_b32 s28, s2, 7")
    a("s_lshr_b32 s29, s2, 3")
    a("s_lshr_b32 s30, s29, 3")
    a("s_lshl_b32 s28, s28, 2")
    a("s_add_u32 s28, s28, s30")
    a("s_and_b32 s29, s29, 7")
    a("v_lshrrev_b32 v1, 6, v0")
    a("v_and_b32 v2, 63, v0")
    a("v_readfirstlane_b32 s30, v1")
    QH = [4, 16]; QL = [8, 20]; QX = [12, 24]
    KA = [28, 36]; KX = [32, 40]; V0 = 44
    S = [52, 68]; PP = [84, 92]; O = [100, 116]; T = 132
    NEG = [140, 141]
    vKl, vXl, vVl, vKc, vXc, vVc, vKn, vXn, vDma, vMsk = range(142, 152)
    a("v_lshrrev_b32 v3, 5, v2")
    a(f"v_lshlrev_b32 v{vDma}, 4, v2")
    a("s_lshr_b32 s54, s28, 3")
    a("s_lshl_b32 s55, s29, 2")
    a("s_add_u32 s54, s54, s55")
    a("s_and_b32 s55, s28, 7")
    a("s_mul_i32 s56, s55, 160")
    a("s_waitcnt lgkmcnt(0)")
    srd(a, 24, 10, WS_SIZE)
    a(f"s_mul_i32 s31, s28, {HB2}")
    a(f"s_add_u32 s32, s31, {C_K}")
    a("s_mov_b32 s50, 0")
    a("s_cmp_lg_u32 s30, 4")
    a("s_cbranch_scc1 K2_COMP")
    a("s_setprio 3")
    for part in range(2):
        for g, n in ((0, 4), (1, 4), (2, 2)):
            a(f"s_mov_b32 m0, {part*KH + g*4096}")
            a(f"s_add_u32 s48, s32, {g*4096 + part*(C_V - C_K)}")
            for i in range(n):
                a(f"buffer_load_dwordx4 v{vDma}, s[24:27], s48 offen offset:{i*1024} lds")
    a("s_branch K2_PROD")
    a.label("K2_COMP")
    a(f"v_and_b32 v{T}, 31, v2")
    a(f"v_mul_u32_u24 v{T+1}, {RB}, v{T}")
    a(f"v_lshl_add_u32 v{vKl}, v3, 4, v{T+1}")
    a(f"v_add_u32 v{vXl}, 32, v{T+1}")
    a("s_lshl_b32 s34, s29, 8")
    a("s_lshl_b32 s35, s30, 6")
    a("s_add_u32 s34, s34, s35")
    a(f"s_mul_i32 s35, s34, {RB}")
    a("s_add_u32 s35, s35, s31")
    for sd in range(2):
        for i in range(4): a(f"v_mov_b32 v{QX[sd]+i}, 0")
        a(f"buffer_load_dwordx2 v[{QH[sd]}:{QH[sd]+1}], v{vKl}, s[24:27], s35 offen offset:{sd*TS}")
        a(f"buffer_load_dwordx2 v[{QH[sd]+2}:{QH[sd]+3}], v{vKl}, s[24:27], s35 offen offset:{sd*TS+8}")
    a("s_mov_b64 exec, 0xffffffff")
    for sd in range(2):
        a(f"buffer_load_dwordx2 v[{QX[sd]}:{QX[sd]+1}], v{vXl}, s[24:27], s35 offen offset:{sd*TS}")
    a("s_mov_b64 exec, -1")
    a(f"v_bfe_u32 v{T+2}, v2, 2, 2")
    a(f"v_lshl_add_u32 v{T+2}, v3, 2, v{T+2}")
    a(f"v_mul_u32_u24 v{T+2}, {RB}, v{T+2}")
    a(f"v_bfe_u32 v{T+3}, v2, 4, 1")
    a(f"v_and_b32 v{T+4}, 3, v2")
    a(f"v_lshl_add_u32 v{T+3}, v{T+3}, 2, v{T+4}")
    a(f"v_lshl_add_u32 v{T+2}, v{T+3}, 3, v{T+2}")
    a(f"v_add_u32 v{T+2}, {KH}, v{T+2}")
    a(f"v_mov_b32 v{T+4}, {ONES}")
    a(f"v_cmp_gt_u32 vcc, 5, v{T+3}")
    a(f"v_cndmask_b32 v{vVl}, v{T+4}, v{T+2}, vcc")
    a(f"v_cndmask_b32 v{vMsk}, 0, -1, vcc")
    a(f"v_mov_b32 v{T}, 0x3f803f80")
    for i in range(1, 4): a(f"v_mov_b32 v{T+i}, v{T}")
    for kb in range(2):
        a(f"v_mov_b32 v{KX[kb]+2}, v{T}"); a(f"v_mov_b32 v{KX[kb]+3}, v{T}")
    a(f"v_lshlrev_b32 v{T+4}, 4, v0")
    a(f"v_add_u32 v{T+4}, {ONES}, v{T+4}")
    a(f"ds_write_b128 v{T+4}, v[{T}:{T+3}]")
    a(f"ds_write_b128 v{T+4}, v[{T}:{T+3}] offset:4096")
    a(f"v_lshlrev_b32 v{T+4}, 3, v0")
    a(f"v_add_u32 v{T+4}, {ONES + 8192}, v{T+4}")
    a(f"ds_write_b64 v{T+4}, v[{T}:{T+1}]")
    a("s_mov_b32 s72, 0")
    def mm(d, x, y, c):
        cc = "0" if c is None else f"v[{c}:{c+15}]"
        a(f"v_mfma_f32_32x32x16_bf16 v[{d}:{d+15}], v[{x}:{x+3}], v[{y}:{y+3}], {cc}")
    def qk(sd, kb):
        mm(S[sd], KA[kb], QH[sd], None); mm(S[sd], KX[kb], QX[sd], S[sd])
    def kread(aK, aX, t, kb):
        a(f"ds_read_b64 v[{KA[kb]}:{KA[kb]+1}], v{aK} offset:{t*TS}")
        a(f"ds_read_b64 v[{KA[kb]+2}:{KA[kb]+3}], v{aK} offset:{t*TS+8}")
        a(f"ds_read_b64 v[{KX[kb]}:{KX[kb]+1}], v{aX} offset:{t*TS}")
    def vread(addr, t):
        for aa in range(2):
            for hi in range(2):
                r = V0 + aa*4 + hi*2
                a(f"ds_read_b64_tr_b16 v[{r}:{r+1}], v{addr} offset:{t*TS + aa*16*RB + hi*8*RB}")
    def halfmax(r, tmp):
        a(f"v_mov_b32 v{tmp}, v{r}")
        a(f"v_permlane32_swap_b32 v{r}, v{tmp}")
        a(f"v_max_f32 v{r}, v{r}, v{tmp}")
    def split_neg(sd):
        a(f"v_cvt_pk_bf16_f32 v{T+2}, 0, v{NEG[sd]}")
        a(f"v_sub_f32 v{T+3}, v{NEG[sd]}, v{T+2}")
        a(f"v_cvt_pk_bf16_f32 v{T+4}, 0, v{T+3}")
        a(f"v_sub_f32 v{T+3}, v{T+3}, v{T+4}")
        a("s_mov_b64 exec, 0xffffffff")
        a(f"v_cvt_pk_bf16_f32 v{QX[sd]+2}, v{T+2}, v{T+4}")
        a(f"v_cvt_pk_bf16_f32 v{QX[sd]+3}, v{T+3}, 0")
        a("s_mov_b64 exec, -1")
    a(f"v_mov_b32 v{T}, {F_FLAG}")
    a(f"v_mov_b32 v{T+1}, 0")
    a(f"ds_write_b32 v{T}, v{T+1}")
    a("s_waitcnt vmcnt(0)")
    a.label("K2_MAIN")
    a.fence(4)
    a("s_mov_b32 s40, 0")
    a(f"s_mov_b32 s41, {KVB}")
    a(f"s_mov_b32 s42, {2*KVB}")
    for i in range(32): a(f"v_mov_b32 v{O[0]+i}, 0")
    for i in range(8): a(f"v_mov_b32 v{PP[1]+i}, 0")
    for i in range(8): a(f"v_mov_b32 v{V0+i}, 0")
    a("s_waitcnt lgkmcnt(0)")
    st()
    a("s_barrier")
    a(f"v_mov_b32 v{vKc}, v{vKl}")
    a(f"v_mov_b32 v{vXc}, v{vXl}")
    a(f"v_mov_b32 v{vVc}, v{vVl}")
    a(f"v_add_u32 v{vKn}, {KVB}, v{vKl}")
    a(f"v_add_u32 v{vXn}, {KVB}, v{vXl}")
    kread(vKc, vXc, 0, 0)
    a("s_waitcnt lgkmcnt(0)")
    qk(0, 0)
    a("s_cmp_lg_u32 s50, 0")
    a("s_cbranch_scc1 K2_SKIPMAX")
    qk(1, 0)
    for sd in range(2):
        a(f"v_max3_f32 v{T}, v{S[sd]}, v{S[sd]+1}, v{S[sd]+2}")
        for i in range(3, 15, 2):
            a(f"v_max3_f32 v{T}, v{T}, v{S[sd]+i}, v{S[sd]+i+1}")
        a(f"v_max_f32 v{T}, v{T}, v{S[sd]+15}")
        halfmax(T, T+1)
        a(f"v_sub_f32 v{NEG[sd]}, {f32(float(L_TARGET))}, v{T}")
        split_neg(sd)
    for i in range(16): a(f"v_add_f32 v{S[0]+i}, v{S[0]+i}, v{NEG[0]}")
    a.label("K2_SKIPMAX")
    a.fence(16)
    a("s_mov_b32 s44, 0")
    a("s_mov_b64 vcc, 0")
    st()
    a.label("K2_LOOP")
    if slots is None: slots = [8, 48, 88, 128]
    for t in range(8):
        for sd in range(2):
            Sc = S[sd]; Pc = PP[sd]; ot = sd ^ 1
            if sd == 0 and t % 4 == 0:
                a(f"s_cbranch_vccnz K2_RC{t}")
                a.label(f"K2_NR{t}")
            if sd == 0 and t == 7:
                a("s_barrier")
            E = []
            for i in range(8):
                E.append((f"v_exp_f32 v{Sc+2*i}, v{Sc+2*i}", 8))
                E.append((f"v_exp_f32 v{Sc+2*i+1}, v{Sc+2*i+1}", 8))
                if i > 0: E.append((f"v_cvt_pk_bf16_f32 v{Pc+i-1}, v{Sc+2*i-2}, v{Sc+2*i-1}", 4))
            E.append((f"v_cvt_pk_bf16_f32 v{Pc+7}, v{Sc+14}, v{Sc+15}", 4))
            names = ["qkA", "qkC", "pv0", "pv1"]
            kb = (t % 2) if sd == 0 else ((t+1) % 2)
            pos = 0; k = 0; n = 0
            for ins, cst in E:
                while k < 4 and pos >= slots[k]:
                    what = names[k]; k += 1
                    if what == "qkA":
                        if sd == 1: a("s_waitcnt lgkmcnt(4)")
                        mm(S[ot], KA[kb], QH[ot], None)
                    elif what == "qkB": mm(S[ot], KA[kb], QL[ot], S[ot])
                    elif what == "qkC": mm(S[ot], KX[kb], QX[ot], S[ot])
                    elif what == "pv0":
                        if sd == 1: a("s_waitcnt lgkmcnt(0)")
                        mm(O[ot], V0, PP[ot], O[ot])
                    elif what == "pv1":
                        mm(O[ot], V0+4, PP[ot]+4, O[ot])
                        if sd == 0: vread(vVc, t)
                a(ins); pos += cst; n += 1
                if sd == 1 and t % 4 == 3 and n == 8:
                    a(f"v_max_f32 v{T}, v{O[0]+12}, v{O[1]+12}")
                    a(f"v_cmp_lt_f32 vcc, {L_THRESH}, v{T}")
                if sd == 0 and n == 1:
                    if t + 1 < 8: kread(vKc, vXc, t+1, (t+1) % 2)
                    else: kread(vKn, vXn, 0, 0)
            assert k == 4
    a("s_mov_b32 s45, s40")
    a("s_mov_b32 s40, s41")
    a("s_mov_b32 s41, s42")
    a("s_mov_b32 s42, s45")
    a(f"v_add_u32 v{vKc}, s40, v{vKl}")
    a(f"v_add_u32 v{vXc}, s40, v{vXl}")
    a(f"v_and_b32 v{vVc}, s40, v{vMsk}")
    a(f"v_add_u32 v{vVc}, v{vVc}, v{vVl}")
    a(f"v_add_u32 v{vKn}, s41, v{vKl}")
    a(f"v_add_u32 v{vXn}, s41, v{vXl}")
    a("s_add_u32 s44, s44, 1")
    a("s_cmp_lt_u32 s44, 8")
    a("s_cbranch_scc1 K2_LOOP")
    st()
    mm(O[1], V0, PP[1], O[1])
    mm(O[1], V0+4, PP[1]+4, O[1])
    a("s_waitcnt lgkmcnt(0)")
    a("s_cmp_lg_u32 s50, 0")
    a("s_cbranch_scc1 K2_VOTED")
    a(f"v_mul_f32 v{T}, 0, v{O[0]}")
    for sd in range(2):
        for i in range(13):
            if sd or i: a(f"v_fma_f32 v{T}, v{O[sd]+i}, 0, v{T}")
    a(f"v_cmp_u_f32 vcc, v{T}, v{T}")
    a(f"v_mov_b32 v{T+1}, {F_FLAG}")
    a(f"v_mov_b32 v{T+2}, 1")
    a("s_and_saveexec_b64 s[46:47], vcc")
    a("s_cbranch_execz K2_NOFLAG")
    a(f"ds_write_b32 v{T+1}, v{T+2}")
    a.label("K2_NOFLAG")
    a("s_mov_b64 exec, s[46:47]")
    a("s_waitcnt lgkmcnt(0)")
    a.label("K2_VOTED")
    a("s_barrier")
    a("s_cmp_lg_u32 s50, 0")
    a("s_cbranch_scc1 K2_EPI")
    a(f"ds_read_b32 v{T+2}, v{T+1}")
    a("s_waitcnt lgkmcnt(0)")
    a(f"v_readfirstlane_b32 s46, v{T+2}")
    a("s_cmp_eq_u32 s46, 0")
    a("s_cbranch_scc1 K2_EPI")
    a("s_mov_b32 s50, 1")
    a("s_mov_b32 s44, 0")
    for sd in range(2):
        a(f"v_mov_b32 v{QX[sd]+2}, 0")
        a(f"v_mov_b32 v{QX[sd]+3}, 0")
        a(f"v_mov_b32 v{T+6+sd}, 0xff800000")
    a.label("K2_MAXLOOP")
    a("s_barrier")
    a("s_barrier")
    a("s_mov_b32 s45, 0")
    a(f"v_mov_b32 v{vKc}, v{vKl}")
    a(f"v_mov_b32 v{vXc}, v{vXl}")
    a.label("K2_MAXT")
    kread(vKc, vXc, 0, 0)
    a(f"v_add_u32 v{vKc}, {TS}, v{vKc}")
    a(f"v_add_u32 v{vXc}, {TS}, v{vXc}")
    a("s_waitcnt lgkmcnt(0)")
    qk(0, 0); qk(1, 0)
    for sd in range(2):
        for i in range(0, 16, 2):
            a(f"v_max3_f32 v{T+6+sd}, v{T+6+sd}, v{S[sd]+i}, v{S[sd]+i+1}")
    a("s_add_u32 s45, s45, 1")
    a("s_cmp_lt_u32 s45, 8")
    a("s_cbranch_scc1 K2_MAXT")
    a("s_add_u32 s44, s44, 1")
    a("s_cmp_lt_u32 s44, 8")
    a("s_cbranch_scc1 K2_MAXLOOP")
    for sd in range(2):
        halfmax(T+6+sd, T+1)
        a(f"v_sub_f32 v{NEG[sd]}, {f32(float(L_TARGET))}, v{T+6+sd}")
        split_neg(sd)
    a("s_barrier")
    a("s_branch K2_MAIN")
    a.label("K2_EPI")
    a.fence(16)
    a("v_and_b32 v20, 31, v2")
    a("v_add_u32 v20, s34, v20")
    a("v_lshrrev_b32 v21, 4, v20")
    a("v_mul_u32_u24 v21, 20480, v21")
    a("v_and_b32 v20, 15, v20")
    a("v_lshl_add_u32 v20, v20, 4, v21")
    a(f"s_mov_b32 s36, {WS_O}")
    a(f"s_mov_b32 s37, {WS_O + 2*20480}")
    a("s_mul_i32 s35, s28, 5")
    a("s_add_u32 s33, s35, 1")
    a("s_lshr_b32 s33, s33, 1")
    a("v_add_u32 v21, s33, v3")
    a("v_lshl_add_u32 v24, v21, 8, v20")
    a("s_and_b32 s38, s28, 1")
    a("s_add_u32 s39, s33, 2")
    a("s_lshl_b32 s39, s39, 8")
    a("s_sub_u32 s33, s33, 1")
    a("s_lshl_b32 s33, s33, 8")
    a("s_add_u32 s33, s33, 8")
    a("s_cmp_eq_u32 s38, 0")
    a("s_cselect_b32 s33, s39, s33")
    a("v_add_u32 v25, s33, v20")
    for sd in range(2):
        a(f"v_rcp_f32 v{T}, v{O[sd]+12}")
        for i in range(12): a(f"v_mul_f32 v{O[sd]+i}, v{O[sd]+i}, v{T}")
        for i in range(6): a(f"v_cvt_pk_bf16_f32 v{PP[sd]+i}, v{O[sd]+2*i}, v{O[sd]+2*i+1}")
    a("s_cmp_lg_u32 s38, 0")
    a("s_cbranch_scc1 K2_ODDH")
    for sd in range(2):
        p = PP[sd]
        a(f"v_permlane32_swap_b32 v{p}, v{p+2}")
        a(f"v_permlane32_swap_b32 v{p+1}, v{p+3}")
        a(f"buffer_store_dwordx4 v[{p}:{p+3}], v24, s[24:27], s{36+sd} offen sc1")
    a("s_mov_b64 exec, 0xffffffff")
    for sd in range(2):
        a(f"buffer_store_dwordx2 v[{PP[sd]+4}:{PP[sd]+5}], v25, s[24:27], s{36+sd} offen sc1")
    a("s_mov_b64 exec, -1")
    a("s_branch K2_OST")
    a.label("K2_ODDH")
    a.fence(4)
    a("s_mov_b64 exec, 0xffffffff")
    for sd in range(2):
        a(f"buffer_store_dwordx2 v[{PP[sd]}:{PP[sd]+1}], v25, s[24:27], s{36+sd} offen sc1")
    a("s_mov_b64 exec, -1")
    for sd in range(2):
        p = PP[sd]; d = O[sd]
        a(f"v_permlane32_swap_b32 v{p}, v{p+4}")
        a(f"v_permlane32_swap_b32 v{p+1}, v{p+5}")
        a(f"v_mov_b32 v{d}, v{p+2}"); a(f"v_mov_b32 v{d+1}, v{p+3}")
        a(f"v_mov_b32 v{d+2}, v{p}"); a(f"v_mov_b32 v{d+3}, v{p+1}")
        a("s_mov_b64 exec, 0xffffffff")
        a(f"v_mov_b32 v{d}, v{p+4}"); a(f"v_mov_b32 v{d+1}, v{p+5}")
        a(f"v_mov_b32 v{d+2}, v{p+2}"); a(f"v_mov_b32 v{d+3}, v{p+3}")
        a("s_mov_b64 exec, -1")
        a(f"buffer_store_dwordx4 v[{d}:{d+3}], v24, s[24:27], s{36+sd} offen sc1")
    a.label("K2_OST")
    a.fence(4)
    OB = 40; XR = 120; ACC = 20; AF = 140
    a("v_and_b32 v3, 15, v2")
    a("v_lshrrev_b32 v4, 4, v2")
    a("s_lshl_b32 s57, s54, 6")
    a("s_lshl_b32 s33, s30, 4")
    a("s_add_u32 s57, s57, s33")
    a("v_add_u32 v5, s57, v3")
    a("v_mul_u32_u24 v5, 1280, v5")
    a("v_lshlrev_b32 v15, 4, v2")
    a("v_lshl_add_u32 v16, v4, 3, v5")
    a("v_add_u32 v16, s56, v16")
    a("v_bfe_u32 v5, v2, 2, 2")
    a("v_lshl_add_u32 v5, v4, 2, v5")
    a("v_mul_u32_u24 v5, 160, v5")
    a("v_and_b32 v6, 3, v2")
    a("v_lshl_add_u32 v19, v6, 3, v5")
    a(f"v_add_u32 v17, {REG}, v19")
    a(f"v_add_u32 v18, {REG + 40960}, v19")
    srd(a, 16, 8, 2621440)
    srd(a, 20, 52, 2621440)
    a("s_waitcnt vmcnt(0)")
    st()
    a("s_barrier")
    a("s_cmp_lg_u32 s30, 0")
    a("s_cbranch_scc1 K2_NOSIG")
    a("v_mov_b32 v6, 1")
    a("s_lshl_b32 s33, s29, 8")
    a(f"s_add_u32 s33, s33, {WS_CNT}")
    a("v_mov_b32 v7, 0")
    a("s_mov_b64 exec, 1")
    a("buffer_atomic_add v6, v7, s[24:27], s33 offen sc1")
    a("s_mov_b64 exec, -1")
    a.label("K2_NOSIG")
    for nt in range(5):
        a(f"buffer_load_dwordx2 v[{XR+2*nt}:{XR+2*nt+1}], v16, s[16:19], 0 offen offset:{nt*32}")
    a("v_lshlrev_b32 v5, 3, v3")
    a("s_lshl_b32 s37, s57, 3")
    a(f"s_add_u32 s37, s37, {WS_ST}")
    a("buffer_load_dwordx2 v[12:13], v5, s[24:27], s37 offen")
    a("s_waitcnt vmcnt(0)")
    for q in range(10):
        x = XR + q; xn = XR + 10 + q
        a(f"v_lshlrev_b32 v6, 16, v{x}")
        a(f"v_and_b32 v7, 0xffff0000, v{x}")
        a("v_sub_f32 v6, v6, v12"); a("v_sub_f32 v7, v7, v12")
        a("v_cvt_pk_bf16_f32 v6, 0, v6"); a("v_cvt_pk_bf16_f32 v7, 0, v7")
        a("v_mul_f32 v6, v6, v13"); a("v_mul_f32 v7, v7, v13")
        a(f"v_cvt_pk_bf16_f32 v{xn}, v6, v7")
    a("s_barrier")
    st()
    a("s_lshr_b32 s36, s57, 4")
    a("s_mul_i32 s36, s36, 20480")
    a(f"s_add_u32 s36, s36, {WS_O}")
    for ks in range(20):
        if ks % 4 == 0 and ks: a("s_add_u32 s36, s36, 4096")
        a(f"buffer_load_dwordx4 v[{OB+4*ks}:{OB+4*ks+3}], v15, s[24:27], s36 offen offset:{(ks%4)*1024} sc1")
    a("v_mov_b32 v6, 0")
    a(f"s_mov_b32 s38, {WS_IDX}")
    a("buffer_load_dwordx4 v[8:11], v6, s[24:27], s38 offen sc1")
    def areads(ks):
        stt = AF + (ks % 2)*20
        ad = 17 if ks < 8 else (18 if ks < 16 else 19)
        for nt in range(5):
            for hi in range(2):
                r = stt + nt*4 + hi*2
                a(f"ds_read_b64_tr_b16 v[{r}:{r+1}], v{ad} offset:{(ks%8)*5120 + nt*32 + hi*2560}")
    def mf(ks):
        stt = AF + (ks % 2)*20
        for nt in range(5):
            d = ACC + 4*nt
            cc = "0" if ks == 0 else f"v[{d}:{d+3}]"
            a(f"v_mfma_f32_16x16x32_bf16 v[{d}:{d+3}], v[{stt+nt*4}:{stt+nt*4+3}], v[{OB+4*ks}:{OB+4*ks+3}], {cc}")
    areads(0)
    for ks in range(20):
        if ks + 1 < 20:
            areads(ks + 1)
            a(f"s_waitcnt vmcnt({20 - ks}) lgkmcnt(10)")
        else:
            a("s_waitcnt vmcnt(0) lgkmcnt(0)")
        mf(ks)
    st()
    for i in range(4): a(f"v_readfirstlane_b32 s{44+i}, v{8+i}")
    a("s_lshr_b32 s33, s57, 4")
    for tok in range(2):
        a(f"s_lshr_b32 s38, s{44+tok}, 4")
        a("s_cmp_lg_u32 s38, s33")
        a(f"s_cbranch_scc1 K2_NOMOE{tok}")
        a(f"s_and_b32 s38, s{44+tok}, 15")
        a("v_cmp_eq_u32 vcc, s38, v3")
        a("s_and_saveexec_b64 s[40:41], vcc")
        a("v_lshlrev_b32 v5, 4, v4")
        a("s_mul_i32 s39, s55, 320")
        a(f"s_add_u32 s39, s39, {WS_YP + tok*2560}")
        for nt in range(5):
            a(f"buffer_load_dwordx4 v[{AF+4*nt}:{AF+4*nt+3}], v5, s[24:27], s39 offen offset:{nt*64} sc1")
        a("s_waitcnt vmcnt(0)")
        for nt in range(5):
            for e in range(4):
                y = AF + 4*nt + e
                a(f"v_cvt_pk_bf16_f32 v{y}, 0, v{y}")
                a(f"v_mul_f32 v{y}, s{46+tok}, v{y}")
                a(f"v_cvt_pk_bf16_f32 v{y}, 0, v{y}")
            for d in range(2):
                xn = XR + 10 + 2*nt + d
                a(f"v_lshlrev_b32 v6, 16, v{xn}")
                a(f"v_and_b32 v7, 0xffff0000, v{xn}")
                a(f"v_add_f32 v6, v6, v{AF+4*nt+2*d}")
                a(f"v_add_f32 v7, v7, v{AF+4*nt+2*d+1}")
                a(f"v_cvt_pk_bf16_f32 v{xn}, v6, v7")
        a("s_mov_b64 exec, s[40:41]")
        a.label(f"K2_NOMOE{tok}")
        a.fence(4)
    for nt in range(5):
        for d in range(2):
            A0 = ACC + 4*nt + 2*d
            x = XR + 2*nt + d; xn = XR + 10 + 2*nt + d
            a(f"v_cvt_pk_bf16_f32 v{A0}, 0, v{A0}")
            a(f"v_cvt_pk_bf16_f32 v{A0+1}, 0, v{A0+1}")
            a(f"v_lshlrev_b32 v6, 16, v{x}")
            a(f"v_and_b32 v7, 0xffff0000, v{x}")
            a(f"v_add_f32 v{A0}, v{A0}, v6")
            a(f"v_add_f32 v{A0+1}, v{A0+1}, v7")
            a(f"v_cvt_pk_bf16_f32 v{A0}, 0, v{A0}")
            a(f"v_cvt_pk_bf16_f32 v{A0+1}, 0, v{A0+1}")
            a(f"v_lshlrev_b32 v6, 16, v{xn}")
            a(f"v_and_b32 v7, 0xffff0000, v{xn}")
            a(f"v_add_f32 v{A0}, v{A0}, v6")
            a(f"v_add_f32 v{A0+1}, v{A0+1}, v7")
            a(f"v_cvt_pk_bf16_f32 v{x}, v{A0}, v{A0+1}")
        a(f"buffer_store_dwordx2 v[{XR+2*nt}:{XR+2*nt+1}], v16, s[20:23], 0 offen offset:{nt*32}")
    if instr:
        a("s_waitcnt vmcnt(0)")
        st()
        st.dump(1, 30, 2)
    a("s_endpgm")
    for t in (0, 4):
        a.label(f"K2_RC{t}")
        a("s_call_b64 s[60:61], K2_RECENTER")
        a(f"s_branch K2_NR{t}")
    a.label("K2_RECENTER")
    a.fence(16)
    a("s_add_u32 s72, s72, 1")
    mm(O[1], V0, PP[1], O[1])
    mm(O[1], V0+4, PP[1]+4, O[1])
    for i in range(8): a(f"v_mov_b32 v{PP[1]+i}, 0")
    for sd in range(2):
        a(f"v_frexp_exp_i32_f32 v{T}, v{O[sd]+12}")
        a(f"v_sub_u32 v{T}, {L_TARGET+1}, v{T}")
        for i in range(13): a(f"v_ldexp_f32 v{O[sd]+i}, v{O[sd]+i}, v{T}")
        a(f"v_cvt_f32_i32 v{T}, v{T}")
        a(f"v_add_f32 v{NEG[sd]}, v{NEG[sd]}, v{T}")
        if sd == 0:
            for i in range(16): a(f"v_add_f32 v{S[0]+i}, v{S[0]+i}, v{T}")
        split_neg(sd)
    a("s_nop 3")
    a("s_setpc_b64 s[60:61]")
    gen_producer(a, vDma)
    a.label("K2_END")
    a("s_endpgm")
    return a.text(), K2F_VGPR

def gen_producer(a, vDma):
    a.label("K2_KVDMA")
    for part in range(2):
        for g, n in ((0, 4), (1, 4), (2, 2)):
            a(f"s_add_u32 m0, s42, {part*KH + g*4096}")
            a(f"s_add_u32 s48, s43, {g*4096 + part*(C_V - C_K)}")
            for i in range(n):
                a(f"buffer_load_dwordx4 v{vDma}, s[24:27], s48 offen offset:{i*1024} lds")
    a(f"s_add_u32 s43, s43, {KH}")
    a("s_mov_b32 s45, s40")
    a("s_mov_b32 s40, s41")
    a("s_mov_b32 s41, s42")
    a("s_mov_b32 s42, s45")
    a("s_setpc_b64 s[60:61]")
    a.label("K2_WODMA")
    for ii in range(5):
        a(f"s_add_u32 m0, s59, {ii*1024}")
        a(f"buffer_load_dwordx4 v{10+ii}, s[16:19], s58 offen lds")
    a("s_add_u32 s58, s58, 40960")
    a("s_add_u32 s59, s59, 5120")
    a("s_setpc_b64 s[62:63]")
    def kv(): a("s_call_b64 s[60:61], K2_KVDMA")
    def wo(n):
        for _ in range(n): a("s_call_b64 s[62:63], K2_WODMA")
    a.label("K2_PROD")
    a.fence(4)
    a("s_load_dwordx4 s[64:67], s[0:1], 40")
    a("s_load_dwordx2 s[68:69], s[0:1], 56")
    a(f"s_mov_b32 s40, {2*KVB}")
    a("s_mov_b32 s41, 0")
    a(f"s_mov_b32 s42, {KVB}")
    a(f"s_add_u32 s43, s32, {KH}")
    kv()
    srd(a, 16, 6, 819200)
    for ii in range(5):
        a(f"v_add_u32 v5, {ii*64}, v2")
        a("v_mul_u32_u24 v6, 52429, v5")
        a("v_lshrrev_b32 v6, 19, v6")
        a("v_mul_u32_u24 v7, 10, v6")
        a("v_sub_u32 v7, v5, v7")
        a("v_and_b32 v8, 3, v6")
        a("v_bfe_u32 v9, v6, 2, 2")
        a("v_lshl_add_u32 v8, v9, 3, v8")
        a("v_lshrrev_b32 v9, 4, v6")
        a("v_lshl_add_u32 v6, v9, 2, v8")
        a("v_mul_u32_u24 v6, 1280, v6")
        a("v_lshl_add_u32 v6, v7, 4, v6")
        a(f"v_add_u32 v{10+ii}, s56, v6")
    a("s_mov_b32 s58, 0")
    a(f"s_mov_b32 s59, {REG}")
    a("s_and_b32 s51, s2, 7")
    a("s_mul_i32 s51, s51, 14")
    a("s_lshr_b32 s45, s2, 3")
    a("s_add_u32 s51, s51, s45")
    a("s_cmp_ge_u32 s45, 14")
    a("s_cbranch_scc1 K2_PPLAIN")
    a(f"s_cmp_ge_u32 s51, {NM2}")
    a("s_cbranch_scc1 K2_PPLAIN")
    a(f"s_mov_b32 s45, {WS_R}")
    for jx in range(8):
        if jx == 4: a(f"s_mov_b32 s45, {WS_R + 4096}")
        a(f"buffer_load_dwordx4 v[{32+4*jx}:{35+4*jx}], v{vDma}, s[24:27], s45 offen offset:{(jx%4)*1024}")
    a("s_waitcnt vmcnt(28) lgkmcnt(0)")
    a("s_barrier")
    srd(a, 84, 64, 640*3456)
    srd(a, 88, 66, 640*3456)
    srd(a, 92, 68, 1728*1280)
    a("v_lshrrev_b32 v5, 1, v2")
    a("v_mul_u32_u24 v16, 3456, v5")
    a("v_and_b32 v5, 1, v2")
    a("v_lshl_add_u32 v16, v5, 4, v16")
    a("s_lshl_b32 s45, s51, 5")
    a("v_add_u32 v16, s45, v16")
    a("s_waitcnt vmcnt(0)")
    def combine(n1, n2):
        a(f"v_min_u32 v20, v18, v{n1}")
        a(f"v_max_u32 v18, v18, v{n1}")
        a(f"v_max3_u32 v19, v20, v19, v{n2}")
    a("v_max_u32 v18, v32, v33"); a("v_min_u32 v19, v32, v33")
    for p in range(34, 64, 2):
        a(f"v_max_u32 v21, v{p}, v{p+1}"); a(f"v_min_u32 v22, v{p}, v{p+1}")
        combine(21, 22)
    for stp in (1, 2, 4, 8, 16, 32):
        a(f"v_xor_b32 v23, {stp}, v2")
        a("v_lshlrev_b32 v23, 2, v23")
        a("ds_bpermute_b32 v21, v23, v18")
        a("ds_bpermute_b32 v22, v23, v19")
        a("s_waitcnt lgkmcnt(0)")
        combine(21, 22)
    a("v_readfirstlane_b32 s70, v18")
    a("v_readfirstlane_b32 s71, v19")
    a("s_and_b32 s46, s70, 0xffff"); a("s_sub_u32 s46, 2047, s46")
    a("s_and_b32 s47, s71, 0xffff"); a("s_sub_u32 s47, 2047, s47")
    def wchunk(t0, t1):
        for t in range(t0, t1):
            a(f"s_mov_b32 s45, {t*110592}")
            a(f"s_mov_b32 m0, {WG_ + t*1024}")
            a("buffer_load_dwordx4 v16, s[84:87], s45 offen lds")
            a(f"s_mov_b32 m0, {WU_ + t*1024}")
            a("buffer_load_dwordx4 v16, s[88:91], s45 offen lds")
    srd(a, 96, 8, 2621440)
    a("v_lshlrev_b32 v17, 3, v2")
    a("v_mov_b32 v23, 0")
    for tok in range(2):
        a(f"s_mul_i32 s45, s{46+tok}, 1280")
        for q in range(3):
            a(f"buffer_load_dwordx2 v[{32+tok*8+2*q}:{33+tok*8+2*q}], v17, s[96:99], s45 offen offset:{q*512}")
        a(f"s_lshl_b32 s45, s{46+tok}, 3")
        a(f"s_add_u32 s45, s45, {WS_ST}")
        a(f"buffer_load_dwordx2 v[{38+tok*8}:{39+tok*8}], v23, s[24:27], s45 offen")
    wchunk(0, 8)
    a("s_barrier")
    kv()
    wchunk(8, 20)
    a("s_waitcnt vmcnt(24)")
    a("s_barrier")
    kv()
    a(f"v_add_u32 v17, {XS_}, v17")
    for tok in range(2):
        m = 38 + tok*8
        for q in range(6):
            x = 32 + tok*8 + q
            a(f"v_lshlrev_b32 v6, 16, v{x}")
            a(f"v_and_b32 v7, 0xffff0000, v{x}")
            a(f"v_sub_f32 v6, v6, v{m}"); a(f"v_sub_f32 v7, v7, v{m}")
            a("v_cvt_pk_bf16_f32 v6, 0, v6"); a("v_cvt_pk_bf16_f32 v7, 0, v7")
            a(f"v_mul_f32 v6, v6, v{m+1}"); a(f"v_mul_f32 v7, v7, v{m+1}")
            a(f"v_cvt_pk_bf16_f32 v{x}, v6, v7")
        for q in range(3):
            if q == 2: a("s_mov_b64 exec, 0xffffffff")
            a(f"ds_write_b64 v17, v[{32+tok*8+2*q}:{33+tok*8+2*q}] offset:{tok*1280 + q*512}")
        a("s_mov_b64 exec, -1")
    a("s_mul_i32 s45, s51, 20480")
    for g in range(5):
        a(f"s_mov_b32 m0, {WD_ + g*4096}")
        for i in range(4):
            a(f"buffer_load_dwordx4 v{vDma}, s[92:95], s45 offen offset:{i*1024} lds")
        if g < 4: a("s_add_u32 s45, s45, 4096")
    a("s_waitcnt vmcnt(20)")
    a("s_barrier")
    kv()
    a("v_lshrrev_b32 v4, 4, v2")
    a("v_and_b32 v5, 1, v2")
    a("v_mul_u32_u24 v20, 1280, v5")
    a("v_lshl_add_u32 v20, v4, 3, v20")
    a(f"v_add_u32 v20, {XS_}, v20")
    a("v_bfe_u32 v6, v2, 2, 2")
    a("v_lshl_add_u32 v6, v4, 2, v6")
    a("v_and_b32 v7, 3, v2")
    a("v_lshlrev_b32 v21, 5, v6")
    a("v_lshl_add_u32 v21, v7, 3, v21")
    a(f"v_add_u32 v21, {WG_}, v21")
    a("v_mul_u32_u24 v22, 1280, v6")
    a("v_lshl_add_u32 v22, v7, 3, v22")
    a(f"v_add_u32 v22, {WD_}, v22")
    for i in range(8): a(f"v_mov_b32 v{24+i}, 0")
    a("s_mov_b32 s45, 0")
    a.label("K2_GU")
    for u in range(2):
        b = 32 + u*12
        a(f"ds_read_b64 v[{b}:{b+1}], v20 offset:{u*64}")
        a(f"ds_read_b64 v[{b+2}:{b+3}], v20 offset:{u*64+32}")
        for mat in range(2):
            a(f"ds_read_b64_tr_b16 v[{b+4+4*mat}:{b+5+4*mat}], v21 offset:{mat*20480 + u*1024}")
            a(f"ds_read_b64_tr_b16 v[{b+6+4*mat}:{b+7+4*mat}], v21 offset:{mat*20480 + u*1024 + 512}")
    a("v_add_u32 v20, 128, v20")
    a("v_add_u32 v21, 2048, v21")
    a("s_waitcnt lgkmcnt(0)")
    for u in range(2):
        b = 32 + u*12
        for mat in range(2):
            a(f"v_mfma_f32_16x16x32_bf16 v[{24+4*mat}:{27+4*mat}], v[{b}:{b+3}], v[{b+4+4*mat}:{b+7+4*mat}], v[{24+4*mat}:{27+4*mat}]")
    a("s_add_u32 s45, s45, 1")
    a("s_cmp_lt_u32 s45, 10")
    a("s_cbranch_scc1 K2_GU")
    a("s_waitcnt vmcnt(0)")
    a("s_barrier")
    kv()
    for tok in range(2):
        g = 24 + tok; u = 28 + tok
        a(f"v_cvt_pk_bf16_f32 v{g}, 0, v{g}")
        a(f"v_cvt_pk_bf16_f32 v{u}, 0, v{u}")
        a(f"v_mul_f32 v32, {f32(-LOG2E)}, v{g}")
        a("v_exp_f32 v32, v32")
        a("v_add_f32 v32, 1.0, v32")
        a("v_rcp_f32 v32, v32")
        a(f"v_mul_f32 v32, v{g}, v32")
        a("v_cvt_pk_bf16_f32 v32, 0, v32")
        a(f"v_mul_f32 v32, v32, v{u}")
        a(f"v_cvt_pk_bf16_f32 v{33+tok}, v32, 0")
    a("v_lshlrev_b32 v23, 1, v2")
    a(f"v_add_u32 v23, {HB_}, v23")
    a("s_mov_b64 exec, 0xffff")
    a("ds_write_b16 v23, v33")
    a("ds_write_b16 v23, v34 offset:32")
    a("s_mov_b64 exec, -1")
    a("v_lshlrev_b32 v23, 5, v5")
    a("v_lshl_add_u32 v23, v4, 3, v23")
    a(f"v_add_u32 v23, {HB_}, v23")
    a("s_waitcnt lgkmcnt(0)")
    a("ds_read_b64 v[24:25], v23")
    a("v_mov_b32 v26, 0"); a("v_mov_b32 v27, 0")
    for q in range(4):
        a(f"v_mov_b32 v{34+4*q}, 0"); a(f"v_mov_b32 v{35+4*q}, 0")
    a("v_lshlrev_b32 v23, 2, v2")
    a(f"s_mov_b32 s46, {WS_YP}")
    a("s_mov_b32 s45, 0")
    a("s_waitcnt vmcnt(0)")
    a.label("K2_DN")
    for q in range(4):
        a(f"ds_read_b64_tr_b16 v[{32+4*q}:{33+4*q}], v22 offset:{q*32}")
    a("v_add_u32 v22, 128, v22")
    a("s_waitcnt lgkmcnt(0)")
    for q in range(4):
        a(f"v_mfma_f32_16x16x32_bf16 v[{48+4*q}:{51+4*q}], v[24:27], v[{32+4*q}:{35+4*q}], 0")
    a("s_mov_b64 exec, 0xffff")
    for q in range(4):
        for tok in range(2):
            a(f"buffer_atomic_add_f32 v{48+4*q+tok}, v23, s[24:27], s46 offen offset:{tok*2560 + q*64}")
    a("s_mov_b64 exec, -1")
    a("s_add_u32 s46, s46, 256")
    a("s_add_u32 s45, s45, 1")
    a("s_cmp_lt_u32 s45, 10")
    a("s_cbranch_scc1 K2_DN")
    a("s_cmp_lg_u32 s51, 0")
    a("s_cbranch_scc1 K2_NOIDX")
    for tok in range(2):
        k = 70 + tok
        a(f"s_and_b32 s45, s{k}, 0xffff")
        a("s_sub_u32 s45, 2047, s45")
        a(f"v_mov_b32 v{32+tok}, s45")
        a(f"s_and_b32 s45, s{k}, 0xffff0000")
        a("s_xor_b32 s46, s45, 0x80000000")
        a("s_xor_b32 s47, s45, 0xffff0000")
        a("s_bitcmp1_b32 s45, 31")
        a("s_cselect_b32 s45, s46, s47")
        a(f"v_mov_b32 v{34+tok}, s45")
        a(f"v_mul_f32 v{34+tok}, {f32(-LOG2E)}, v{34+tok}")
        a(f"v_exp_f32 v{34+tok}, v{34+tok}")
        a(f"v_add_f32 v{34+tok}, 1.0, v{34+tok}")
        a(f"v_rcp_f32 v{34+tok}, v{34+tok}")
        a(f"v_cvt_pk_bf16_f32 v{34+tok}, 0, v{34+tok}")
    a("v_mov_b32 v23, 0")
    a(f"s_mov_b32 s45, {WS_IDX}")
    a("s_mov_b64 exec, 1")
    a("buffer_store_dwordx4 v[32:35], v23, s[24:27], s45 offen sc1")
    a("s_mov_b64 exec, -1")
    a.label("K2_NOIDX")
    a.fence(4)
    a("s_barrier")
    kv()
    wo(5)
    a("s_waitcnt vmcnt(25)")
    a("s_barrier")
    a("v_mov_b32 v23, 0")
    a("v_mov_b32 v24, 1")
    a(f"s_mov_b32 s45, {WS_CNT + 2048}")
    a("s_mov_b64 exec, 1")
    a("buffer_atomic_add v24, v23, s[24:27], s45 offen sc1")
    a("s_mov_b64 exec, -1")
    kv()
    wo(5)
    a("s_waitcnt vmcnt(25)")
    a("s_barrier")
    wo(6)
    a("s_waitcnt vmcnt(30)")
    a("s_barrier")
    a("s_branch K2_PTAIL")
    a.label("K2_PPLAIN")
    a.fence(4)
    a("s_waitcnt vmcnt(20) lgkmcnt(0)")
    a("s_barrier")
    a("s_mov_b32 s44, 0")
    a("s_waitcnt vmcnt(0)")
    a.label("K2_PLOOP")
    a("s_barrier")
    a("s_cmp_ge_u32 s44, 6")
    a("s_cbranch_scc1 K2_PNODMA")
    kv()
    a.label("K2_PNODMA")
    a("s_cmp_lg_u32 s50, 0")
    a("s_cbranch_scc1 K2_PNOWO")
    wo(2)
    a("s_waitcnt vmcnt(10)")
    a("s_branch K2_PNEXT")
    a.label("K2_PNOWO")
    a("s_waitcnt vmcnt(0)")
    a.label("K2_PNEXT")
    a("s_add_u32 s44, s44, 1")
    a("s_cmp_lt_u32 s44, 8")
    a("s_cbranch_scc1 K2_PLOOP")
    a.label("K2_PTAIL")
    a.fence(4)
    a("v_mov_b32 v20, 0")
    a("s_mov_b32 s44, 0")
    a(f"s_mov_b32 s47, {WS_CNT + 2048}")
    a("buffer_load_dword v26, v20, s[24:27], s47 offen sc1")
    a("s_barrier")
    a("s_cmp_lg_u32 s50, 0")
    a("s_cbranch_scc1 K2_PGO")
    a(f"v_mov_b32 v28, {F_FLAG}")
    a("ds_read_b32 v29, v28")
    a("s_waitcnt lgkmcnt(0)")
    a("v_readfirstlane_b32 s46, v29")
    a("s_cmp_eq_u32 s46, 0")
    a("s_cbranch_scc1 K2_PGO")
    a("s_mov_b32 s50, 1")
    a("s_mov_b32 s43, s32")
    a("s_mov_b32 s44, 0")
    a.label("K2_PMAX")
    a("s_barrier")
    a("s_mov_b32 s42, 0")
    kv()
    a("s_waitcnt vmcnt(0)")
    a("s_barrier")
    a("s_add_u32 s44, s44, 1")
    a("s_cmp_lt_u32 s44, 8")
    a("s_cbranch_scc1 K2_PMAX")
    a("s_barrier")
    a(f"s_mov_b32 s40, {KVB}")
    a(f"s_mov_b32 s41, {2*KVB}")
    a("s_mov_b32 s42, 0")
    a("s_mov_b32 s43, s32")
    kv(); kv()
    a("s_branch K2_PPLAIN")
    a.label("K2_PGO")
    a.fence(4)
    a("s_mov_b32 s59, 0")
    wo(4)
    a("s_barrier")
    a("v_mov_b32 v20, 0")
    a("s_mov_b64 exec, 1")
    a("s_lshl_b32 s45, s29, 8")
    a(f"s_add_u32 s45, s45, {WS_CNT}")
    a.label("K2_POLL2")
    a("buffer_load_dword v22, v20, s[24:27], s45 offen sc1")
    a("s_waitcnt vmcnt(0)")
    a("v_readfirstlane_b32 s46, v22")
    a("s_cmp_ge_u32 s46, 32")
    a("s_cbranch_scc1 K2_PDONE")
    a(f"s_sleep {POLL_SLEEP}")
    a("s_add_u32 s44, s44, 1")
    a(f"s_cmp_lt_u32 s44, {SPIN_MAX}")
    a("s_cbranch_scc1 K2_POLL2")
    a.label("K2_PDONE")
    a(f"s_mov_b32 s47, {WS_CNT + 2048}")
    a.label("K2_POLL1")
    a("v_readfirstlane_b32 s46, v26")
    a(f"s_cmp_ge_u32 s46, {NM2}")
    a("s_cbranch_scc1 K2_POLL1_OK")
    a("s_add_u32 s44, s44, 1")
    a(f"s_cmp_ge_u32 s44, {SPIN_MAX}")
    a("s_cbranch_scc1 K2_POLL1_OK")
    a("s_sleep 4")
    a("buffer_load_dword v26, v20, s[24:27], s47 offen sc1")
    a("s_waitcnt vmcnt(0)")
    a("s_branch K2_POLL1")
    a.label("K2_POLL1_OK")
    a("s_barrier")
```

```python
import sys
from gen import *
from k1c import *
from k2f import *
out = sys.argv[1] if len(sys.argv) > 1 else "parallel_sum__softmax_full_mha__moe_arch_mod__prompt.s"
instr = len(sys.argv) > 2
b1, v1 = gen_k1c(instr, QSCALE=C32*LOG2E)
b2, v2 = gen_k2f(instr)
ks = [("k1_kernel", b1, v1, 256, 512, K1C_LDS), ("k2_kernel", b2, v2, 256, 320, K2F_LDS)]
build(ks, out)
```

```python
from asmlib import Asm
from gen import *
import os

KH = 256 * RB
KVB = 2 * KH
TS = 32 * RB
ONES = 3 * KVB
F_FLAG = ONES + KH
REG = F_FLAG + 256
K2F_LDS = REG + 16 * 5120
LOG2E = 1.4426950408889634
C32 = struct.unpack("<f", struct.pack("<I", 0x3e64f92e))[0]
L_TARGET = -100
L_THRESH = "0x3f800000"
K2F_VGPR = 224
NM2 = 108
WG_, WU_, WD_ = REG, REG + 20480, REG + 40960
XS_ = REG + 61440
HB_ = XS_ + 2560
SPIN_MAX = 1 << 20
FLAGS = int(os.environ.get("FL", 1))
POLL2 = int(os.environ.get("P2", 0))
POLL_SLEEP = int(os.environ.get("PS", 4))
WS_CNT = WS_YP + 5120 + 1024

def gen_k2f(instr=False, slots=None):
    a = Asm()
    st = Stamps(a, instr, base=74)
    st()
    a("s_cmp_ge_u32 s2, 256")
    a("s_cbranch_scc1 K2_END")
    a("s_load_dwordx2 s[10:11], s[0:1], 80")
    a("s_load_dwordx2 s[6:7], s[0:1], 16")
    a("s_load_dwordx2 s[8:9], s[0:1], 0")
    a("s_load_dwordx2 s[52:53], s[0:1], 64")
    a("s_and_b32 s28, s2, 7")
    a("s_lshr_b32 s29, s2, 3")
    a("s_lshr_b32 s30, s29, 3")
    a("s_lshl_b32 s28, s28, 2")
    a("s_add_u32 s28, s28, s30")
    a("s_and_b32 s29, s29, 7")
    a("v_lshrrev_b32 v1, 6, v0")
    a("v_and_b32 v2, 63, v0")
    a("v_readfirstlane_b32 s30, v1")
    QH = [4, 16]; QL = [8, 20]; QX = [12, 24]
    KA = [28, 36]; KX = [32, 40]; V0 = 44
    S = [52, 68]; PP = [84, 92]; O = [100, 116]; T = 132
    NEG = [140, 141]
    vKl, vXl, vVl, vKc, vXc, vVc, vKn, vXn, vDma, vMsk = range(142, 152)
    a("v_lshrrev_b32 v3, 5, v2")
    a(f"v_lshlrev_b32 v{vDma}, 4, v2")
    a("s_lshr_b32 s54, s28, 3")
    a("s_lshl_b32 s55, s29, 2")
    a("s_add_u32 s54, s54, s55")
    a("s_and_b32 s55, s28, 7")
    a("s_mul_i32 s56, s55, 160")
    a("s_waitcnt lgkmcnt(0)")
    srd(a, 24, 10, WS_SIZE)
    a(f"s_mul_i32 s31, s28, {HB2}")
    a(f"s_add_u32 s32, s31, {C_K}")
    a("s_mov_b32 s50, 0")
    a("s_cmp_lg_u32 s30, 4")
    a("s_cbranch_scc1 K2_COMP")
    a("s_setprio 3")
    for part in range(2):
        for g, n in ((0, 4), (1, 4), (2, 2)):
            a(f"s_mov_b32 m0, {part*KH + g*4096}")
            a(f"s_add_u32 s48, s32, {g*4096 + part*(C_V - C_K)}")
            for i in range(n):
                a(f"buffer_load_dwordx4 v{vDma}, s[24:27], s48 offen offset:{i*1024} lds")
    a("s_branch K2_PROD")
    a.label("K2_COMP")
    a(f"v_and_b32 v{T}, 31, v2")
    a(f"v_mul_u32_u24 v{T+1}, {RB}, v{T}")
    a(f"v_lshl_add_u32 v{vKl}, v3, 4, v{T+1}")
    a(f"v_add_u32 v{vXl}, 32, v{T+1}")
    a("s_lshl_b32 s34, s29, 8")
    a("s_lshl_b32 s35, s30, 6")
    a("s_add_u32 s34, s34, s35")
    a(f"s_mul_i32 s35, s34, {RB}")
    a("s_add_u32 s35, s35, s31")
    for sd in range(2):
        for i in range(4): a(f"v_mov_b32 v{QX[sd]+i}, 0")
        a(f"buffer_load_dwordx2 v[{QH[sd]}:{QH[sd]+1}], v{vKl}, s[24:27], s35 offen offset:{sd*TS}")
        a(f"buffer_load_dwordx2 v[{QH[sd]+2}:{QH[sd]+3}], v{vKl}, s[24:27], s35 offen offset:{sd*TS+8}")
    a("s_mov_b64 exec, 0xffffffff")
    for sd in range(2):
        a(f"buffer_load_dwordx2 v[{QX[sd]}:{QX[sd]+1}], v{vXl}, s[24:27], s35 offen offset:{sd*TS}")
    a("s_mov_b64 exec, -1")
    XR = 192; EA = 214
    a("s_lshl_b32 s57, s54, 6")
    a("s_lshl_b32 s33, s30, 4")
    a("s_add_u32 s57, s57, s33")
    a(f"v_and_b32 v{T+2}, 15, v2")
    a(f"v_lshrrev_b32 v{T+3}, 4, v2")
    a(f"v_add_u32 v{T+4}, s57, v{T+2}")
    a(f"v_mul_u32_u24 v{T+4}, 1280, v{T+4}")
    a(f"v_lshl_add_u32 v{EA}, v{T+3}, 3, v{T+4}")
    a(f"v_add_u32 v{EA}, s56, v{EA}")
    srd(a, 16, 8, 2621440)
    srd(a, 20, 52, 2621440)
    for nt in range(5):
        a(f"buffer_load_dwordx2 v[{XR+2*nt}:{XR+2*nt+1}], v{EA}, s[16:19], 0 offen offset:{nt*32}")
    a(f"v_lshlrev_b32 v{T+2}, 3, v{T+2}")
    a("s_lshl_b32 s37, s57, 3")
    a(f"s_add_u32 s37, s37, {WS_ST}")
    a(f"buffer_load_dwordx2 v[212:213], v{T+2}, s[24:27], s37 offen")
    a(f"v_bfe_u32 v{T+2}, v2, 2, 2")
    a(f"v_lshl_add_u32 v{T+2}, v3, 2, v{T+2}")
    a(f"v_mul_u32_u24 v{T+2}, {RB}, v{T+2}")
    a(f"v_bfe_u32 v{T+3}, v2, 4, 1")
    a(f"v_and_b32 v{T+4}, 3, v2")
    a(f"v_lshl_add_u32 v{T+3}, v{T+3}, 2, v{T+4}")
    a(f"v_lshl_add_u32 v{T+2}, v{T+3}, 3, v{T+2}")
    a(f"v_add_u32 v{T+2}, {KH}, v{T+2}")
    a(f"v_mov_b32 v{T+4}, {ONES}")
    a(f"v_cmp_gt_u32 vcc, 5, v{T+3}")
    a(f"v_cndmask_b32 v{vVl}, v{T+4}, v{T+2}, vcc")
    a(f"v_cndmask_b32 v{vMsk}, 0, -1, vcc")
    a(f"v_mov_b32 v{T}, 0x3f803f80")
    for i in range(1, 4): a(f"v_mov_b32 v{T+i}, v{T}")
    for kb in range(2):
        a(f"v_mov_b32 v{KX[kb]+2}, v{T}"); a(f"v_mov_b32 v{KX[kb]+3}, v{T}")
    a(f"v_lshlrev_b32 v{T+4}, 4, v0")
    a(f"v_add_u32 v{T+4}, {ONES}, v{T+4}")
    a(f"ds_write_b128 v{T+4}, v[{T}:{T+3}]")
    a(f"ds_write_b128 v{T+4}, v[{T}:{T+3}] offset:4096")
    a(f"v_lshlrev_b32 v{T+4}, 3, v0")
    a(f"v_add_u32 v{T+4}, {ONES + 8192}, v{T+4}")
    a(f"ds_write_b64 v{T+4}, v[{T}:{T+1}]")
    a("s_mov_b32 s72, 0")
    def mm(d, x, y, c):
        cc = "0" if c is None else f"v[{c}:{c+15}]"
        a(f"v_mfma_f32_32x32x16_bf16 v[{d}:{d+15}], v[{x}:{x+3}], v[{y}:{y+3}], {cc}")
    def qk(sd, kb):
        mm(S[sd], KA[kb], QH[sd], None); mm(S[sd], KX[kb], QX[sd], S[sd])
    def kread(aK, aX, t, kb):
        a(f"ds_read_b64 v[{KA[kb]}:{KA[kb]+1}], v{aK} offset:{t*TS}")
        a(f"ds_read_b64 v[{KA[kb]+2}:{KA[kb]+3}], v{aK} offset:{t*TS+8}")
        a(f"ds_read_b64 v[{KX[kb]}:{KX[kb]+1}], v{aX} offset:{t*TS}")
    def vread(addr, t):
        for aa in range(2):
            for hi in range(2):
                r = V0 + aa*4 + hi*2
                a(f"ds_read_b64_tr_b16 v[{r}:{r+1}], v{addr} offset:{t*TS + aa*16*RB + hi*8*RB}")
    def halfmax(r, tmp):
        a(f"v_mov_b32 v{tmp}, v{r}")
        a(f"v_permlane32_swap_b32 v{r}, v{tmp}")
        a(f"v_max_f32 v{r}, v{r}, v{tmp}")
    def split_neg(sd):
        a(f"v_cvt_pk_bf16_f32 v{T+2}, 0, v{NEG[sd]}")
        a(f"v_sub_f32 v{T+3}, v{NEG[sd]}, v{T+2}")
        a(f"v_cvt_pk_bf16_f32 v{T+4}, 0, v{T+3}")
        a(f"v_sub_f32 v{T+3}, v{T+3}, v{T+4}")
        a("s_mov_b64 exec, 0xffffffff")
        a(f"v_cvt_pk_bf16_f32 v{QX[sd]+2}, v{T+2}, v{T+4}")
        a(f"v_cvt_pk_bf16_f32 v{QX[sd]+3}, v{T+3}, 0")
        a("s_mov_b64 exec, -1")
    a(f"v_mov_b32 v{T}, {F_FLAG}")
    a(f"v_mov_b32 v{T+1}, 0")
    a(f"ds_write_b32 v{T}, v{T+1}")
    a("s_waitcnt vmcnt(6)")
    a.label("K2_MAIN")
    a.fence(4)
    a("s_mov_b32 s40, 0")
    a(f"s_mov_b32 s41, {KVB}")
    a(f"s_mov_b32 s42, {2*KVB}")
    for i in range(32): a(f"v_mov_b32 v{O[0]+i}, 0")
    for i in range(8): a(f"v_mov_b32 v{PP[1]+i}, 0")
    for i in range(8): a(f"v_mov_b32 v{V0+i}, 0")
    a("s_waitcnt lgkmcnt(0)")
    st()
    a("s_barrier")
    a(f"v_mov_b32 v{vKc}, v{vKl}")
    a(f"v_mov_b32 v{vXc}, v{vXl}")
    a(f"v_mov_b32 v{vVc}, v{vVl}")
    a(f"v_add_u32 v{vKn}, {KVB}, v{vKl}")
    a(f"v_add_u32 v{vXn}, {KVB}, v{vXl}")
    kread(vKc, vXc, 0, 0)
    a("s_waitcnt lgkmcnt(0)")
    qk(0, 0)
    a("s_cmp_lg_u32 s50, 0")
    a("s_cbranch_scc1 K2_SKIPMAX")
    qk(1, 0)
    for sd in range(2):
        a(f"v_max3_f32 v{T}, v{S[sd]}, v{S[sd]+1}, v{S[sd]+2}")
        for i in range(3, 15, 2):
            a(f"v_max3_f32 v{T}, v{T}, v{S[sd]+i}, v{S[sd]+i+1}")
        a(f"v_max_f32 v{T}, v{T}, v{S[sd]+15}")
        halfmax(T, T+1)
        a(f"v_sub_f32 v{NEG[sd]}, {f32(float(L_TARGET))}, v{T}")
        split_neg(sd)
    for i in range(16): a(f"v_add_f32 v{S[0]+i}, v{S[0]+i}, v{NEG[0]}")
    a.label("K2_SKIPMAX")
    a.fence(16)
    a("s_mov_b32 s44, 0")
    a("s_mov_b64 vcc, 0")
    st()
    a.label("K2_LOOP")
    if slots is None: slots = [8, 48, 88, 128]
    for t in range(8):
        for sd in range(2):
            Sc = S[sd]; Pc = PP[sd]; ot = sd ^ 1
            if sd == 0 and t % 4 == 0:
                a(f"s_cbranch_vccnz K2_RC{t}")
                a.label(f"K2_NR{t}")
            if sd == 0 and t == 7:
                a("s_barrier")
            E = []
            for i in range(8):
                E.append((f"v_exp_f32 v{Sc+2*i}, v{Sc+2*i}", 8))
                E.append((f"v_exp_f32 v{Sc+2*i+1}, v{Sc+2*i+1}", 8))
                if i > 0: E.append((f"v_cvt_pk_bf16_f32 v{Pc+i-1}, v{Sc+2*i-2}, v{Sc+2*i-1}", 4))
            E.append((f"v_cvt_pk_bf16_f32 v{Pc+7}, v{Sc+14}, v{Sc+15}", 4))
            names = ["qkA", "qkC", "pv0", "pv1"]
            kb = (t % 2) if sd == 0 else ((t+1) % 2)
            pos = 0; k = 0; n = 0
            for ins, cst in E:
                while k < 4 and pos >= slots[k]:
                    what = names[k]; k += 1
                    if what == "qkA":
                        if sd == 1: a("s_waitcnt lgkmcnt(4)")
                        mm(S[ot], KA[kb], QH[ot], None)
                    elif what == "qkB": mm(S[ot], KA[kb], QL[ot], S[ot])
                    elif what == "qkC": mm(S[ot], KX[kb], QX[ot], S[ot])
                    elif what == "pv0":
                        if sd == 1: a("s_waitcnt lgkmcnt(0)")
                        mm(O[ot], V0, PP[ot], O[ot])
                    elif what == "pv1":
                        mm(O[ot], V0+4, PP[ot]+4, O[ot])
                        if sd == 0: vread(vVc, t)
                a(ins); pos += cst; n += 1
                if sd == 1 and t % 4 == 3 and n == 8:
                    a(f"v_max_f32 v{T}, v{O[0]+12}, v{O[1]+12}")
                    a(f"v_cmp_lt_f32 vcc, {L_THRESH}, v{T}")
                if sd == 0 and n == 1:
                    if t + 1 < 8: kread(vKc, vXc, t+1, (t+1) % 2)
                    else: kread(vKn, vXn, 0, 0)
            assert k == 4
    a("s_mov_b32 s45, s40")
    a("s_mov_b32 s40, s41")
    a("s_mov_b32 s41, s42")
    a("s_mov_b32 s42, s45")
    a(f"v_add_u32 v{vKc}, s40, v{vKl}")
    a(f"v_add_u32 v{vXc}, s40, v{vXl}")
    a(f"v_and_b32 v{vVc}, s40, v{vMsk}")
    a(f"v_add_u32 v{vVc}, v{vVc}, v{vVl}")
    a(f"v_add_u32 v{vKn}, s41, v{vKl}")
    a(f"v_add_u32 v{vXn}, s41, v{vXl}")
    a("s_add_u32 s44, s44, 1")
    a("s_cmp_lt_u32 s44, 8")
    a("s_cbranch_scc1 K2_LOOP")
    st()
    mm(O[1], V0, PP[1], O[1])
    mm(O[1], V0+4, PP[1]+4, O[1])
    a("s_waitcnt lgkmcnt(0)")
    a("s_cmp_lg_u32 s50, 0")
    a("s_cbranch_scc1 K2_VOTED")
    a(f"v_mul_f32 v{T}, 0, v{O[0]}")
    for sd in range(2):
        for i in range(13):
            if sd or i: a(f"v_fma_f32 v{T}, v{O[sd]+i}, 0, v{T}")
    a(f"v_cmp_u_f32 vcc, v{T}, v{T}")
    a(f"v_mov_b32 v{T+1}, {F_FLAG}")
    a(f"v_mov_b32 v{T+2}, 1")
    a("s_and_saveexec_b64 s[46:47], vcc")
    a("s_cbranch_execz K2_NOFLAG")
    a(f"ds_write_b32 v{T+1}, v{T+2}")
    a.label("K2_NOFLAG")
    a("s_mov_b64 exec, s[46:47]")
    a("s_waitcnt lgkmcnt(0)")
    a.label("K2_VOTED")
    a("s_barrier")
    a("s_cmp_lg_u32 s50, 0")
    a("s_cbranch_scc1 K2_EPI")
    a(f"ds_read_b32 v{T+2}, v{T+1}")
    a("s_waitcnt lgkmcnt(0)")
    a(f"v_readfirstlane_b32 s46, v{T+2}")
    a("s_cmp_eq_u32 s46, 0")
    a("s_cbranch_scc1 K2_EPI")
    a("s_mov_b32 s50, 1")
    a("s_mov_b32 s44, 0")
    for sd in range(2):
        a(f"v_mov_b32 v{QX[sd]+2}, 0")
        a(f"v_mov_b32 v{QX[sd]+3}, 0")
        a(f"v_mov_b32 v{T+6+sd}, 0xff800000")
    a.label("K2_MAXLOOP")
    a("s_barrier")
    a("s_barrier")
    a("s_mov_b32 s45, 0")
    a(f"v_mov_b32 v{vKc}, v{vKl}")
    a(f"v_mov_b32 v{vXc}, v{vXl}")
    a.label("K2_MAXT")
    kread(vKc, vXc, 0, 0)
    a(f"v_add_u32 v{vKc}, {TS}, v{vKc}")
    a(f"v_add_u32 v{vXc}, {TS}, v{vXc}")
    a("s_waitcnt lgkmcnt(0)")
    qk(0, 0); qk(1, 0)
    for sd in range(2):
        for i in range(0, 16, 2):
            a(f"v_max3_f32 v{T+6+sd}, v{T+6+sd}, v{S[sd]+i}, v{S[sd]+i+1}")
    a("s_add_u32 s45, s45, 1")
    a("s_cmp_lt_u32 s45, 8")
    a("s_cbranch_scc1 K2_MAXT")
    a("s_add_u32 s44, s44, 1")
    a("s_cmp_lt_u32 s44, 8")
    a("s_cbranch_scc1 K2_MAXLOOP")
    for sd in range(2):
        halfmax(T+6+sd, T+1)
        a(f"v_sub_f32 v{NEG[sd]}, {f32(float(L_TARGET))}, v{T+6+sd}")
        split_neg(sd)
    a("s_barrier")
    a("s_branch K2_MAIN")
    a.label("K2_EPI")
    a.fence(16)
    a("v_and_b32 v20, 31, v2")
    a("v_add_u32 v20, s34, v20")
    a("v_lshrrev_b32 v21, 4, v20")
    a("v_mul_u32_u24 v21, 20480, v21")
    a("v_and_b32 v20, 15, v20")
    a("v_lshl_add_u32 v20, v20, 4, v21")
    a(f"s_mov_b32 s36, {WS_O}")
    a(f"s_mov_b32 s37, {WS_O + 2*20480}")
    a("s_mul_i32 s35, s28, 5")
    a("s_add_u32 s33, s35, 1")
    a("s_lshr_b32 s33, s33, 1")
    a("v_add_u32 v21, s33, v3")
    a("v_lshl_add_u32 v24, v21, 8, v20")
    a("s_and_b32 s38, s28, 1")
    a("s_add_u32 s39, s33, 2")
    a("s_lshl_b32 s39, s39, 8")
    a("s_sub_u32 s33, s33, 1")
    a("s_lshl_b32 s33, s33, 8")
    a("s_add_u32 s33, s33, 8")
    a("s_cmp_eq_u32 s38, 0")
    a("s_cselect_b32 s33, s39, s33")
    a("v_add_u32 v25, s33, v20")
    for sd in range(2):
        a(f"v_rcp_f32 v{T}, v{O[sd]+12}")
        for i in range(12): a(f"v_mul_f32 v{O[sd]+i}, v{O[sd]+i}, v{T}")
        for i in range(6): a(f"v_cvt_pk_bf16_f32 v{PP[sd]+i}, v{O[sd]+2*i}, v{O[sd]+2*i+1}")
    a("s_cmp_lg_u32 s38, 0")
    a("s_cbranch_scc1 K2_ODDH")
    for sd in range(2):
        p = PP[sd]
        a(f"v_permlane32_swap_b32 v{p}, v{p+2}")
        a(f"v_permlane32_swap_b32 v{p+1}, v{p+3}")
        a(f"buffer_store_dwordx4 v[{p}:{p+3}], v24, s[24:27], s{36+sd} offen sc1")
    a("s_mov_b64 exec, 0xffffffff")
    for sd in range(2):
        a(f"buffer_store_dwordx2 v[{PP[sd]+4}:{PP[sd]+5}], v25, s[24:27], s{36+sd} offen sc1")
    a("s_mov_b64 exec, -1")
    a("s_branch K2_OST")
    a.label("K2_ODDH")
    a.fence(4)
    a("s_mov_b64 exec, 0xffffffff")
    for sd in range(2):
        a(f"buffer_store_dwordx2 v[{PP[sd]}:{PP[sd]+1}], v25, s[24:27], s{36+sd} offen sc1")
    a("s_mov_b64 exec, -1")
    for sd in range(2):
        p = PP[sd]; d = O[sd]
        a(f"v_permlane32_swap_b32 v{p}, v{p+4}")
        a(f"v_permlane32_swap_b32 v{p+1}, v{p+5}")
        a(f"v_mov_b32 v{d}, v{p+2}"); a(f"v_mov_b32 v{d+1}, v{p+3}")
        a(f"v_mov_b32 v{d+2}, v{p}"); a(f"v_mov_b32 v{d+3}, v{p+1}")
        a("s_mov_b64 exec, 0xffffffff")
        a(f"v_mov_b32 v{d}, v{p+4}"); a(f"v_mov_b32 v{d+1}, v{p+5}")
        a(f"v_mov_b32 v{d+2}, v{p+2}"); a(f"v_mov_b32 v{d+3}, v{p+3}")
        a("s_mov_b64 exec, -1")
        a(f"buffer_store_dwordx4 v[{d}:{d+3}], v24, s[24:27], s{36+sd} offen sc1")
    a.label("K2_OST")
    a.fence(4)
    OB = 40; ACC = 20; AF = 140
    a("v_and_b32 v3, 15, v2")
    a("v_lshrrev_b32 v4, 4, v2")
    a("v_lshlrev_b32 v15, 4, v2")
    a(f"v_mov_b32 v16, v{EA}")
    a("v_bfe_u32 v5, v2, 2, 2")
    a("v_lshl_add_u32 v5, v4, 2, v5")
    a("v_mul_u32_u24 v5, 160, v5")
    a("v_and_b32 v6, 3, v2")
    a("v_lshl_add_u32 v19, v6, 3, v5")
    a(f"v_add_u32 v17, {REG}, v19")
    a(f"v_add_u32 v18, {REG + 40960}, v19")
    a("s_waitcnt vmcnt(0)")
    st()
    a("s_barrier")
    a("s_cmp_lg_u32 s30, 0")
    a("s_cbranch_scc1 K2_NOSIG")
    a("v_mov_b32 v6, 1")
    a("s_lshl_b32 s33, s29, 8")
    a(f"s_add_u32 s33, s33, {WS_CNT}")
    if FLAGS:
        a("s_lshl_b32 s38, s28, 2")
        a("v_mov_b32 v7, s38")
        a("s_mov_b64 exec, 1")
        a("buffer_store_dword v6, v7, s[24:27], s33 offen sc1")
    else:
        a("v_mov_b32 v7, 0")
        a("s_mov_b64 exec, 1")
        a("buffer_atomic_add v6, v7, s[24:27], s33 offen sc1")
    a("s_mov_b64 exec, -1")
    a.label("K2_NOSIG")
    for q in range(10):
        x = XR + q; xn = XR + 10 + q
        a(f"v_lshlrev_b32 v6, 16, v{x}")
        a(f"v_and_b32 v7, 0xffff0000, v{x}")
        a("v_sub_f32 v6, v6, v212"); a("v_sub_f32 v7, v7, v212")
        a("v_cvt_pk_bf16_f32 v6, 0, v6"); a("v_cvt_pk_bf16_f32 v7, 0, v7")
        a("v_mul_f32 v6, v6, v213"); a("v_mul_f32 v7, v7, v213")
        a(f"v_cvt_pk_bf16_f32 v{xn}, v6, v7")
    a("s_barrier")
    st()
    a("s_lshr_b32 s36, s57, 4")
    a("s_mul_i32 s36, s36, 20480")
    a(f"s_add_u32 s36, s36, {WS_O}")
    for ks in range(20):
        if ks % 4 == 0 and ks: a("s_add_u32 s36, s36, 4096")
        a(f"buffer_load_dwordx4 v[{OB+4*ks}:{OB+4*ks+3}], v15, s[24:27], s36 offen offset:{(ks%4)*1024} sc1")
    a("v_mov_b32 v6, 0")
    a(f"s_mov_b32 s38, {WS_IDX}")
    a("buffer_load_dwordx4 v[8:11], v6, s[24:27], s38 offen sc1")
    def areads(ks):
        stt = AF + (ks % 2)*20
        ad = 17 if ks < 8 else (18 if ks < 16 else 19)
        for nt in range(5):
            for hi in range(2):
                r = stt + nt*4 + hi*2
                a(f"ds_read_b64_tr_b16 v[{r}:{r+1}], v{ad} offset:{(ks%8)*5120 + nt*32 + hi*2560}")
    def mf(ks):
        stt = AF + (ks % 2)*20
        for nt in range(5):
            d = ACC + 4*nt
            cc = "0" if ks == 0 else f"v[{d}:{d+3}]"
            a(f"v_mfma_f32_16x16x32_bf16 v[{d}:{d+3}], v[{stt+nt*4}:{stt+nt*4+3}], v[{OB+4*ks}:{OB+4*ks+3}], {cc}")
    areads(0)
    for ks in range(20):
        if ks + 1 < 20:
            areads(ks + 1)
            a(f"s_waitcnt vmcnt({20 - ks}) lgkmcnt(10)")
        else:
            a("s_waitcnt vmcnt(0) lgkmcnt(0)")
        mf(ks)
    st()
    for i in range(4): a(f"v_readfirstlane_b32 s{44+i}, v{8+i}")
    a("s_lshr_b32 s33, s57, 4")
    for tok in range(2):
        a(f"s_lshr_b32 s38, s{44+tok}, 4")
        a("s_cmp_lg_u32 s38, s33")
        a(f"s_cbranch_scc1 K2_NOMOE{tok}")
        a(f"s_and_b32 s38, s{44+tok}, 15")
        a("v_cmp_eq_u32 vcc, s38, v3")
        a("s_and_saveexec_b64 s[40:41], vcc")
        a("v_lshlrev_b32 v5, 4, v4")
        a("s_mul_i32 s39, s55, 320")
        a(f"s_add_u32 s39, s39, {WS_YP + tok*2560}")
        for nt in range(5):
            a(f"buffer_load_dwordx4 v[{AF+4*nt}:{AF+4*nt+3}], v5, s[24:27], s39 offen offset:{nt*64} sc1")
        a("s_waitcnt vmcnt(0)")
        for nt in range(5):
            for e in range(4):
                y = AF + 4*nt + e
                a(f"v_cvt_pk_bf16_f32 v{y}, 0, v{y}")
                a(f"v_mul_f32 v{y}, s{46+tok}, v{y}")
                a(f"v_cvt_pk_bf16_f32 v{y}, 0, v{y}")
            for d in range(2):
                xn = XR + 10 + 2*nt + d
                a(f"v_lshlrev_b32 v6, 16, v{xn}")
                a(f"v_and_b32 v7, 0xffff0000, v{xn}")
                a(f"v_add_f32 v6, v6, v{AF+4*nt+2*d}")
                a(f"v_add_f32 v7, v7, v{AF+4*nt+2*d+1}")
                a(f"v_cvt_pk_bf16_f32 v{xn}, v6, v7")
        a("s_mov_b64 exec, s[40:41]")
        a.label(f"K2_NOMOE{tok}")
        a.fence(4)
    for nt in range(5):
        for d in range(2):
            A0 = ACC + 4*nt + 2*d
            x = XR + 2*nt + d; xn = XR + 10 + 2*nt + d
            a(f"v_cvt_pk_bf16_f32 v{A0}, 0, v{A0}")
            a(f"v_cvt_pk_bf16_f32 v{A0+1}, 0, v{A0+1}")
            a(f"v_lshlrev_b32 v6, 16, v{x}")
            a(f"v_and_b32 v7, 0xffff0000, v{x}")
            a(f"v_add_f32 v{A0}, v{A0}, v6")
            a(f"v_add_f32 v{A0+1}, v{A0+1}, v7")
            a(f"v_cvt_pk_bf16_f32 v{A0}, 0, v{A0}")
            a(f"v_cvt_pk_bf16_f32 v{A0+1}, 0, v{A0+1}")
            a(f"v_lshlrev_b32 v6, 16, v{xn}")
            a(f"v_and_b32 v7, 0xffff0000, v{xn}")
            a(f"v_add_f32 v{A0}, v{A0}, v6")
            a(f"v_add_f32 v{A0+1}, v{A0+1}, v7")
            a(f"v_cvt_pk_bf16_f32 v{x}, v{A0}, v{A0+1}")
        a(f"buffer_store_dwordx2 v[{XR+2*nt}:{XR+2*nt+1}], v16, s[20:23], 0 offen offset:{nt*32}")
    if instr:
        a("s_waitcnt vmcnt(0)")
        st()
        st.dump(1, 30, 2)
    a("s_endpgm")
    for t in (0, 4):
        a.label(f"K2_RC{t}")
        a("s_call_b64 s[60:61], K2_RECENTER")
        a(f"s_branch K2_NR{t}")
    a.label("K2_RECENTER")
    a.fence(16)
    a("s_add_u32 s72, s72, 1")
    mm(O[1], V0, PP[1], O[1])
    mm(O[1], V0+4, PP[1]+4, O[1])
    for i in range(8): a(f"v_mov_b32 v{PP[1]+i}, 0")
    for sd in range(2):
        a(f"v_frexp_exp_i32_f32 v{T}, v{O[sd]+12}")
        a(f"v_sub_u32 v{T}, {L_TARGET+1}, v{T}")
        for i in range(13): a(f"v_ldexp_f32 v{O[sd]+i}, v{O[sd]+i}, v{T}")
        a(f"v_cvt_f32_i32 v{T}, v{T}")
        a(f"v_add_f32 v{NEG[sd]}, v{NEG[sd]}, v{T}")
        if sd == 0:
            for i in range(16): a(f"v_add_f32 v{S[0]+i}, v{S[0]+i}, v{T}")
        split_neg(sd)
    a("s_nop 3")
    a("s_setpc_b64 s[60:61]")
    gen_producer(a, vDma)
    a.label("K2_END")
    a("s_endpgm")
    return a.text(), K2F_VGPR

def gen_producer(a, vDma):
    a.label("K2_KVDMA")
    for part in range(2):
        for g, n in ((0, 4), (1, 4), (2, 2)):
            a(f"s_add_u32 m0, s42, {part*KH + g*4096}")
            a(f"s_add_u32 s48, s43, {g*4096 + part*(C_V - C_K)}")
            for i in range(n):
                a(f"buffer_load_dwordx4 v{vDma}, s[24:27], s48 offen offset:{i*1024} lds")
    a(f"s_add_u32 s43, s43, {KH}")
    a("s_mov_b32 s45, s40")
    a("s_mov_b32 s40, s41")
    a("s_mov_b32 s41, s42")
    a("s_mov_b32 s42, s45")
    a("s_setpc_b64 s[60:61]")
    a.label("K2_WODMA")
    for ii in range(5):
        a(f"s_add_u32 m0, s59, {ii*1024}")
        a(f"buffer_load_dwordx4 v{10+ii}, s[16:19], s58 offen lds")
    a("s_add_u32 s58, s58, 40960")
    a("s_add_u32 s59, s59, 5120")
    a("s_setpc_b64 s[62:63]")
    def kv(): a("s_call_b64 s[60:61], K2_KVDMA")
    def wo(n):
        for _ in range(n): a("s_call_b64 s[62:63], K2_WODMA")
    a.label("K2_PROD")
    a.fence(4)
    a("s_load_dwordx4 s[64:67], s[0:1], 40")
    a("s_load_dwordx2 s[68:69], s[0:1], 56")
    a(f"s_mov_b32 s40, {2*KVB}")
    a("s_mov_b32 s41, 0")
    a(f"s_mov_b32 s42, {KVB}")
    a(f"s_add_u32 s43, s32, {KH}")
    kv()
    srd(a, 16, 6, 819200)
    for ii in range(5):
        a(f"v_add_u32 v5, {ii*64}, v2")
        a("v_mul_u32_u24 v6, 52429, v5")
        a("v_lshrrev_b32 v6, 19, v6")
        a("v_mul_u32_u24 v7, 10, v6")
        a("v_sub_u32 v7, v5, v7")
        a("v_and_b32 v8, 3, v6")
        a("v_bfe_u32 v9, v6, 2, 2")
        a("v_lshl_add_u32 v8, v9, 3, v8")
        a("v_lshrrev_b32 v9, 4, v6")
        a("v_lshl_add_u32 v6, v9, 2, v8")
        a("v_mul_u32_u24 v6, 1280, v6")
        a("v_lshl_add_u32 v6, v7, 4, v6")
        a(f"v_add_u32 v{10+ii}, s56, v6")
    a("s_mov_b32 s58, 0")
    a(f"s_mov_b32 s59, {REG}")
    a("s_and_b32 s51, s2, 7")
    a("s_mul_i32 s51, s51, 14")
    a("s_lshr_b32 s45, s2, 3")
    a("s_add_u32 s51, s51, s45")
    a("s_cmp_ge_u32 s45, 14")
    a("s_cbranch_scc1 K2_PPLAIN")
    a(f"s_cmp_ge_u32 s51, {NM2}")
    a("s_cbranch_scc1 K2_PPLAIN")
    a(f"s_mov_b32 s45, {WS_R}")
    for jx in range(8):
        if jx == 4: a(f"s_mov_b32 s45, {WS_R + 4096}")
        a(f"buffer_load_dwordx4 v[{32+4*jx}:{35+4*jx}], v{vDma}, s[24:27], s45 offen offset:{(jx%4)*1024}")
    a("s_waitcnt vmcnt(28) lgkmcnt(0)")
    a("s_barrier")
    srd(a, 84, 64, 640*3456)
    srd(a, 88, 66, 640*3456)
    srd(a, 92, 68, 1728*1280)
    a("v_lshrrev_b32 v5, 1, v2")
    a("v_mul_u32_u24 v16, 3456, v5")
    a("v_and_b32 v5, 1, v2")
    a("v_lshl_add_u32 v16, v5, 4, v16")
    a("s_lshl_b32 s45, s51, 5")
    a("v_add_u32 v16, s45, v16")
    a("s_waitcnt vmcnt(0)")
    def combine(n1, n2):
        a(f"v_min_u32 v20, v18, v{n1}")
        a(f"v_max_u32 v18, v18, v{n1}")
        a(f"v_max3_u32 v19, v20, v19, v{n2}")
    a("v_max_u32 v18, v32, v33"); a("v_min_u32 v19, v32, v33")
    for p in range(34, 64, 2):
        a(f"v_max_u32 v21, v{p}, v{p+1}"); a(f"v_min_u32 v22, v{p}, v{p+1}")
        combine(21, 22)
    for stp in (1, 2, 4, 8, 16, 32):
        a(f"v_xor_b32 v23, {stp}, v2")
        a("v_lshlrev_b32 v23, 2, v23")
        a("ds_bpermute_b32 v21, v23, v18")
        a("ds_bpermute_b32 v22, v23, v19")
        a("s_waitcnt lgkmcnt(0)")
        combine(21, 22)
    a("v_readfirstlane_b32 s70, v18")
    a("v_readfirstlane_b32 s71, v19")
    a("s_and_b32 s46, s70, 0xffff"); a("s_sub_u32 s46, 2047, s46")
    a("s_and_b32 s47, s71, 0xffff"); a("s_sub_u32 s47, 2047, s47")
    def wchunk(t0, t1):
        for t in range(t0, t1):
            a(f"s_mov_b32 s45, {t*110592}")
            a(f"s_mov_b32 m0, {WG_ + t*1024}")
            a("buffer_load_dwordx4 v16, s[84:87], s45 offen lds")
            a(f"s_mov_b32 m0, {WU_ + t*1024}")
            a("buffer_load_dwordx4 v16, s[88:91], s45 offen lds")
    srd(a, 96, 8, 2621440)
    a("v_mov_b32 v23, 0")
    for tok in range(2):
        a(f"s_mul_i32 s45, s{46+tok}, 1280")
        a(f"s_mov_b32 m0, {XS_ + tok*1280}")
        a(f"buffer_load_dwordx4 v{vDma}, s[96:99], s45 offen lds")
        a("s_mov_b64 exec, 0xffff")
        a(f"buffer_load_dwordx4 v{vDma}, s[96:99], s45 offen offset:1024 lds")
        a("s_mov_b64 exec, -1")
        a(f"s_lshl_b32 s45, s{46+tok}, 3")
        a(f"s_add_u32 s45, s45, {WS_ST}")
        a(f"buffer_load_dwordx2 v[{60+tok*2}:{61+tok*2}], v23, s[24:27], s45 offen")
    wchunk(0, 8)
    a("s_barrier")
    kv()
    wchunk(8, 20)
    a("s_waitcnt vmcnt(24)")
    a("s_barrier")
    kv()
    a("s_mul_i32 s45, s51, 20480")
    for g in range(5):
        a(f"s_mov_b32 m0, {WD_ + g*4096}")
        for i in range(4):
            a(f"buffer_load_dwordx4 v{vDma}, s[92:95], s45 offen offset:{i*1024} lds")
        if g < 4: a("s_add_u32 s45, s45, 4096")
    a("s_waitcnt vmcnt(20)")
    a("s_barrier")
    kv()
    a("v_lshrrev_b32 v4, 4, v2")
    a("v_and_b32 v5, 1, v2")
    a("v_mul_u32_u24 v20, 1280, v5")
    a(f"v_add_u32 v20, {XS_}, v20")
    a(f"v_mov_b32 v6, {ONES}")
    a("v_and_b32 v7, 2, v2")
    a("v_cmp_eq_u32 vcc, 0, v7")
    a("v_cndmask_b32 v20, v6, v20, vcc")
    a("v_lshl_add_u32 v20, v4, 3, v20")
    a("v_bfe_u32 v6, v2, 2, 2")
    a("v_lshl_add_u32 v6, v4, 2, v6")
    a("v_and_b32 v7, 3, v2")
    a("v_lshlrev_b32 v21, 5, v6")
    a("v_lshl_add_u32 v21, v7, 3, v21")
    a(f"v_add_u32 v21, {WG_}, v21")
    a("v_mul_u32_u24 v22, 1280, v6")
    a("v_lshl_add_u32 v22, v7, 3, v22")
    a(f"v_add_u32 v22, {WD_}, v22")
    for i in range(8): a(f"v_mov_b32 v{24+i}, 0")
    a("s_mov_b32 s45, 0")
    a.label("K2_GU")
    for u in range(2):
        b = 32 + u*12
        a(f"ds_read_b64 v[{b}:{b+1}], v20 offset:{u*64}")
        a(f"ds_read_b64 v[{b+2}:{b+3}], v20 offset:{u*64+32}")
        for mat in range(2):
            a(f"ds_read_b64_tr_b16 v[{b+4+4*mat}:{b+5+4*mat}], v21 offset:{mat*20480 + u*1024}")
            a(f"ds_read_b64_tr_b16 v[{b+6+4*mat}:{b+7+4*mat}], v21 offset:{mat*20480 + u*1024 + 512}")
    a("v_add_u32 v20, 128, v20")
    a("v_add_u32 v21, 2048, v21")
    a("s_waitcnt lgkmcnt(0)")
    for u in range(2):
        b = 32 + u*12
        for mat in range(2):
            a(f"v_mfma_f32_16x16x32_bf16 v[{24+4*mat}:{27+4*mat}], v[{b}:{b+3}], v[{b+4+4*mat}:{b+7+4*mat}], v[{24+4*mat}:{27+4*mat}]")
    a("s_add_u32 s45, s45, 1")
    a("s_cmp_lt_u32 s45, 10")
    a("s_cbranch_scc1 K2_GU")
    a("s_waitcnt vmcnt(0)")
    a("s_barrier")
    kv()
    for tok in range(2):
        g = 24 + tok; u = 28 + tok
        a(f"v_fma_f32 v{g}, -v{60+2*tok}, v26, v{g}")
        a(f"v_fma_f32 v{u}, -v{60+2*tok}, v30, v{u}")
        a(f"v_mul_f32 v{g}, v{g}, v{61+2*tok}")
        a(f"v_mul_f32 v{u}, v{u}, v{61+2*tok}")
        a(f"v_cvt_pk_bf16_f32 v{g}, 0, v{g}")
        a(f"v_cvt_pk_bf16_f32 v{u}, 0, v{u}")
        a(f"v_mul_f32 v32, {f32(-LOG2E)}, v{g}")
        a("v_exp_f32 v32, v32")
        a("v_add_f32 v32, 1.0, v32")
        a("v_rcp_f32 v32, v32")
        a(f"v_mul_f32 v32, v{g}, v32")
        a("v_cvt_pk_bf16_f32 v32, 0, v32")
        a(f"v_mul_f32 v32, v32, v{u}")
        a(f"v_cvt_pk_bf16_f32 v{33+tok}, v32, 0")
    a("v_lshlrev_b32 v23, 1, v2")
    a(f"v_add_u32 v23, {HB_}, v23")
    a("s_mov_b64 exec, 0xffff")
    a("ds_write_b16 v23, v33")
    a("ds_write_b16 v23, v34 offset:32")
    a("s_mov_b64 exec, -1")
    a("v_lshlrev_b32 v23, 5, v5")
    a("v_lshl_add_u32 v23, v4, 3, v23")
    a(f"v_add_u32 v23, {HB_}, v23")
    a("s_waitcnt lgkmcnt(0)")
    a("ds_read_b64 v[24:25], v23")
    a("v_mov_b32 v26, 0"); a("v_mov_b32 v27, 0")
    for q in range(4):
        a(f"v_mov_b32 v{34+4*q}, 0"); a(f"v_mov_b32 v{35+4*q}, 0")
    a("v_lshlrev_b32 v23, 2, v2")
    a(f"s_mov_b32 s46, {WS_YP}")
    a("s_mov_b32 s47, 0")
    a.label("K2_DN")
    for q in range(4):
        a(f"ds_read_b64_tr_b16 v[{32+4*q}:{33+4*q}], v22 offset:{q*32}")
    a("v_add_u32 v22, 128, v22")
    a("s_waitcnt lgkmcnt(0)")
    for q in range(4):
        a(f"v_mfma_f32_16x16x32_bf16 v[{48+4*q}:{51+4*q}], v[24:27], v[{32+4*q}:{35+4*q}], 0")
    a("s_mov_b64 exec, 0xffff")
    for q in range(4):
        for tok in range(2):
            a(f"buffer_atomic_add_f32 v{48+4*q+tok}, v23, s[24:27], s46 offen offset:{tok*2560 + q*64}")
    a("s_mov_b64 exec, -1")
    a("s_add_u32 s46, s46, 256")
    a("s_add_u32 s47, s47, 1")
    a("s_cmp_lg_u32 s47, 5")
    a("s_cbranch_scc1 K2_DN1")
    a("s_waitcnt vmcnt(40)")
    a("s_barrier")
    kv()
    a.label("K2_DN1")
    a("s_cmp_lt_u32 s47, 10")
    a("s_cbranch_scc1 K2_DN")
    a("s_cmp_lg_u32 s51, 0")
    a("s_cbranch_scc1 K2_NOIDX")
    for tok in range(2):
        k = 70 + tok
        a(f"s_and_b32 s45, s{k}, 0xffff")
        a("s_sub_u32 s45, 2047, s45")
        a(f"v_mov_b32 v{32+tok}, s45")
        a(f"s_and_b32 s45, s{k}, 0xffff0000")
        a("s_xor_b32 s46, s45, 0x80000000")
        a("s_xor_b32 s47, s45, 0xffff0000")
        a("s_bitcmp1_b32 s45, 31")
        a("s_cselect_b32 s45, s46, s47")
        a(f"v_mov_b32 v{34+tok}, s45")
        a(f"v_mul_f32 v{34+tok}, {f32(-LOG2E)}, v{34+tok}")
        a(f"v_exp_f32 v{34+tok}, v{34+tok}")
        a(f"v_add_f32 v{34+tok}, 1.0, v{34+tok}")
        a(f"v_rcp_f32 v{34+tok}, v{34+tok}")
        a(f"v_cvt_pk_bf16_f32 v{34+tok}, 0, v{34+tok}")
    a("v_mov_b32 v23, 0")
    a(f"s_mov_b32 s45, {WS_IDX}")
    a("s_mov_b64 exec, 1")
    a("buffer_store_dwordx4 v[32:35], v23, s[24:27], s45 offen sc1")
    a("s_mov_b64 exec, -1")
    a.label("K2_NOIDX")
    a.fence(4)
    a("s_waitcnt vmcnt(40)")
    a("s_barrier")
    kv()
    wo(6)
    a("s_waitcnt vmcnt(30)")
    a("s_barrier")
    a("v_mov_b32 v23, 0")
    a("v_mov_b32 v24, 1")
    a(f"s_mov_b32 s45, {WS_CNT + 2048}")
    a("s_mov_b64 exec, 1")
    a("buffer_atomic_add v24, v23, s[24:27], s45 offen sc1")
    a("s_mov_b64 exec, -1")
    wo(6)
    a("s_barrier")
    a("s_branch K2_PTAIL")
    a.label("K2_PPLAIN")
    a.fence(4)
    a("s_waitcnt vmcnt(20) lgkmcnt(0)")
    a("s_barrier")
    a("s_mov_b32 s44, 0")
    a("s_waitcnt vmcnt(0)")
    a.label("K2_PLOOP")
    a("s_barrier")
    a("s_cmp_ge_u32 s44, 6")
    a("s_cbranch_scc1 K2_PNODMA")
    kv()
    a.label("K2_PNODMA")
    a("s_cmp_lg_u32 s50, 0")
    a("s_cbranch_scc1 K2_PNOWO")
    wo(2)
    a("s_waitcnt vmcnt(10)")
    a("s_branch K2_PNEXT")
    a.label("K2_PNOWO")
    a("s_waitcnt vmcnt(0)")
    a.label("K2_PNEXT")
    a("s_add_u32 s44, s44, 1")
    a("s_cmp_lt_u32 s44, 8")
    a("s_cbranch_scc1 K2_PLOOP")
    a.label("K2_PTAIL")
    a.fence(4)
    a("v_mov_b32 v20, 0")
    a("s_mov_b32 s44, 0")
    a(f"s_mov_b32 s47, {WS_CNT + 2048}")
    a("buffer_load_dword v26, v20, s[24:27], s47 offen sc1")
    a("s_barrier")
    a("s_cmp_lg_u32 s50, 0")
    a("s_cbranch_scc1 K2_PGO")
    a(f"v_mov_b32 v28, {F_FLAG}")
    a("ds_read_b32 v29, v28")
    a("s_waitcnt lgkmcnt(0)")
    a("v_readfirstlane_b32 s46, v29")
    a("s_cmp_eq_u32 s46, 0")
    a("s_cbranch_scc1 K2_PGO")
    a("s_mov_b32 s50, 1")
    a("s_mov_b32 s43, s32")
    a("s_mov_b32 s44, 0")
    a.label("K2_PMAX")
    a("s_barrier")
    a("s_mov_b32 s42, 0")
    kv()
    a("s_waitcnt vmcnt(0)")
    a("s_barrier")
    a("s_add_u32 s44, s44, 1")
    a("s_cmp_lt_u32 s44, 8")
    a("s_cbranch_scc1 K2_PMAX")
    a("s_barrier")
    a(f"s_mov_b32 s40, {KVB}")
    a(f"s_mov_b32 s41, {2*KVB}")
    a("s_mov_b32 s42, 0")
    a("s_mov_b32 s43, s32")
    kv(); kv()
    a("s_branch K2_PPLAIN")
    a.label("K2_PGO")
    a.fence(4)
    a(f"s_cmp_ge_u32 s59, {REG + 16*5120}")
    a("s_cbranch_scc1 K2_PGO2")
    wo(1)
    a("s_branch K2_PGO")
    a.label("K2_PGO2")
    a("s_mov_b32 s59, 0")
    wo(4)
    a("s_barrier")
    a("v_mov_b32 v20, 0")
    a("s_mov_b64 exec, 1")
    a("s_lshl_b32 s45, s29, 8")
    a(f"s_add_u32 s45, s45, {WS_CNT}")
    if FLAGS:
        a("s_mov_b64 exec, 0xffffffff")
        a("v_lshlrev_b32 v21, 2, v2")
        a.label("K2_POLL2")
        a("buffer_load_dword v22, v21, s[24:27], s45 offen sc1")
        a("s_waitcnt vmcnt(0)")
        a("v_cmp_ne_u32 vcc, 0, v22")
        a("s_cmp_eq_u32 vcc_lo, -1")
        a("s_cbranch_scc1 K2_PDONE")
        a(f"s_sleep {POLL_SLEEP}")
        a("s_add_u32 s44, s44, 1")
        a(f"s_cmp_lt_u32 s44, {SPIN_MAX}")
        a("s_cbranch_scc1 K2_POLL2")
    elif POLL2:
        a("buffer_load_dword v22, v20, s[24:27], s45 offen sc1")
        a(f"s_sleep {POLL2}")
        a.label("K2_POLL2")
        for q in range(2):
            a(f"buffer_load_dword v{23-q}, v20, s[24:27], s45 offen sc1")
            a("s_waitcnt vmcnt(1)")
            a(f"v_readfirstlane_b32 s46, v{22+q}")
            a("s_cmp_ge_u32 s46, 32")
            a("s_cbranch_scc1 K2_PDONE")
            a(f"s_sleep {POLL2}")
        a("s_add_u32 s44, s44, 1")
        a(f"s_cmp_lt_u32 s44, {SPIN_MAX}")
        a("s_cbranch_scc1 K2_POLL2")
    else:
        a.label("K2_POLL2")
        a("buffer_load_dword v22, v20, s[24:27], s45 offen sc1")
        a("s_waitcnt vmcnt(0)")
        a("v_readfirstlane_b32 s46, v22")
        a("s_cmp_ge_u32 s46, 32")
        a("s_cbranch_scc1 K2_PDONE")
        a(f"s_sleep {POLL_SLEEP}")
        a("s_add_u32 s44, s44, 1")
        a(f"s_cmp_lt_u32 s44, {SPIN_MAX}")
        a("s_cbranch_scc1 K2_POLL2")
    a.label("K2_PDONE")
    a(f"s_mov_b32 s47, {WS_CNT + 2048}")
    a.label("K2_POLL1")
    a("v_readfirstlane_b32 s46, v26")
    a(f"s_cmp_ge_u32 s46, {NM2}")
    a("s_cbranch_scc1 K2_POLL1_OK")
    a("s_add_u32 s44, s44, 1")
    a(f"s_cmp_ge_u32 s44, {SPIN_MAX}")
    a("s_cbranch_scc1 K2_POLL1_OK")
    a("s_sleep 4")
    a("buffer_load_dword v26, v20, s[24:27], s47 offen sc1")
    a("s_waitcnt vmcnt(0)")
    a("s_branch K2_POLL1")
    a.label("K2_POLL1_OK")
    a("s_barrier")
```

```python
from asmlib import Asm
from gen import *

NX = 4
NW = 5
WB = NX * 16384
K1_STAT = WB + NW * 16384
K1_CS = K1_STAT + 2048
K1D_LDS = K1_CS + 1024
K1D_VGPR = 168
NIT = 10

def gen_k1d(instr=False, rot=3, rotj=1, QSCALE=1.0, pf=True):
    a = Asm()
    st = Stamps(a, instr)
    st()
    a("s_cmp_ge_u32 s2, 256")
    a("s_cbranch_scc1 K1_END")
    if pf:
        a("s_getpc_b64 s[46:47]")
        a.raw(".Lpc_k1:")
        a("v_lshlrev_b32 v3, 6, v0")
        a("v_min_u32 v3, K2_END - .Lpc_k1, v3")
        a("global_load_dword v167, v3, s[46:47]")
    a("s_load_dwordx4 s[4:7], s[0:1], 0")
    a("s_load_dwordx2 s[8:9], s[0:1], 32")
    a("s_load_dwordx2 s[10:11], s[0:1], 80")
    a("s_and_b32 s40, s2, 7")
    a("s_lshr_b32 s41, s2, 3")
    a("s_and_b32 s28, s40, 1")
    a("s_lshl_b32 s28, s28, 3")
    a("s_and_b32 s42, s41, 7")
    a("s_add_u32 s28, s28, s42")
    a("s_lshr_b32 s29, s40, 1")
    a("s_lshl_b32 s29, s29, 2")
    a("s_lshr_b32 s42, s41, 3")
    a("s_add_u32 s29, s29, s42")
    a("v_lshrrev_b32 v1, 6, v0")
    a("v_and_b32 v2, 63, v0")
    a("v_readfirstlane_b32 s30, v1")
    a(f"s_mul_i32 s41, s29, {rot}")
    a(f"s_mul_i32 s42, s28, {rotj}")
    a("s_add_u32 s41, s41, s42")
    a("s_mul_i32 s42, s41, 52429")
    a("s_lshr_b32 s42, s42, 19")
    a("s_mul_i32 s42, s42, 10")
    a("s_sub_u32 s43, s41, s42")
    a("s_cmp_lt_u32 s30, 4")
    a("s_cbranch_scc1 K1_COMP")
    a("s_setprio 3")
    a("s_cmp_ge_u32 s30, 8")
    a("s_cbranch_scc1 K1_SW")
    a("s_sub_u32 s31, s30, 4")
    a("s_and_b32 s32, s31, 1")
    a("s_mov_b32 s47, s43")
    a("v_lshrrev_b32 v11, 4, v2")
    a("v_lshlrev_b32 v12, 2, v11")
    a("v_and_b32 v13, 15, v2")
    a("v_sub_u32 v13, v13, v12")
    a("v_and_b32 v13, 15, v13")
    a("s_lshl_b32 s34, s31, 2")
    a("v_add_u32 v11, s34, v11")
    a("v_mul_u32_u24 v5, 3840, v11")
    a("v_lshl_add_u32 v5, v13, 4, v5")
    a("s_mul_i32 s34, s28, 240")
    a("v_add_u32 v5, s34, v5")
    a("s_lshl_b32 s48, s31, 10")
    a(f"s_add_u32 s48, s48, {WB}")
    a("s_lshl_b32 s34, s31, 3")
    a("v_lshrrev_b32 v11, 3, v2")
    a("v_add_u32 v11, s34, v11")
    a("v_mul_u32_u24 v4, 1280, v11")
    a("s_lshl_b32 s34, s32, 2")
    a("v_lshrrev_b32 v13, 4, v2")
    a("v_add_u32 v13, s34, v13")
    a("v_and_b32 v12, 7, v2")
    a("v_xor_b32 v12, v12, v13")
    a("v_lshl_add_u32 v4, v12, 4, v4")
    a("s_lshl_b32 s34, s31, 10")
    a(f"s_mul_i32 s33, s29, {128*1280}")
    a("s_waitcnt lgkmcnt(0)")
    srd(a, 16, 6, 2457600)
    srd(a, 12, 4, 2621440)
    class Q:
        def __init__(self): self.ops = []
        def add(self, tag, n): self.ops += [tag]*n
        def wait_for(self, tags):
            last = max((i for i, t in enumerate(self.ops) if t in tags), default=-1)
            n = len(self.ops) - 1 - last
            assert n <= 63
            a(f"s_waitcnt vmcnt({n})")
    a("s_call_b64 s[60:61], K1_XS")
    a("s_call_b64 s[60:61], K1_WS")
    a("s_barrier")
    a("s_call_b64 s[60:61], K1_XS")
    a("s_call_b64 s[60:61], K1_WS")
    srd(a, 24, 10, WS_SIZE)
    a("v_mov_b32 v8, 0xffff0000")
    X = 40; WR = 60
    srd(a, 20, 8, 1280)
    a("v_and_b32 v3, 15, v2")
    a("v_lshrrev_b32 v9, 4, v2")
    a("v_lshlrev_b32 v10, 4, v3")
    a("s_lshl_b32 s35, s28, 3")
    a("s_lshl_b32 s36, s32, 2")
    a("s_add_u32 s35, s35, s36")
    a("v_add_u32 v11, s35, v9")
    a("v_mul_u32_u24 v6, 1280, v11")
    a("v_add_u32 v6, v6, v10")
    xr = [X + z for z in range(20)]
    def prod(ln):
        q = Q()
        q.add(("x", 0), 4); q.add(("w", 0), 4); q.add(("x", 1), 4); q.add(("w", 1), 4)
        def ld_piece():
            for i in range(5):
                a(f"buffer_load_dwordx4 v[{X+4*i}:{X+4*i+3}], v6, s[12:15], s33 offen offset:{i*256}")
                a(f"buffer_load_dwordx4 v[{WR+4*i}:{WR+4*i+3}], v10, s[20:23], 0 offen offset:{i*256}")
            q.add("ln", 10)
        def st_piece(lo, hi):
            def f():
                if lo == 0:
                    q.wait_for({"ln"})
                    for r in (10, 11, 12, 13): a(f"v_mov_b32 v{r}, 0")
                for r in xr[lo:hi]:
                    a(f"v_lshlrev_b32 v21, 16, v{r}")
                    a(f"v_and_b32 v22, v8, v{r}")
                    a("v_add_f32 v10, v10, v21"); a("v_add_f32 v11, v11, v22")
                    a("v_fmac_f32 v12, v21, v21"); a("v_fmac_f32 v13, v22, v22")
            return f
        def sc_piece():
            a("v_add_f32 v10, v10, v11")
            a("v_add_f32 v12, v12, v13")
            dpp_rowsum(a, [10, 12])
            a(f"v_mul_f32 v10, {f32(1/640)}, v10")
            a(f"v_mul_f32 v12, {f32(1/640)}, v12")
            a("v_fma_f32 v12, -v10, v10, v12")
            a("v_max_f32 v12, 0, v12")
            a("v_cvt_pk_bf16_f32 v18, 0, v10")
            a("v_cvt_pk_bf16_f32 v12, 0, v12")
            a("v_add_f32 v12, 0x3727c5ac, v12")
            a("v_cvt_pk_bf16_f32 v12, 0, v12")
            a("v_sqrt_f32 v12, v12")
            a("v_cvt_pk_bf16_f32 v12, 0, v12")
            a("v_rcp_f32 v19, v12")
            a("v_mov_b32 v10, 0"); a("v_mov_b32 v11, 0")
        def nm_piece(lo, hi):
            def f():
                for z in range(lo, hi):
                    r = xr[z]; w = WR + z
                    a(f"v_lshlrev_b32 v21, 16, v{r}")
                    a(f"v_and_b32 v22, v8, v{r}")
                    a("v_sub_f32 v21, v21, v18"); a("v_sub_f32 v22, v22, v18")
                    a("v_cvt_pk_bf16_f32 v21, 0, v21"); a("v_cvt_pk_bf16_f32 v22, 0, v22")
                    a("v_mul_f32 v21, v21, v19"); a("v_mul_f32 v22, v22, v19")
                    a("v_cvt_pk_bf16_f32 v21, 0, v21"); a("v_cvt_pk_bf16_f32 v22, 0, v22")
                    a(f"v_lshlrev_b32 v23, 16, v{w}"); a(f"v_and_b32 v24, v8, v{w}")
                    a("v_fmac_f32 v10, v21, v23"); a("v_fmac_f32 v11, v22, v24")
            return f
        def fin_piece():
            a("v_add_f32 v10, v10, v11")
            dpp_rowsum(a, [10])
            a("v_cvt_pk_bf16_f32 v10, 0, v10")
            a("v_add_u32 v11, s35, v9")
            a("v_ashrrev_i32 v12, 31, v10")
            a("v_or_b32 v12, 0x80000000, v12")
            a("v_xor_b32 v10, v10, v12")
            a("v_and_b32 v10, 0xffff0000, v10")
            a("s_lshl_b32 s36, s29, 7")
            a("v_add_u32 v12, s36, v11")
            a("v_sub_u32 v12, 2047, v12")
            a("v_or_b32 v10, v10, v12")
            a("v_lshlrev_b32 v11, 2, v11")
            a("s_lshl_b32 s36, s29, 9")
            a(f"s_add_u32 s36, s36, {WS_R}")
            a("v_cmp_eq_u32 vcc, 0, v3")
            a("s_and_saveexec_b64 s[38:39], vcc")
            a("buffer_store_dword v10, v11, s[24:27], s36 offen")
            a("v_lshlrev_b32 v11, 1, v11")
            a("s_lshl_b32 s36, s29, 10")
            a(f"s_add_u32 s36, s36, {WS_ST}")
            a("buffer_store_dwordx2 v[18:19], v11, s[24:27], s36 offen")
            a("s_mov_b64 exec, s[38:39]")
            q.add("st", 2)
        work = {1: [ld_piece], 4: [st_piece(0, 10)], 5: [st_piece(10, 20), sc_piece], 6: [nm_piece(0, 5)], 7: [nm_piece(5, 10)],
                8: [nm_piece(10, 15)], 9: [nm_piece(15, 20), fin_piece]} if ln else {}
        xi = 2; wi = 2
        for p in range(NIT):
            q.wait_for({("w", p), ("x", p)})
            a("s_barrier")
            while xi < NIT and xi - NX <= p - 1:
                a("s_call_b64 s[60:61], K1_XS"); q.add(("x", xi), 4); xi += 1
            while wi < NIT and wi - NW <= p - 1:
                a("s_call_b64 s[60:61], K1_WS"); q.add(("w", wi), 4); wi += 1
            for f in work.get(p, []): f()
        assert xi == NIT and wi == NIT
    a("s_cmp_ge_u32 s31, 2")
    a("s_cbranch_scc1 K1_PLN")
    prod(False)
    a("s_branch K1_PEND")
    a.label("K1_PLN")
    a.fence(2)
    prod(True)
    a.label("K1_PEND")
    a.fence(2)
    a("s_barrier")
    a("s_cmp_lg_u32 s2, 0")
    a("s_cbranch_scc1 K1_COPY")
    a("s_cmp_lg_u32 s31, 0")
    a("s_cbranch_scc1 K1_COPY")
    for i in range(4): a(f"v_mov_b32 v{12+i}, 0")
    a("v_lshlrev_b32 v10, 4, v2")
    for blk in range(3):
        a(f"s_mov_b32 s36, {WS_YP + blk*4096}")
        for i in range(4 if blk < 2 else 1):
            a(f"buffer_store_dwordx4 v[12:15], v10, s[24:27], s36 offen offset:{i*1024}")
    a("s_branch K1_COPY")
    a.label("K1_WS")
    a(f"s_mul_i32 s40, s47, {64*3840}")
    a("s_add_u32 s47, s47, 1")
    a("s_cmp_eq_u32 s47, 10")
    a("s_cselect_b32 s47, 0, s47")
    for t in range(4):
        a(f"s_add_u32 m0, s48, {t*4096}")
        if t: a(f"s_add_u32 s40, s40, {16*3840}")
        a("buffer_load_dwordx4 v5, s[16:19], s40 offen lds")
    a("s_add_u32 s48, s48, 16384")
    a(f"s_cmp_ge_u32 s48, {WB + NW*16384}")
    a(f"s_cselect_b32 s45, {NW*16384}, 0")
    a("s_sub_u32 s48, s48, s45")
    a("s_setpc_b64 s[60:61]")
    a.label("K1_XS")
    a("s_lshl_b32 s40, s43, 7")
    a("s_add_u32 s40, s40, s33")
    a("s_add_u32 s43, s43, 1")
    a("s_cmp_eq_u32 s43, 10")
    a("s_cselect_b32 s43, 0, s43")
    for t in range(4):
        a(f"s_add_u32 m0, s34, {t*4096}")
        if t: a(f"s_add_u32 s40, s40, {32*1280}")
        a("buffer_load_dwordx4 v4, s[12:15], s40 offen lds")
    a("s_add_u32 s34, s34, 16384")
    a(f"s_cmp_ge_u32 s34, {NX*16384}")
    a(f"s_cselect_b32 s45, {NX*16384}, 0")
    a("s_sub_u32 s34, s34, s45")
    a("s_setpc_b64 s[60:61]")
    a.label("K1_SW")
    a.fence(2)
    a("s_barrier")
    a("s_sub_u32 s31, s30, 8")
    a("v_mov_b32 v7, 0x3f803f80")
    a("v_lshrrev_b32 v20, 5, v2")
    a("v_and_b32 v15, 31, v2")
    a("v_bfe_u32 v16, v2, 1, 3")
    a("v_xor_b32 v16, v16, v20")
    a("v_lshlrev_b32 v17, 7, v15")
    a("s_lshl_b32 s37, s31, 12")
    a("v_add_u32 v17, s37, v17")
    for qq in range(4):
        a(f"v_xor_b32 v34, {2*qq}, v16")
        a(f"v_lshl_add_u32 v{26+qq}, v34, 4, v17")
    for r in (96, 97, 98, 99): a(f"v_mov_b32 v{r}, 0")
    a("s_mov_b32 s44, 0")
    a("s_mov_b32 s46, 0")
    a.label("K1_SL")
    for qq in range(4): a(f"v_add_u32 v{30+qq}, s46, v{26+qq}")
    a("s_barrier")
    for z in range(4):
        a(f"ds_read_b128 v[{80+4*z}:{83+4*z}], v{30+z}")
    for qq in range(16):
        if qq % 4 == 0: a(f"s_waitcnt lgkmcnt({3 - qq//4})")
        a(f"v_dot2_f32_bf16 v{96 + (qq&1)}, v{80+qq}, v7, v{96 + (qq&1)}")
        a(f"v_dot2_f32_bf16 v{98 + (qq&1)}, v{80+qq}, v{80+qq}, v{98 + (qq&1)}")
    a("s_add_u32 s46, s46, 16384")
    a(f"s_cmp_eq_u32 s46, {NX*16384}")
    a("s_cselect_b32 s46, 0, s46")
    a("s_add_u32 s44, s44, 1")
    a(f"s_cmp_lt_u32 s44, {NIT}")
    a("s_cbranch_scc1 K1_SL")
    a("s_nop 3")
    a("v_add_f32 v96, v96, v97")
    a("v_add_f32 v97, v98, v99")
    a("v_lshlrev_b32 v16, 3, v15")
    a("v_lshl_add_u32 v16, v20, 8, v16")
    a("s_lshl_b32 s37, s31, 9")
    a(f"s_add_u32 s37, s37, {K1_STAT}")
    a("v_add_u32 v16, s37, v16")
    a("ds_write_b64 v16, v[96:97]")
    a("s_waitcnt lgkmcnt(0)")
    a("s_barrier")
    a("s_endpgm")
    a.label("K1_COMP")
    a.fence(2)
    a("s_barrier")
    a("s_and_b32 s31, s30, 1")
    a("s_lshr_b32 s32, s30, 1")
    a("v_mov_b32 v7, 0x3f803f80")
    a("v_lshrrev_b32 v10, 5, v2")
    a("v_bfe_u32 v11, v2, 4, 1")
    a("v_bfe_u32 v12, v2, 2, 2")
    a("v_and_b32 v13, 3, v2")
    a("v_lshl_add_u32 v14, v10, 3, v12")
    a("v_lshlrev_b32 v14, 8, v14")
    a("v_and_b32 v15, 1, v13")
    a("v_lshl_add_u32 v14, v15, 3, v14")
    a(f"v_add_u32 v14, {WB}, v14")
    a("s_lshl_b32 s34, s31, 3")
    a("v_lshlrev_b32 v15, 1, v11")
    a("v_add_u32 v15, s34, v15")
    a("v_lshrrev_b32 v16, 1, v13")
    a("v_add_u32 v15, v15, v16")
    a("v_lshl_add_u32 v15, v12, 2, v15")
    a("v_and_b32 v16, 15, v15")
    a("v_lshl_add_u32 v24, v16, 4, v14")
    a("v_add_u32 v15, 4, v15")
    a("v_and_b32 v16, 15, v15")
    a("v_lshl_add_u32 v25, v16, 4, v14")
    a("v_and_b32 v15, 31, v2")
    a("v_bfe_u32 v16, v2, 1, 3")
    a("v_xor_b32 v16, v16, v10")
    a("v_lshlrev_b32 v17, 7, v15")
    a("s_lshl_b32 s34, s32, 13")
    a("v_add_u32 v17, s34, v17")
    for qq in range(4):
        a(f"v_xor_b32 v34, {2*qq}, v16")
        a(f"v_lshl_add_u32 v{26+qq}, v34, 4, v17")
    SETS = [(40, 56), (72, 88)]
    ACC = 104
    CSUM = (4, 32); SEL = 36
    a("v_and_b32 v34, 15, v2")
    a("v_cmp_eq_u32 vcc, v34, v11")
    a(f"v_cndmask_b32 v{SEL}, 0, v7, vcc")
    for qq in range(1, 4): a(f"v_mov_b32 v{SEL+qq}, v{SEL}")
    a("s_waitcnt vmcnt(0) lgkmcnt(0)")
    for r in list(range(72, 168)) + [4, 5, 6, 7, 32, 33, 34, 35]: a(f"v_mov_b32 v{r}, 0")
    srd(a, 24, 10, WS_SIZE)
    def reads(c):
        A0, B0 = SETS[c % 2]
        L = []
        for ks in range(2):
            for aa in range(2):
                for hi in range(2):
                    r = A0 + (ks*2 + aa)*4 + hi*2
                    L.append(f"ds_read_b64_tr_b16 v[{r}:{r+1}], v{30+aa} offset:{(c&1)*8192 + ks*4096 + hi*1024}")
            for b in range(2):
                r = B0 + (ks*2 + b)*4
                L.append(f"ds_read_b128 v[{r}:{r+3}], v{18 + 2*(c&1) + ks} offset:{b*4096}")
        return L
    def mfmas(c):
        A0, B0 = SETS[c % 2]
        L = []
        for ks in range(2):
            for aa in range(2):
                ra = A0 + (ks*2 + aa)*4
                for b in range(2):
                    d = ACC + (aa*2 + b)*16
                    rb = B0 + (ks*2 + b)*4
                    L.append(f"v_mfma_f32_32x32x16_bf16 v[{d}:{d+15}], v[{ra}:{ra+3}], v[{rb}:{rb+3}], v[{d}:{d+15}]")
                d = CSUM[aa]
                L.append(f"v_mfma_f32_16x16x32_bf16 v[{d}:{d+3}], v[{ra}:{ra+3}], v[{SEL}:{SEL+3}], v[{d}:{d+3}]")
        return L
    a("s_mov_b32 s44, 0")
    a("s_mov_b32 s45, 0")
    a("s_mov_b32 s46, 0")
    st()
    a.label("K1_LOOP")
    a("v_add_u32 v30, s45, v24")
    a("v_add_u32 v31, s45, v25")
    for qq in range(4): a(f"v_add_u32 v{18+qq}, s46, v{26+qq}")
    for c in range(2):
        a("s_waitcnt lgkmcnt(0)")
        if c == 0:
            a("s_barrier")
            if instr:
                for it in (0, 4):
                    a(f"s_cmp_lg_u32 s44, {it}")
                    a(f"s_cbranch_scc1 K1_NST{it}")
                    st()
                    a.label(f"K1_NST{it}")
        R = reads(c); M = mfmas(c - 1)
        kk = 0
        for m in M:
            a(m)
            for _ in range(2):
                if kk < len(R): a(R[kk]); kk += 1
        while kk < len(R): a(R[kk]); kk += 1
    a("s_add_u32 s45, s45, 16384")
    a(f"s_cmp_eq_u32 s45, {NW*16384}")
    a("s_cselect_b32 s45, 0, s45")
    a("s_add_u32 s46, s46, 16384")
    a(f"s_cmp_eq_u32 s46, {NX*16384}")
    a("s_cselect_b32 s46, 0, s46")
    a("s_add_u32 s44, s44, 1")
    a(f"s_cmp_lt_u32 s44, {NIT}")
    a("s_cbranch_scc1 K1_LOOP")
    a("s_waitcnt lgkmcnt(0)")
    for m in mfmas(1): a(m)
    st()
    a("v_and_b32 v15, 31, v2")
    a("v_and_b32 v8, 15, v2")
    a("v_lshlrev_b32 v17, 6, v8")
    a("v_lshrrev_b32 v9, 4, v2")
    a("v_lshl_add_u32 v17, v9, 4, v17")
    a("v_lshl_add_u32 v17, v1, 8, v17")
    a(f"v_add_u32 v17, {K1_CS}, v17")
    a("v_cmp_gt_u32 vcc, 2, v8")
    a("s_and_saveexec_b64 s[38:39], vcc")
    a(f"ds_write_b128 v17, v[{CSUM[0]}:{CSUM[0]+3}]")
    a(f"ds_write_b128 v17, v[{CSUM[1]}:{CSUM[1]+3}] offset:128")
    a("s_mov_b64 exec, s[38:39]")
    a("s_waitcnt lgkmcnt(0)")
    a("s_barrier")
    a("v_lshlrev_b32 v16, 3, v15")
    a("s_lshl_b32 s34, s32, 10")
    a(f"s_add_u32 s34, s34, {K1_STAT}")
    a("v_add_u32 v16, s34, v16")
    for b in range(2):
        for p in range(2):
            a(f"ds_read_b64 v[{40+b*16+2*p}:{41+b*16+2*p}], v16 offset:{b*512 + p*256}")
    a("v_lshlrev_b32 v17, 4, v10")
    a("v_lshl_add_u32 v17, v1, 8, v17")
    a(f"v_add_u32 v17, {K1_CS}, v17")
    for aa in range(2):
        for c in range(4):
            r = 72 + aa*16 + 4*c
            a(f"ds_read_b128 v[{r}:{r+3}], v17 offset:{aa*128 + c*32}")
    a("s_waitcnt lgkmcnt(0)")
    MEAN = (20, 21); RINV = (22, 23); RQ = (24, 25)
    for b in range(2):
        base = 40 + b*16
        a(f"v_add_f32 v{base}, v{base}, v{base+2}")
        a(f"v_add_f32 v{base+1}, v{base+1}, v{base+3}")
        a(f"v_mul_f32 v{base}, {f32(1/640)}, v{base}")
        a(f"v_mul_f32 v{base+1}, {f32(1/640)}, v{base+1}")
        a(f"v_fma_f32 v{base+1}, -v{base}, v{base}, v{base+1}")
        a(f"v_max_f32 v{base+1}, 0, v{base+1}")
        a(f"v_cvt_pk_bf16_f32 v{MEAN[b]}, 0, v{base}")
        a(f"v_cvt_pk_bf16_f32 v{base+1}, 0, v{base+1}")
        a(f"v_add_f32 v{base+1}, 0x3727c5ac, v{base+1}")
        a(f"v_cvt_pk_bf16_f32 v{base+1}, 0, v{base+1}")
        a(f"v_sqrt_f32 v{base+1}, v{base+1}")
        a(f"v_cvt_pk_bf16_f32 v{base+1}, 0, v{base+1}")
        a(f"v_rcp_f32 v{RINV[b]}, v{base+1}")
        a(f"v_mul_f32 v{RQ[b]}, {f32(QSCALE)}, v{RINV[b]}")
    a("s_lshl_b32 s34, s31, 4")
    a("v_add_u32 v14, s34, v10")
    a("s_lshl_b32 s34, s32, 6")
    a("v_add_u32 v15, s34, v15")
    a(f"v_mul_u32_u24 v15, {RB}, v15")
    a("s_mul_i32 s36, s28, 30")
    a("s_sub_i32 s36, 160, s36")
    for aa in range(2):
        for c in range(4):
            if aa == 1 and c == 3:
                a("s_cmp_eq_u32 s31, 1")
                a("s_cbranch_scc1 K1_COPY")
            a(f"v_add_u32 v16, {8*aa + 2*c}, v14")
            a("v_cmp_gt_i32 vcc, s36, v16")
            a("v_mul_u32_u24 v17, 52429, v16")
            a("v_lshrrev_b32 v17, 18, v17")
            a("v_mul_u32_u24 v18, 5, v17")
            a("v_sub_u32 v18, v16, v18")
            a(f"v_mul_u32_u24 v17, {128*RB}, v17")
            a("v_lshl_add_u32 v17, v18, 3, v17")
            a("v_add_u32 v17, v17, v15")
            for b in range(2):
                a(f"v_cndmask_b32 v{26+b}, v{RINV[b]}, v{RQ[b]}, vcc")
            for b in range(2):
                d = ACC + (aa*2 + b)*16 + 4*c
                cs = 72 + aa*16 + 4*c
                for e in range(4):
                    a(f"v_fma_f32 v{d+e}, -v{MEAN[b]}, v{cs+e}, v{d+e}")
                    a(f"v_mul_f32 v{d+e}, v{d+e}, v{26+b}")
                t = 40 + 2*b
                a(f"v_cvt_pk_bf16_f32 v{t}, v{d}, v{d+1}")
                a(f"v_cvt_pk_bf16_f32 v{t+1}, v{d+2}, v{d+3}")
                a(f"ds_write_b64 v17, v[{t}:{t+1}] offset:{b*32*RB}")
    a.label("K1_COPY")
    a.fence(4)
    a("s_mul_i32 s37, s28, 6")
    a("s_add_u32 s37, s37, s30")
    a("s_lshr_b32 s38, s37, 5")
    a(f"s_mul_i32 s39, s37, {HB2}")
    a(f"s_mul_i32 s40, s30, {128*RB}")
    a("s_lshr_b32 s41, s29, 1")
    a("s_and_b32 s42, s29, 1")
    a("v_lshlrev_b32 v16, 4, v2")
    a("s_cmp_eq_u32 s38, 1")
    a("s_cbranch_scc1 K1_CK")
    a("s_cmp_eq_u32 s38, 2")
    a("s_cbranch_scc1 K1_CV")
    a("v_add_u32 v17, s40, v16")
    a(f"s_mul_i32 s43, s29, {128*RB}")
    a("s_add_u32 s43, s43, s39")
    a("s_add_u32 s44, s43, 4096")
    a("s_waitcnt lgkmcnt(0)")
    a("s_barrier")
    a("s_cmp_ge_u32 s30, 6")
    a("s_cbranch_scc1 K1_FIN")
    for i in range(5): a(f"ds_read_b128 v[{40+4*i}:{43+4*i}], v17 offset:{i*1024}")
    for i in range(5):
        a(f"s_waitcnt lgkmcnt({4-i})")
        a(f"buffer_store_dwordx4 v[{40+4*i}:{43+4*i}], v16, s[24:27], s{43 if i < 4 else 44} offen offset:{(i%4)*1024} sc0 sc1")
    a("s_branch K1_FIN")
    a.label("K1_CK")
    a("v_lshrrev_b32 v17, 1, v2")
    a(f"v_mul_u32_u24 v17, {RB}, v17")
    a("v_and_b32 v18, 1, v2")
    a("v_lshl_add_u32 v17, v18, 4, v17")
    a("v_add_u32 v17, s40, v17")
    a(f"v_mul_u32_u24 v18, {2*RB}, v2")
    a("v_add_u32 v18, s40, v18")
    a(f"s_mul_i32 s43, s41, {256*RB}")
    a("s_add_u32 s43, s43, s39")
    a("s_lshl_b32 s44, s42, 10")
    a("s_add_u32 s44, s44, s43")
    a("s_add_u32 s44, s44, 8192")
    a("s_lshl_b32 s45, s42, 12")
    a("s_add_u32 s43, s43, s45")
    a("s_waitcnt lgkmcnt(0)")
    a("s_barrier")
    a("s_cmp_ge_u32 s30, 6")
    a("s_cbranch_scc1 K1_FIN")
    for i in range(4):
        a(f"ds_read_b64 v[{40+4*i}:{41+4*i}], v17 offset:{i*32*RB}")
        a(f"ds_read_b64 v[{42+4*i}:{43+4*i}], v17 offset:{i*32*RB + 8}")
    a("ds_read_b64 v[56:57], v18 offset:32")
    a(f"ds_read_b64 v[58:59], v18 offset:{RB + 32}")
    for i in range(5):
        a(f"s_waitcnt lgkmcnt({8-2*i})")
        a(f"buffer_store_dwordx4 v[{40+4*i}:{43+4*i}], v16, s[24:27], s{43 if i < 4 else 44} offen offset:{(i%4)*1024} sc0 sc1")
    a("s_branch K1_FIN")
    a.label("K1_CV")
    a("v_lshrrev_b32 v19, 5, v2")
    a("v_bfe_u32 v17, v2, 2, 2")
    a("v_lshl_add_u32 v17, v19, 2, v17")
    a(f"v_mul_u32_u24 v17, {RB}, v17")
    a("v_bfe_u32 v18, v2, 4, 1")
    a("v_and_b32 v20, 3, v2")
    a("v_lshl_add_u32 v18, v18, 2, v20")
    a("v_min_u32 v18, 4, v18")
    a("v_lshl_add_u32 v17, v18, 3, v17")
    a("v_add_u32 v17, s40, v17")
    a("v_and_b32 v20, 31, v2")
    a("v_mul_u32_u24 v16, 320, v19")
    a("v_lshl_add_u32 v16, v20, 4, v16")
    a(f"s_mul_i32 s43, s29, {128*RB}")
    a("s_add_u32 s43, s43, s39")
    a(f"s_add_u32 s44, s43, {4*640}")
    a("s_waitcnt lgkmcnt(0)")
    a("s_barrier")
    a("s_cmp_ge_u32 s30, 6")
    a("s_cbranch_scc1 K1_FIN")
    for g in range(8):
        for hi in range(2):
            a(f"ds_read_b64_tr_b16 v[{40+4*g+2*hi}:{41+4*g+2*hi}], v17 offset:{g*16*RB + hi*8*RB}")
    a("s_mov_b32 s46, 0x000fffff")
    a("s_mov_b32 s47, 0x000fffff")
    a("s_waitcnt lgkmcnt(0)")
    a("s_mov_b64 exec, s[46:47]")
    for g in range(8):
        a(f"buffer_store_dwordx4 v[{40+4*g}:{43+4*g}], v16, s[24:27], s{43 if g < 4 else 44} offen offset:{(g%4)*640} sc0 sc1")
    a("s_mov_b64 exec, -1")
    a.label("K1_FIN")
    if instr:
        a("s_waitcnt vmcnt(0)")
        st()
        a("s_cmp_ge_u32 s30, 4")
        a("s_cbranch_scc1 K1_END")
        st.dump(0, 30, 2)
    a.label("K1_END")
    a("s_endpgm")
    return a.text(), K1D_VGPR
```

```python
from asmlib import Asm
from gen import *
import os

KH = 256 * RB
KVB = 2 * KH
TS = 32 * RB
ONES = 3 * KVB
F_FLAG = ONES + KH
REG = F_FLAG + 256
K2F_LDS = REG + 16 * 5120
LOG2E = 1.4426950408889634
C32 = struct.unpack("<f", struct.pack("<I", 0x3e64f92e))[0]
L_TARGET = -100
L_THRESH = "0x3f800000"
K2F_VGPR = 224
NM2 = 108
WG_, WU_, WD_ = REG, REG + 20480, REG + 40960
XS_ = REG + 61440
HB_ = XS_ + 2560
SPIN_MAX = 1 << 20
FLAGS = int(os.environ.get("FL", 1))
POLL2 = int(os.environ.get("P2", 0))
POLL_SLEEP = int(os.environ.get("PS", 4))
WS_CNT = WS_YP + 5120 + 1024

def gen_k2f(instr=False, slots=None):
    a = Asm()
    st = Stamps(a, instr, base=74)
    st()
    a("s_cmp_ge_u32 s2, 256")
    a("s_cbranch_scc1 K2_END")
    a("s_load_dwordx2 s[10:11], s[0:1], 80")
    a("s_load_dwordx2 s[6:7], s[0:1], 16")
    a("s_load_dwordx2 s[8:9], s[0:1], 0")
    a("s_load_dwordx2 s[52:53], s[0:1], 64")
    a("s_and_b32 s28, s2, 7")
    a("s_lshr_b32 s29, s2, 3")
    a("s_lshr_b32 s30, s29, 3")
    a("s_lshl_b32 s28, s28, 2")
    a("s_add_u32 s28, s28, s30")
    a("s_and_b32 s29, s29, 7")
    a("v_lshrrev_b32 v1, 6, v0")
    a("v_and_b32 v2, 63, v0")
    a("v_readfirstlane_b32 s30, v1")
    QH = [4, 16]; QL = [8, 20]; QX = [12, 24]
    KA = [28, 36]; KX = [32, 40]; V0 = 44
    S = [52, 68]; PP = [84, 92]; O = [100, 116]; T = 132
    NEG = [140, 141]
    vKl, vXl, vVl, vKc, vXc, vVc, vKn, vXn, vDma, vMsk = range(142, 152)
    a("v_lshrrev_b32 v3, 5, v2")
    a(f"v_lshlrev_b32 v{vDma}, 4, v2")
    a("s_and_b32 s73, s2, 7")
    a("s_lshl_b32 s54, s73, 2")
    a("s_lshr_b32 s55, s2, 6")
    a("s_add_u32 s54, s54, s55")
    a("s_lshr_b32 s55, s2, 3")
    a("s_and_b32 s55, s55, 7")
    a("s_mul_i32 s56, s55, 160")
    a("s_waitcnt lgkmcnt(0)")
    srd(a, 24, 10, WS_SIZE)
    a(f"s_mul_i32 s31, s28, {HB2}")
    a(f"s_add_u32 s32, s31, {C_K}")
    a("s_mov_b32 s50, 0")
    a("s_cmp_lg_u32 s30, 4")
    a("s_cbranch_scc1 K2_COMP")
    a("s_setprio 3")
    for part in range(2):
        for g, n in ((0, 4), (1, 4), (2, 2)):
            a(f"s_mov_b32 m0, {part*KH + g*4096}")
            a(f"s_add_u32 s48, s32, {g*4096 + part*(C_V - C_K)}")
            for i in range(n):
                a(f"buffer_load_dwordx4 v{vDma}, s[24:27], s48 offen offset:{i*1024} lds")
    a("s_branch K2_PROD")
    a.label("K2_COMP")
    a(f"v_and_b32 v{T}, 31, v2")
    a(f"v_mul_u32_u24 v{T+1}, {RB}, v{T}")
    a(f"v_lshl_add_u32 v{vKc}, v3, 4, v{T+1}")
    a(f"v_add_u32 v{vXc}, 32, v{T+1}")
    a(f"v_lshlrev_b32 v{vKl}, 5, v{T}")
    a(f"v_lshl_add_u32 v{vKl}, v3, 4, v{vKl}")
    a(f"v_lshlrev_b32 v{vXl}, 3, v{T}")
    a(f"v_add_u32 v{vXl}, 8192, v{vXl}")
    a("s_lshl_b32 s34, s29, 8")
    a("s_lshl_b32 s35, s30, 6")
    a("s_add_u32 s34, s34, s35")
    a(f"s_mul_i32 s35, s34, {RB}")
    a("s_add_u32 s35, s35, s31")
    for sd in range(2):
        for i in range(4): a(f"v_mov_b32 v{QX[sd]+i}, 0")
        a(f"buffer_load_dwordx2 v[{QH[sd]}:{QH[sd]+1}], v{vKc}, s[24:27], s35 offen offset:{sd*TS}")
        a(f"buffer_load_dwordx2 v[{QH[sd]+2}:{QH[sd]+3}], v{vKc}, s[24:27], s35 offen offset:{sd*TS+8}")
    a("s_mov_b64 exec, 0xffffffff")
    for sd in range(2):
        a(f"buffer_load_dwordx2 v[{QX[sd]}:{QX[sd]+1}], v{vXc}, s[24:27], s35 offen offset:{sd*TS}")
    a("s_mov_b64 exec, -1")
    XR = 192; EA = 214
    a("s_lshl_b32 s57, s54, 6")
    a("s_lshl_b32 s33, s30, 4")
    a("s_add_u32 s57, s57, s33")
    a(f"v_and_b32 v{T+2}, 15, v2")
    a(f"v_lshrrev_b32 v{T+3}, 4, v2")
    a(f"v_add_u32 v{T+4}, s57, v{T+2}")
    a(f"v_mul_u32_u24 v{T+4}, 1280, v{T+4}")
    a(f"v_lshl_add_u32 v{EA}, v{T+3}, 3, v{T+4}")
    a(f"v_add_u32 v{EA}, s56, v{EA}")
    srd(a, 16, 8, 2621440)
    srd(a, 20, 52, 2621440)
    a(f"v_lshlrev_b32 v215, 3, v{T+2}")
    a("s_lshl_b32 s58, s57, 3")
    a(f"s_add_u32 s58, s58, {WS_ST}")
    a(f"v_and_b32 v{T+3}, 31, v2")
    a(f"v_mul_u32_u24 v{T+2}, 320, v3")
    a(f"v_lshl_add_u32 v{T+2}, v{T+3}, 4, v{T+2}")
    a(f"v_add_u32 v{T+2}, {KH}, v{T+2}")
    a(f"v_mov_b32 v{T+4}, {ONES}")
    a(f"v_cmp_gt_u32 vcc, 20, v{T+3}")
    a(f"v_cndmask_b32 v{vVl}, v{T+4}, v{T+2}, vcc")
    a(f"v_cndmask_b32 v{vMsk}, 0, -1, vcc")
    a(f"v_mov_b32 v{T}, 0x3f803f80")
    for i in range(1, 4): a(f"v_mov_b32 v{T+i}, v{T}")
    for kb in range(2):
        a(f"v_mov_b32 v{KX[kb]+2}, v{T}"); a(f"v_mov_b32 v{KX[kb]+3}, v{T}")
    a(f"v_lshlrev_b32 v{T+4}, 4, v0")
    a(f"v_add_u32 v{T+4}, {ONES}, v{T+4}")
    a(f"ds_write_b128 v{T+4}, v[{T}:{T+3}]")
    a(f"ds_write_b128 v{T+4}, v[{T}:{T+3}] offset:4096")
    a(f"v_lshlrev_b32 v{T+4}, 3, v0")
    a(f"v_add_u32 v{T+4}, {ONES + 8192}, v{T+4}")
    a(f"ds_write_b64 v{T+4}, v[{T}:{T+1}]")
    a("s_mov_b32 s72, 0")
    def mm(d, x, y, c):
        cc = "0" if c is None else f"v[{c}:{c+15}]"
        a(f"v_mfma_f32_32x32x16_bf16 v[{d}:{d+15}], v[{x}:{x+3}], v[{y}:{y+3}], {cc}")
    def qk(sd, kb):
        mm(S[sd], KA[kb], QH[sd], None); mm(S[sd], KX[kb], QX[sd], S[sd])
    def kread(aK, aX, t, kb):
        a(f"ds_read_b128 v[{KA[kb]}:{KA[kb]+3}], v{aK} offset:{t*1024}")
        a(f"ds_read_b64 v[{KX[kb]}:{KX[kb]+1}], v{aX} offset:{t*256}")
    def vread(addr, t):
        for aa in range(2):
            r = V0 + aa*4
            a(f"ds_read_b128 v[{r}:{r+3}], v{addr} offset:{(2*t + aa)*640}")
    def halfmax(r, tmp):
        a(f"v_mov_b32 v{tmp}, v{r}")
        a(f"v_permlane32_swap_b32 v{r}, v{tmp}")
        a(f"v_max_f32 v{r}, v{r}, v{tmp}")
    def split_neg(sd):
        a(f"v_cvt_pk_bf16_f32 v{T+2}, 0, v{NEG[sd]}")
        a(f"v_sub_f32 v{T+3}, v{NEG[sd]}, v{T+2}")
        a(f"v_cvt_pk_bf16_f32 v{T+4}, 0, v{T+3}")
        a(f"v_sub_f32 v{T+3}, v{T+3}, v{T+4}")
        a("s_mov_b64 exec, 0xffffffff")
        a(f"v_cvt_pk_bf16_f32 v{QX[sd]+2}, v{T+2}, v{T+4}")
        a(f"v_cvt_pk_bf16_f32 v{QX[sd]+3}, v{T+3}, 0")
        a("s_mov_b64 exec, -1")
    a(f"v_mov_b32 v{T}, {F_FLAG}")
    a(f"v_mov_b32 v{T+1}, 0")
    a(f"ds_write_b32 v{T}, v{T+1}")
    a("s_waitcnt vmcnt(0)")
    a.label("K2_MAIN")
    a.fence(4)
    a("s_mov_b32 s40, 0")
    a(f"s_mov_b32 s41, {KVB}")
    a(f"s_mov_b32 s42, {2*KVB}")
    for i in range(32): a(f"v_mov_b32 v{O[0]+i}, 0")
    for i in range(8): a(f"v_mov_b32 v{PP[1]+i}, 0")
    for i in range(8): a(f"v_mov_b32 v{V0+i}, 0")
    a("s_waitcnt lgkmcnt(0)")
    st()
    a("s_barrier")
    a(f"v_mov_b32 v{vKc}, v{vKl}")
    a(f"v_mov_b32 v{vXc}, v{vXl}")
    a(f"v_mov_b32 v{vVc}, v{vVl}")
    a(f"v_add_u32 v{vKn}, {KVB}, v{vKl}")
    a(f"v_add_u32 v{vXn}, {KVB}, v{vXl}")
    kread(vKc, vXc, 0, 0)
    a("s_waitcnt lgkmcnt(0)")
    qk(0, 0)
    a("s_cmp_lg_u32 s50, 0")
    a("s_cbranch_scc1 K2_SKIPMAX")
    qk(1, 0)
    for sd in range(2):
        a(f"v_max3_f32 v{T}, v{S[sd]}, v{S[sd]+1}, v{S[sd]+2}")
        for i in range(3, 15, 2):
            a(f"v_max3_f32 v{T}, v{T}, v{S[sd]+i}, v{S[sd]+i+1}")
        a(f"v_max_f32 v{T}, v{T}, v{S[sd]+15}")
        halfmax(T, T+1)
        a(f"v_sub_f32 v{NEG[sd]}, {f32(float(L_TARGET))}, v{T}")
        split_neg(sd)
    for i in range(16): a(f"v_add_f32 v{S[0]+i}, v{S[0]+i}, v{NEG[0]}")
    for nt in range(5):
        a(f"buffer_load_dwordx2 v[{XR+2*nt}:{XR+2*nt+1}], v{EA}, s[16:19], 0 offen offset:{nt*32}")
    a(f"buffer_load_dwordx2 v[212:213], v215, s[24:27], s58 offen")
    a.label("K2_SKIPMAX")
    a.fence(16)
    a("s_mov_b32 s44, 0")
    a("s_mov_b64 vcc, 0")
    st()
    a.label("K2_LOOP")
    if slots is None: slots = [8, 48, 88, 128]
    for t in range(8):
        for sd in range(2):
            Sc = S[sd]; Pc = PP[sd]; ot = sd ^ 1
            if sd == 0 and t % 4 == 0:
                a(f"s_cbranch_vccnz K2_RC{t}")
                a.label(f"K2_NR{t}")
            if sd == 0 and t == 7:
                a("s_barrier")
            E = []
            for i in range(8):
                E.append((f"v_exp_f32 v{Sc+2*i}, v{Sc+2*i}", 8))
                E.append((f"v_exp_f32 v{Sc+2*i+1}, v{Sc+2*i+1}", 8))
                if i > 0: E.append((f"v_cvt_pk_bf16_f32 v{Pc+i-1}, v{Sc+2*i-2}, v{Sc+2*i-1}", 4))
            E.append((f"v_cvt_pk_bf16_f32 v{Pc+7}, v{Sc+14}, v{Sc+15}", 4))
            names = ["qkA", "qkC", "pv0", "pv1"]
            kb = (t % 2) if sd == 0 else ((t+1) % 2)
            pos = 0; k = 0; n = 0
            for ins, cst in E:
                while k < 4 and pos >= slots[k]:
                    what = names[k]; k += 1
                    if what == "qkA":
                        if sd == 1: a("s_waitcnt lgkmcnt(2)")
                        mm(S[ot], KA[kb], QH[ot], None)
                    elif what == "qkB": mm(S[ot], KA[kb], QL[ot], S[ot])
                    elif what == "qkC": mm(S[ot], KX[kb], QX[ot], S[ot])
                    elif what == "pv0":
                        if sd == 1: a("s_waitcnt lgkmcnt(0)")
                        mm(O[ot], V0, PP[ot], O[ot])
                    elif what == "pv1":
                        mm(O[ot], V0+4, PP[ot]+4, O[ot])
                        if sd == 0: vread(vVc, t)
                a(ins); pos += cst; n += 1
                if sd == 1 and t % 4 == 3 and n == 8:
                    a(f"v_max_f32 v{T}, v{O[0]+12}, v{O[1]+12}")
                    a(f"v_cmp_lt_f32 vcc, {L_THRESH}, v{T}")
                if sd == 0 and n == 1:
                    if t + 1 < 8: kread(vKc, vXc, t+1, (t+1) % 2)
                    else: kread(vKn, vXn, 0, 0)
            assert k == 4
    a("s_mov_b32 s45, s40")
    a("s_mov_b32 s40, s41")
    a("s_mov_b32 s41, s42")
    a("s_mov_b32 s42, s45")
    a(f"v_add_u32 v{vKc}, s40, v{vKl}")
    a(f"v_add_u32 v{vXc}, s40, v{vXl}")
    a(f"v_and_b32 v{vVc}, s40, v{vMsk}")
    a(f"v_add_u32 v{vVc}, v{vVc}, v{vVl}")
    a(f"v_add_u32 v{vKn}, s41, v{vKl}")
    a(f"v_add_u32 v{vXn}, s41, v{vXl}")
    a("s_add_u32 s44, s44, 1")
    a("s_cmp_lt_u32 s44, 8")
    a("s_cbranch_scc1 K2_LOOP")
    st()
    mm(O[1], V0, PP[1], O[1])
    mm(O[1], V0+4, PP[1]+4, O[1])
    a("s_waitcnt lgkmcnt(0)")
    a("s_cmp_lg_u32 s50, 0")
    a("s_cbranch_scc1 K2_EPI")
    a(f"v_mul_f32 v{T}, 0, v{O[0]}")
    for sd in range(2):
        for i in range(13):
            if sd or i: a(f"v_fma_f32 v{T}, v{O[sd]+i}, 0, v{T}")
    a(f"v_cmp_u_f32 vcc, v{T}, v{T}")
    a(f"v_mov_b32 v{T+1}, {F_FLAG}")
    a(f"v_mov_b32 v{T+2}, 1")
    a("s_and_saveexec_b64 s[46:47], vcc")
    a("s_cbranch_execz K2_NOFLAG")
    a(f"ds_write_b32 v{T+1}, v{T+2}")
    a.label("K2_NOFLAG")
    a("s_mov_b64 exec, s[46:47]")
    a("s_branch K2_EPI")
    a.label("K2_FALLBACK")
    a.fence(4)
    a("s_mov_b32 s50, 1")
    a("s_mov_b32 s44, 0")
    for sd in range(2):
        a(f"v_mov_b32 v{QX[sd]+2}, 0")
        a(f"v_mov_b32 v{QX[sd]+3}, 0")
        a(f"v_mov_b32 v{T+6+sd}, 0xff800000")
    a.label("K2_MAXLOOP")
    a("s_barrier")
    a("s_barrier")
    a("s_mov_b32 s45, 0")
    a(f"v_mov_b32 v{vKc}, v{vKl}")
    a(f"v_mov_b32 v{vXc}, v{vXl}")
    a.label("K2_MAXT")
    kread(vKc, vXc, 0, 0)
    a(f"v_add_u32 v{vKc}, 1024, v{vKc}")
    a(f"v_add_u32 v{vXc}, 256, v{vXc}")
    a("s_waitcnt lgkmcnt(0)")
    qk(0, 0); qk(1, 0)
    for sd in range(2):
        for i in range(0, 16, 2):
            a(f"v_max3_f32 v{T+6+sd}, v{T+6+sd}, v{S[sd]+i}, v{S[sd]+i+1}")
    a("s_add_u32 s45, s45, 1")
    a("s_cmp_lt_u32 s45, 8")
    a("s_cbranch_scc1 K2_MAXT")
    a("s_add_u32 s44, s44, 1")
    a("s_cmp_lt_u32 s44, 8")
    a("s_cbranch_scc1 K2_MAXLOOP")
    for sd in range(2):
        halfmax(T+6+sd, T+1)
        a(f"v_sub_f32 v{NEG[sd]}, {f32(float(L_TARGET))}, v{T+6+sd}")
        split_neg(sd)
    a("s_barrier")
    a("s_branch K2_MAIN")
    a.label("K2_EPI")
    a.fence(16)
    a("v_and_b32 v152, 31, v2")
    a("v_add_u32 v152, s34, v152")
    a("v_lshrrev_b32 v153, 4, v152")
    a("v_mul_u32_u24 v153, 20480, v153")
    a("v_and_b32 v152, 15, v152")
    a("v_lshl_add_u32 v152, v152, 4, v153")
    a(f"s_mov_b32 s36, {WS_O}")
    a(f"s_mov_b32 s37, {WS_O + 2*20480}")
    a("s_mul_i32 s35, s28, 5")
    a("s_add_u32 s33, s35, 1")
    a("s_lshr_b32 s33, s33, 1")
    a("v_add_u32 v153, s33, v3")
    a("v_lshl_add_u32 v156, v153, 8, v152")
    a("s_and_b32 s38, s28, 1")
    a("s_add_u32 s39, s33, 2")
    a("s_lshl_b32 s39, s39, 8")
    a("s_sub_u32 s33, s33, 1")
    a("s_lshl_b32 s33, s33, 8")
    a("s_add_u32 s33, s33, 8")
    a("s_cmp_eq_u32 s38, 0")
    a("s_cselect_b32 s33, s39, s33")
    a("v_add_u32 v157, s33, v152")
    for sd in range(2):
        a(f"v_rcp_f32 v{T}, v{O[sd]+12}")
        for i in range(12): a(f"v_mul_f32 v{O[sd]+i}, v{O[sd]+i}, v{T}")
        for i in range(6): a(f"v_cvt_pk_bf16_f32 v{PP[sd]+i}, v{O[sd]+2*i}, v{O[sd]+2*i+1}")
    a("s_cmp_lg_u32 s38, 0")
    a("s_cbranch_scc1 K2_ODDH")
    for sd in range(2):
        p = PP[sd]
        a(f"v_permlane32_swap_b32 v{p}, v{p+2}")
        a(f"v_permlane32_swap_b32 v{p+1}, v{p+3}")
        a(f"buffer_store_dwordx4 v[{p}:{p+3}], v156, s[24:27], s{36+sd} offen sc1")
    a("s_mov_b64 exec, 0xffffffff")
    for sd in range(2):
        a(f"buffer_store_dwordx2 v[{PP[sd]+4}:{PP[sd]+5}], v157, s[24:27], s{36+sd} offen sc1")
    a("s_mov_b64 exec, -1")
    a("s_branch K2_OST")
    a.label("K2_ODDH")
    a.fence(4)
    a("s_mov_b64 exec, 0xffffffff")
    for sd in range(2):
        a(f"buffer_store_dwordx2 v[{PP[sd]}:{PP[sd]+1}], v157, s[24:27], s{36+sd} offen sc1")
    a("s_mov_b64 exec, -1")
    for sd in range(2):
        p = PP[sd]; d = O[sd]
        a(f"v_permlane32_swap_b32 v{p}, v{p+4}")
        a(f"v_permlane32_swap_b32 v{p+1}, v{p+5}")
        a(f"v_mov_b32 v{d}, v{p+2}"); a(f"v_mov_b32 v{d+1}, v{p+3}")
        a(f"v_mov_b32 v{d+2}, v{p}"); a(f"v_mov_b32 v{d+3}, v{p+1}")
        a("s_mov_b64 exec, 0xffffffff")
        a(f"v_mov_b32 v{d}, v{p+4}"); a(f"v_mov_b32 v{d+1}, v{p+5}")
        a(f"v_mov_b32 v{d+2}, v{p+2}"); a(f"v_mov_b32 v{d+3}, v{p+3}")
        a("s_mov_b64 exec, -1")
        a(f"buffer_store_dwordx4 v[{d}:{d+3}], v156, s[24:27], s{36+sd} offen sc1")
    a.label("K2_OST")
    a.fence(4)
    a("s_waitcnt vmcnt(0) lgkmcnt(0)")
    st()
    a("s_barrier")
    a("s_cmp_lg_u32 s50, 0")
    a("s_cbranch_scc1 K2_OK")
    a(f"v_mov_b32 v{T+1}, {F_FLAG}")
    a(f"ds_read_b32 v{T+2}, v{T+1}")
    a("s_waitcnt lgkmcnt(0)")
    a(f"v_readfirstlane_b32 s46, v{T+2}")
    a("s_cmp_lg_u32 s46, 0")
    a("s_cbranch_scc1 K2_FALLBACK")
    a.label("K2_OK")
    a("s_cmp_lg_u32 s30, 0")
    a("s_cbranch_scc1 K2_NOSIG")
    a("v_mov_b32 v6, 1")
    a("s_lshl_b32 s33, s29, 8")
    a(f"s_add_u32 s33, s33, {WS_CNT}")
    a("s_lshl_b32 s38, s28, 2")
    a("v_mov_b32 v7, s38")
    a("s_mov_b64 exec, 1")
    a("buffer_store_dword v6, v7, s[24:27], s33 offen sc1")
    a("s_mov_b64 exec, -1")
    a.label("K2_NOSIG")
    OB = 40; ACC = 20; AF = 140
    a("v_and_b32 v3, 15, v2")
    a("v_lshrrev_b32 v4, 4, v2")
    a("v_lshlrev_b32 v15, 4, v2")
    a(f"v_mov_b32 v16, v{EA}")
    a("v_bfe_u32 v5, v2, 2, 2")
    a("v_lshl_add_u32 v5, v4, 2, v5")
    a("v_mul_u32_u24 v5, 160, v5")
    a("v_and_b32 v6, 3, v2")
    a("v_lshl_add_u32 v19, v6, 3, v5")
    a(f"v_add_u32 v17, {REG}, v19")
    a(f"v_add_u32 v18, {REG + 40960}, v19")
    for q in range(10):
        x = XR + q; xn = XR + 10 + q
        a(f"v_lshlrev_b32 v6, 16, v{x}")
        a(f"v_and_b32 v7, 0xffff0000, v{x}")
        a("v_sub_f32 v6, v6, v212"); a("v_sub_f32 v7, v7, v212")
        a("v_cvt_pk_bf16_f32 v6, 0, v6"); a("v_cvt_pk_bf16_f32 v7, 0, v7")
        a("v_mul_f32 v6, v6, v213"); a("v_mul_f32 v7, v7, v213")
        a(f"v_cvt_pk_bf16_f32 v{xn}, v6, v7")
    a("s_barrier")
    st()
    a("s_lshr_b32 s36, s57, 4")
    a("s_mul_i32 s36, s36, 20480")
    a(f"s_add_u32 s36, s36, {WS_O}")
    for ks in range(20):
        if ks % 4 == 0 and ks: a("s_add_u32 s36, s36, 4096")
        a(f"buffer_load_dwordx4 v[{OB+4*ks}:{OB+4*ks+3}], v15, s[24:27], s36 offen offset:{(ks%4)*1024} sc1")
    a("v_mov_b32 v6, 0")
    a(f"s_mov_b32 s38, {WS_IDX}")
    a("buffer_load_dwordx4 v[8:11], v6, s[24:27], s38 offen sc1")
    def areads(ks):
        stt = AF + (ks % 2)*20
        ad = 17 if ks < 8 else (18 if ks < 16 else 19)
        for nt in range(5):
            for hi in range(2):
                r = stt + nt*4 + hi*2
                a(f"ds_read_b64_tr_b16 v[{r}:{r+1}], v{ad} offset:{(ks%8)*5120 + nt*32 + hi*2560}")
    def mf(ks):
        stt = AF + (ks % 2)*20
        for nt in range(5):
            d = ACC + 4*nt
            cc = "0" if ks == 0 else f"v[{d}:{d+3}]"
            a(f"v_mfma_f32_16x16x32_bf16 v[{d}:{d+3}], v[{stt+nt*4}:{stt+nt*4+3}], v[{OB+4*ks}:{OB+4*ks+3}], {cc}")
    areads(0)
    for ks in range(20):
        if ks + 1 < 20:
            areads(ks + 1)
            a(f"s_waitcnt vmcnt({20 - ks}) lgkmcnt(10)")
        else:
            a("s_waitcnt vmcnt(0) lgkmcnt(0)")
        mf(ks)
    st()
    for i in range(4): a(f"v_readfirstlane_b32 s{44+i}, v{8+i}")
    a("s_lshr_b32 s33, s57, 4")
    for tok in range(2):
        a(f"s_lshr_b32 s38, s{44+tok}, 4")
        a("s_cmp_lg_u32 s38, s33")
        a(f"s_cbranch_scc1 K2_NOMOE{tok}")
        a(f"s_and_b32 s38, s{44+tok}, 15")
        a("v_cmp_eq_u32 vcc, s38, v3")
        a("s_and_saveexec_b64 s[40:41], vcc")
        a("v_lshlrev_b32 v5, 4, v4")
        a("s_mul_i32 s39, s55, 320")
        a(f"s_add_u32 s39, s39, {WS_YP + tok*2560}")
        for nt in range(5):
            a(f"buffer_load_dwordx4 v[{AF+4*nt}:{AF+4*nt+3}], v5, s[24:27], s39 offen offset:{nt*64} sc1")
        a("s_waitcnt vmcnt(0)")
        for nt in range(5):
            for e in range(4):
                y = AF + 4*nt + e
                a(f"v_cvt_pk_bf16_f32 v{y}, 0, v{y}")
                a(f"v_mul_f32 v{y}, s{46+tok}, v{y}")
                a(f"v_cvt_pk_bf16_f32 v{y}, 0, v{y}")
            for d in range(2):
                xn = XR + 10 + 2*nt + d
                a(f"v_lshlrev_b32 v6, 16, v{xn}")
                a(f"v_and_b32 v7, 0xffff0000, v{xn}")
                a(f"v_add_f32 v6, v6, v{AF+4*nt+2*d}")
                a(f"v_add_f32 v7, v7, v{AF+4*nt+2*d+1}")
                a(f"v_cvt_pk_bf16_f32 v{xn}, v6, v7")
        a("s_mov_b64 exec, s[40:41]")
        a.label(f"K2_NOMOE{tok}")
        a.fence(4)
    for nt in range(5):
        for d in range(2):
            A0 = ACC + 4*nt + 2*d
            x = XR + 2*nt + d; xn = XR + 10 + 2*nt + d
            a(f"v_cvt_pk_bf16_f32 v{A0}, 0, v{A0}")
            a(f"v_cvt_pk_bf16_f32 v{A0+1}, 0, v{A0+1}")
            a(f"v_lshlrev_b32 v6, 16, v{x}")
            a(f"v_and_b32 v7, 0xffff0000, v{x}")
            a(f"v_add_f32 v{A0}, v{A0}, v6")
            a(f"v_add_f32 v{A0+1}, v{A0+1}, v7")
            a(f"v_cvt_pk_bf16_f32 v{A0}, 0, v{A0}")
            a(f"v_cvt_pk_bf16_f32 v{A0+1}, 0, v{A0+1}")
            a(f"v_lshlrev_b32 v6, 16, v{xn}")
            a(f"v_and_b32 v7, 0xffff0000, v{xn}")
            a(f"v_add_f32 v{A0}, v{A0}, v6")
            a(f"v_add_f32 v{A0+1}, v{A0+1}, v7")
            a(f"v_cvt_pk_bf16_f32 v{x}, v{A0}, v{A0+1}")
        a(f"buffer_store_dwordx2 v[{XR+2*nt}:{XR+2*nt+1}], v16, s[20:23], 0 offen offset:{nt*32}")
    if instr:
        a("s_waitcnt vmcnt(0)")
        st()
        st.dump(1, 30, 2)
    a("s_endpgm")
    for t in (0, 4):
        a.label(f"K2_RC{t}")
        a("s_call_b64 s[60:61], K2_RECENTER")
        a(f"s_branch K2_NR{t}")
    a.label("K2_RECENTER")
    a.fence(16)
    a("s_add_u32 s72, s72, 1")
    mm(O[1], V0, PP[1], O[1])
    mm(O[1], V0+4, PP[1]+4, O[1])
    for i in range(8): a(f"v_mov_b32 v{PP[1]+i}, 0")
    for sd in range(2):
        a(f"v_frexp_exp_i32_f32 v{T}, v{O[sd]+12}")
        a(f"v_sub_u32 v{T}, {L_TARGET+1}, v{T}")
        for i in range(13): a(f"v_ldexp_f32 v{O[sd]+i}, v{O[sd]+i}, v{T}")
        a(f"v_cvt_f32_i32 v{T}, v{T}")
        a(f"v_add_f32 v{NEG[sd]}, v{NEG[sd]}, v{T}")
        if sd == 0:
            for i in range(16): a(f"v_add_f32 v{S[0]+i}, v{S[0]+i}, v{T}")
        split_neg(sd)
    a("s_nop 3")
    a("s_setpc_b64 s[60:61]")
    gen_producer(a, vDma)
    a.label("K2_END")
    a("s_endpgm")
    return a.text(), K2F_VGPR

def gen_producer(a, vDma):
    a.label("K2_KVDMA")
    for part in range(2):
        for g, n in ((0, 4), (1, 4), (2, 2)):
            a(f"s_add_u32 m0, s42, {part*KH + g*4096}")
            a(f"s_add_u32 s48, s43, {g*4096 + part*(C_V - C_K)}")
            for i in range(n):
                a(f"buffer_load_dwordx4 v{vDma}, s[24:27], s48 offen offset:{i*1024} lds")
    a(f"s_add_u32 s43, s43, {KH}")
    a("s_mov_b32 s45, s40")
    a("s_mov_b32 s40, s41")
    a("s_mov_b32 s41, s42")
    a("s_mov_b32 s42, s45")
    a("s_setpc_b64 s[60:61]")
    a.label("K2_WODMA")
    for ii in range(5):
        a(f"s_add_u32 m0, s59, {ii*1024}")
        a(f"buffer_load_dwordx4 v{10+ii}, s[16:19], s58 offen lds")
    a("s_add_u32 s58, s58, 40960")
    a("s_add_u32 s59, s59, 5120")
    a("s_setpc_b64 s[62:63]")
    def kv(): a("s_call_b64 s[60:61], K2_KVDMA")
    def wo(n):
        for _ in range(n): a("s_call_b64 s[62:63], K2_WODMA")
    a.label("K2_PROD")
    a.fence(4)
    a("s_load_dwordx4 s[64:67], s[0:1], 40")
    a("s_load_dwordx2 s[68:69], s[0:1], 56")
    a(f"s_mov_b32 s40, {2*KVB}")
    a("s_mov_b32 s41, 0")
    a(f"s_mov_b32 s42, {KVB}")
    a(f"s_add_u32 s43, s32, {KH}")
    kv()
    srd(a, 16, 6, 819200)
    for ii in range(5):
        a(f"v_add_u32 v5, {ii*64}, v2")
        a("v_mul_u32_u24 v6, 52429, v5")
        a("v_lshrrev_b32 v6, 19, v6")
        a("v_mul_u32_u24 v7, 10, v6")
        a("v_sub_u32 v7, v5, v7")
        a("v_and_b32 v8, 3, v6")
        a("v_bfe_u32 v9, v6, 2, 2")
        a("v_lshl_add_u32 v8, v9, 3, v8")
        a("v_lshrrev_b32 v9, 4, v6")
        a("v_lshl_add_u32 v6, v9, 2, v8")
        a("v_mul_u32_u24 v6, 1280, v6")
        a("v_lshl_add_u32 v6, v7, 4, v6")
        a(f"v_add_u32 v{10+ii}, s56, v6")
    a("s_mov_b32 s58, 0")
    a(f"s_mov_b32 s59, {REG}")
    a("s_and_b32 s51, s2, 7")
    a("s_mul_i32 s51, s51, 14")
    a("s_lshr_b32 s45, s2, 3")
    a("s_add_u32 s51, s51, s45")
    a("s_cmp_ge_u32 s45, 14")
    a("s_cbranch_scc1 K2_PPLAIN")
    a(f"s_cmp_ge_u32 s51, {NM2}")
    a("s_cbranch_scc1 K2_PPLAIN")
    a(f"s_mov_b32 s45, {WS_R}")
    for jx in range(8):
        if jx == 4: a(f"s_mov_b32 s45, {WS_R + 4096}")
        a(f"buffer_load_dwordx4 v[{32+4*jx}:{35+4*jx}], v{vDma}, s[24:27], s45 offen offset:{(jx%4)*1024}")
    a("s_waitcnt vmcnt(28) lgkmcnt(0)")
    a("s_barrier")
    srd(a, 84, 64, 640*3456)
    srd(a, 88, 66, 640*3456)
    srd(a, 92, 68, 1728*1280)
    a("v_lshrrev_b32 v5, 1, v2")
    a("v_mul_u32_u24 v16, 3456, v5")
    a("v_and_b32 v5, 1, v2")
    a("v_lshl_add_u32 v16, v5, 4, v16")
    a("s_lshl_b32 s45, s51, 5")
    a("v_add_u32 v16, s45, v16")
    a("s_waitcnt vmcnt(0)")
    def combine(n1, n2):
        a(f"v_min_u32 v20, v18, v{n1}")
        a(f"v_max_u32 v18, v18, v{n1}")
        a(f"v_max3_u32 v19, v20, v19, v{n2}")
    a("v_max_u32 v18, v32, v33"); a("v_min_u32 v19, v32, v33")
    for p in range(34, 64, 2):
        a(f"v_max_u32 v21, v{p}, v{p+1}"); a(f"v_min_u32 v22, v{p}, v{p+1}")
        combine(21, 22)
    for stp in (1, 2, 4, 8, 16, 32):
        a(f"v_xor_b32 v23, {stp}, v2")
        a("v_lshlrev_b32 v23, 2, v23")
        a("ds_bpermute_b32 v21, v23, v18")
        a("ds_bpermute_b32 v22, v23, v19")
        a("s_waitcnt lgkmcnt(0)")
        combine(21, 22)
    a("v_readfirstlane_b32 s70, v18")
    a("v_readfirstlane_b32 s71, v19")
    a("s_and_b32 s46, s70, 0xffff"); a("s_sub_u32 s46, 2047, s46")
    a("s_and_b32 s47, s71, 0xffff"); a("s_sub_u32 s47, 2047, s47")
    def wchunk(t0, t1):
        for t in range(t0, t1):
            a(f"s_mov_b32 s45, {t*110592}")
            a(f"s_mov_b32 m0, {WG_ + t*1024}")
            a("buffer_load_dwordx4 v16, s[84:87], s45 offen lds")
            a(f"s_mov_b32 m0, {WU_ + t*1024}")
            a("buffer_load_dwordx4 v16, s[88:91], s45 offen lds")
    srd(a, 96, 8, 2621440)
    a("v_mov_b32 v23, 0")
    for tok in range(2):
        a(f"s_mul_i32 s45, s{46+tok}, 1280")
        a(f"s_mov_b32 m0, {XS_ + tok*1280}")
        a(f"buffer_load_dwordx4 v{vDma}, s[96:99], s45 offen lds")
        a("s_mov_b64 exec, 0xffff")
        a(f"buffer_load_dwordx4 v{vDma}, s[96:99], s45 offen offset:1024 lds")
        a("s_mov_b64 exec, -1")
        a(f"s_lshl_b32 s45, s{46+tok}, 3")
        a(f"s_add_u32 s45, s45, {WS_ST}")
        a(f"buffer_load_dwordx2 v[{60+tok*2}:{61+tok*2}], v23, s[24:27], s45 offen")
    wchunk(0, 8)
    a("s_barrier")
    kv()
    wchunk(8, 20)
    a("s_waitcnt vmcnt(24)")
    a("s_barrier")
    kv()
    a("s_mul_i32 s45, s51, 20480")
    for g in range(5):
        a(f"s_mov_b32 m0, {WD_ + g*4096}")
        for i in range(4):
            a(f"buffer_load_dwordx4 v{vDma}, s[92:95], s45 offen offset:{i*1024} lds")
        if g < 4: a("s_add_u32 s45, s45, 4096")
    a("s_waitcnt vmcnt(20)")
    a("s_barrier")
    kv()
    a("v_lshrrev_b32 v4, 4, v2")
    a("v_and_b32 v5, 1, v2")
    a("v_mul_u32_u24 v20, 1280, v5")
    a(f"v_add_u32 v20, {XS_}, v20")
    a(f"v_mov_b32 v6, {ONES}")
    a("v_and_b32 v7, 2, v2")
    a("v_cmp_eq_u32 vcc, 0, v7")
    a("v_cndmask_b32 v20, v6, v20, vcc")
    a("v_lshl_add_u32 v20, v4, 3, v20")
    a("v_bfe_u32 v6, v2, 2, 2")
    a("v_lshl_add_u32 v6, v4, 2, v6")
    a("v_and_b32 v7, 3, v2")
    a("v_lshlrev_b32 v21, 5, v6")
    a("v_lshl_add_u32 v21, v7, 3, v21")
    a(f"v_add_u32 v21, {WG_}, v21")
    a("v_mul_u32_u24 v22, 1280, v6")
    a("v_lshl_add_u32 v22, v7, 3, v22")
    a(f"v_add_u32 v22, {WD_}, v22")
    for i in range(8): a(f"v_mov_b32 v{24+i}, 0")
    a("s_mov_b32 s45, 0")
    a.label("K2_GU")
    for u in range(2):
        b = 32 + u*12
        a(f"ds_read_b64 v[{b}:{b+1}], v20 offset:{u*64}")
        a(f"ds_read_b64 v[{b+2}:{b+3}], v20 offset:{u*64+32}")
        for mat in range(2):
            a(f"ds_read_b64_tr_b16 v[{b+4+4*mat}:{b+5+4*mat}], v21 offset:{mat*20480 + u*1024}")
            a(f"ds_read_b64_tr_b16 v[{b+6+4*mat}:{b+7+4*mat}], v21 offset:{mat*20480 + u*1024 + 512}")
    a("v_add_u32 v20, 128, v20")
    a("v_add_u32 v21, 2048, v21")
    a("s_waitcnt lgkmcnt(0)")
    for u in range(2):
        b = 32 + u*12
        for mat in range(2):
            a(f"v_mfma_f32_16x16x32_bf16 v[{24+4*mat}:{27+4*mat}], v[{b}:{b+3}], v[{b+4+4*mat}:{b+7+4*mat}], v[{24+4*mat}:{27+4*mat}]")
    a("s_add_u32 s45, s45, 1")
    a("s_cmp_lt_u32 s45, 10")
    a("s_cbranch_scc1 K2_GU")
    a("s_waitcnt vmcnt(0)")
    a("s_barrier")
    kv()
    for tok in range(2):
        g = 24 + tok; u = 28 + tok
        a(f"v_fma_f32 v{g}, -v{60+2*tok}, v26, v{g}")
        a(f"v_fma_f32 v{u}, -v{60+2*tok}, v30, v{u}")
        a(f"v_mul_f32 v{g}, v{g}, v{61+2*tok}")
        a(f"v_mul_f32 v{u}, v{u}, v{61+2*tok}")
        a(f"v_cvt_pk_bf16_f32 v{g}, 0, v{g}")
        a(f"v_cvt_pk_bf16_f32 v{u}, 0, v{u}")
        a(f"v_mul_f32 v32, {f32(-LOG2E)}, v{g}")
        a("v_exp_f32 v32, v32")
        a("v_add_f32 v32, 1.0, v32")
        a("v_rcp_f32 v32, v32")
        a(f"v_mul_f32 v32, v{g}, v32")
        a("v_cvt_pk_bf16_f32 v32, 0, v32")
        a(f"v_mul_f32 v32, v32, v{u}")
        a(f"v_cvt_pk_bf16_f32 v{33+tok}, v32, 0")
    a("v_lshlrev_b32 v23, 1, v2")
    a(f"v_add_u32 v23, {HB_}, v23")
    a("s_mov_b64 exec, 0xffff")
    a("ds_write_b16 v23, v33")
    a("ds_write_b16 v23, v34 offset:32")
    a("s_mov_b64 exec, -1")
    a("v_lshlrev_b32 v23, 5, v5")
    a("v_lshl_add_u32 v23, v4, 3, v23")
    a(f"v_add_u32 v23, {HB_}, v23")
    a("s_waitcnt lgkmcnt(0)")
    a("ds_read_b64 v[24:25], v23")
    a("v_mov_b32 v26, 0"); a("v_mov_b32 v27, 0")
    for q in range(4):
        a(f"v_mov_b32 v{34+4*q}, 0"); a(f"v_mov_b32 v{35+4*q}, 0")
    a("v_lshlrev_b32 v23, 2, v2")
    a(f"s_mov_b32 s46, {WS_YP}")
    a("s_mov_b32 s47, 0")
    a.label("K2_DN")
    for q in range(4):
        a(f"ds_read_b64_tr_b16 v[{32+4*q}:{33+4*q}], v22 offset:{q*32}")
    a("v_add_u32 v22, 128, v22")
    a("s_waitcnt lgkmcnt(0)")
    for q in range(4):
        a(f"v_mfma_f32_16x16x32_bf16 v[{48+4*q}:{51+4*q}], v[24:27], v[{32+4*q}:{35+4*q}], 0")
    a("s_mov_b64 exec, 0xffff")
    for q in range(4):
        for tok in range(2):
            a(f"buffer_atomic_add_f32 v{48+4*q+tok}, v23, s[24:27], s46 offen offset:{tok*2560 + q*64}")
    a("s_mov_b64 exec, -1")
    a("s_add_u32 s46, s46, 256")
    a("s_add_u32 s47, s47, 1")
    a("s_cmp_lg_u32 s47, 5")
    a("s_cbranch_scc1 K2_DN1")
    a("s_waitcnt vmcnt(40)")
    a("s_barrier")
    kv()
    a.label("K2_DN1")
    a("s_cmp_lt_u32 s47, 10")
    a("s_cbranch_scc1 K2_DN")
    a("s_cmp_lg_u32 s51, 0")
    a("s_cbranch_scc1 K2_NOIDX")
    for tok in range(2):
        k = 70 + tok
        a(f"s_and_b32 s45, s{k}, 0xffff")
        a("s_sub_u32 s45, 2047, s45")
        a(f"v_mov_b32 v{32+tok}, s45")
        a(f"s_and_b32 s45, s{k}, 0xffff0000")
        a("s_xor_b32 s46, s45, 0x80000000")
        a("s_xor_b32 s47, s45, 0xffff0000")
        a("s_bitcmp1_b32 s45, 31")
        a("s_cselect_b32 s45, s46, s47")
        a(f"v_mov_b32 v{34+tok}, s45")
        a(f"v_mul_f32 v{34+tok}, {f32(-LOG2E)}, v{34+tok}")
        a(f"v_exp_f32 v{34+tok}, v{34+tok}")
        a(f"v_add_f32 v{34+tok}, 1.0, v{34+tok}")
        a(f"v_rcp_f32 v{34+tok}, v{34+tok}")
        a(f"v_cvt_pk_bf16_f32 v{34+tok}, 0, v{34+tok}")
    a("v_mov_b32 v23, 0")
    a(f"s_mov_b32 s45, {WS_IDX}")
    a("s_mov_b64 exec, 1")
    a("buffer_store_dwordx4 v[32:35], v23, s[24:27], s45 offen sc1")
    a("s_mov_b64 exec, -1")
    a.label("K2_NOIDX")
    a.fence(4)
    a("s_waitcnt vmcnt(40)")
    a("s_barrier")
    kv()
    wo(6)
    a("s_waitcnt vmcnt(30)")
    a("s_barrier")
    a("v_mov_b32 v23, 0")
    a("v_mov_b32 v24, 1")
    a(f"s_mov_b32 s45, {WS_CNT + 2048}")
    a("s_mov_b64 exec, 1")
    a("buffer_atomic_add v24, v23, s[24:27], s45 offen sc1")
    a("s_mov_b64 exec, -1")
    wo(6)
    a("s_barrier")
    a("s_branch K2_PTAIL")
    a.label("K2_PPLAIN")
    a.fence(4)
    a("s_waitcnt vmcnt(20) lgkmcnt(0)")
    a("s_barrier")
    a("s_mov_b32 s44, 0")
    a("s_waitcnt vmcnt(0)")
    a.label("K2_PLOOP")
    a("s_barrier")
    a("s_cmp_ge_u32 s44, 6")
    a("s_cbranch_scc1 K2_PNODMA")
    kv()
    a.label("K2_PNODMA")
    a("s_cmp_lg_u32 s50, 0")
    a("s_cbranch_scc1 K2_PNOWO")
    wo(2)
    a("s_waitcnt vmcnt(10)")
    a("s_branch K2_PNEXT")
    a.label("K2_PNOWO")
    a("s_waitcnt vmcnt(0)")
    a.label("K2_PNEXT")
    a("s_add_u32 s44, s44, 1")
    a("s_cmp_lt_u32 s44, 8")
    a("s_cbranch_scc1 K2_PLOOP")
    a.label("K2_PTAIL")
    a.fence(4)
    a("v_mov_b32 v20, 0")
    a("s_mov_b32 s44, 0")
    a(f"s_mov_b32 s47, {WS_CNT + 2048}")
    a("buffer_load_dword v26, v20, s[24:27], s47 offen sc1")
    a.label("K2_PGO")
    a(f"s_cmp_ge_u32 s58, {16*40960}")
    a("s_cbranch_scc1 K2_PGO2")
    wo(1)
    a("s_branch K2_PGO")
    a.label("K2_PGO2")
    a(f"s_mov_b32 s58, {16*40960}")
    a("s_mov_b32 s59, 0")
    wo(4)
    a("s_barrier")
    a("s_cmp_lg_u32 s50, 0")
    a("s_cbranch_scc1 K2_PPOLL")
    a(f"v_mov_b32 v28, {F_FLAG}")
    a("ds_read_b32 v29, v28")
    a("s_waitcnt lgkmcnt(0)")
    a("v_readfirstlane_b32 s46, v29")
    a("s_cmp_eq_u32 s46, 0")
    a("s_cbranch_scc1 K2_PPOLL")
    a("s_waitcnt vmcnt(0)")
    a("s_mov_b32 s50, 1")
    a("s_mov_b32 s43, s32")
    a("s_mov_b32 s44, 0")
    a.label("K2_PMAX")
    a("s_barrier")
    a("s_mov_b32 s42, 0")
    kv()
    a("s_waitcnt vmcnt(0)")
    a("s_barrier")
    a("s_add_u32 s44, s44, 1")
    a("s_cmp_lt_u32 s44, 8")
    a("s_cbranch_scc1 K2_PMAX")
    a("s_barrier")
    a(f"s_mov_b32 s40, {KVB}")
    a(f"s_mov_b32 s41, {2*KVB}")
    a("s_mov_b32 s42, 0")
    a("s_mov_b32 s43, s32")
    kv(); kv()
    a("s_branch K2_PPLAIN")
    a.label("K2_PPOLL")
    a.fence(4)
    a("v_mov_b32 v20, 0")
    a("s_mov_b64 exec, 1")
    a("s_lshl_b32 s45, s73, 8")
    a(f"s_add_u32 s45, s45, {WS_CNT}")
    if FLAGS:
        a("s_mov_b64 exec, 0xffffffff")
        a("v_lshlrev_b32 v21, 2, v2")
        a.label("K2_POLL2")
        a("buffer_load_dword v22, v21, s[24:27], s45 offen sc1")
        a("s_waitcnt vmcnt(0)")
        a("v_cmp_ne_u32 vcc, 0, v22")
        a("s_cmp_eq_u32 vcc_lo, -1")
        a("s_cbranch_scc1 K2_PDONE")
        a(f"s_sleep {POLL_SLEEP}")
        a("s_add_u32 s44, s44, 1")
        a(f"s_cmp_lt_u32 s44, {SPIN_MAX}")
        a("s_cbranch_scc1 K2_POLL2")
    elif POLL2:
        a("buffer_load_dword v22, v20, s[24:27], s45 offen sc1")
        a(f"s_sleep {POLL2}")
        a.label("K2_POLL2")
        for q in range(2):
            a(f"buffer_load_dword v{23-q}, v20, s[24:27], s45 offen sc1")
            a("s_waitcnt vmcnt(1)")
            a(f"v_readfirstlane_b32 s46, v{22+q}")
            a("s_cmp_ge_u32 s46, 32")
            a("s_cbranch_scc1 K2_PDONE")
            a(f"s_sleep {POLL2}")
        a("s_add_u32 s44, s44, 1")
        a(f"s_cmp_lt_u32 s44, {SPIN_MAX}")
        a("s_cbranch_scc1 K2_POLL2")
    else:
        a.label("K2_POLL2")
        a("buffer_load_dword v22, v20, s[24:27], s45 offen sc1")
        a("s_waitcnt vmcnt(0)")
        a("v_readfirstlane_b32 s46, v22")
        a("s_cmp_ge_u32 s46, 32")
        a("s_cbranch_scc1 K2_PDONE")
        a(f"s_sleep {POLL_SLEEP}")
        a("s_add_u32 s44, s44, 1")
        a(f"s_cmp_lt_u32 s44, {SPIN_MAX}")
        a("s_cbranch_scc1 K2_POLL2")
    a.label("K2_PDONE")
    a(f"s_mov_b32 s47, {WS_CNT + 2048}")
    a.label("K2_POLL1")
    a("v_readfirstlane_b32 s46, v26")
    a(f"s_cmp_ge_u32 s46, {NM2}")
    a("s_cbranch_scc1 K2_POLL1_OK")
    a("s_add_u32 s44, s44, 1")
    a(f"s_cmp_ge_u32 s44, {SPIN_MAX}")
    a("s_cbranch_scc1 K2_POLL1_OK")
    a("s_sleep 4")
    a("buffer_load_dword v26, v20, s[24:27], s47 offen sc1")
    a("s_waitcnt vmcnt(0)")
    a("s_branch K2_POLL1")
    a.label("K2_POLL1_OK")
    a("s_barrier")
```

```python
import sys
from gen import *
from k1d import *
from k2f import *
out = sys.argv[1] if len(sys.argv) > 1 else "parallel_sum__softmax_full_mha__moe_arch_mod__prompt.s"
instr = len(sys.argv) > 2
b1, v1 = gen_k1d(instr, QSCALE=C32*LOG2E)
b2, v2 = gen_k2f(instr)
ks = [("k1_kernel", b1, v1, 256, 768, K1D_LDS), ("k2_kernel", b2, v2, 256, 320, K2F_LDS)]
build(ks, out)
```

```python
from asmlib import Asm
from gen import *
import os

KH = 256 * RB
KVB = 2 * KH
TS = 32 * RB
ONES = 3 * KVB
F_FLAG = ONES + KH
REG = F_FLAG + 256
K2F_LDS = REG + 16 * 5120
LOG2E = 1.4426950408889634
C32 = struct.unpack("<f", struct.pack("<I", 0x3e64f92e))[0]
L_TARGET = -100
L_THRESH = "0x3f800000"
K2F_VGPR = 224
NM2 = 108
WG_, WU_, WD_ = REG, REG + 20480, REG + 40960
XS_ = REG + 61440
HB_ = XS_ + 2560
SPIN_MAX = 1 << 20
FLAGS = int(os.environ.get("FL", 1))
POLL2 = int(os.environ.get("P2", 0))
POLL_SLEEP = int(os.environ.get("PS", 4))
WS_CNT = WS_YP + 5120 + 1024

def gen_k2f(instr=False, slots=None):
    a = Asm()
    st = Stamps(a, instr, base=74)
    st()
    a("s_cmp_ge_u32 s2, 256")
    a("s_cbranch_scc1 K2_END")
    a("s_load_dwordx2 s[10:11], s[0:1], 80")
    a("s_load_dwordx2 s[6:7], s[0:1], 16")
    a("s_load_dwordx2 s[8:9], s[0:1], 0")
    a("s_load_dwordx2 s[52:53], s[0:1], 64")
    a("s_and_b32 s28, s2, 7")
    a("s_lshr_b32 s29, s2, 3")
    a("s_lshr_b32 s30, s29, 3")
    a("s_lshl_b32 s28, s28, 2")
    a("s_add_u32 s28, s28, s30")
    a("s_and_b32 s29, s29, 7")
    a("v_lshrrev_b32 v1, 6, v0")
    a("v_and_b32 v2, 63, v0")
    a("v_readfirstlane_b32 s30, v1")
    QH = [4, 16]; QL = [8, 20]; QX = [12, 24]
    KA = [28, 36]; KX = [32, 40]; V0 = 44
    S = [52, 68]; PP = [84, 92]; O = [100, 116]; T = 132
    NEG = [140, 141]
    vKl, vXl, vVl, vKc, vXc, vVc, vKn, vXn, vDma, vMsk = range(142, 152)
    a("v_lshrrev_b32 v3, 5, v2")
    a(f"v_lshlrev_b32 v{vDma}, 4, v2")
    a("s_lshr_b32 s54, s28, 3")
    a("s_lshl_b32 s55, s29, 2")
    a("s_add_u32 s54, s54, s55")
    a("s_and_b32 s55, s28, 7")
    a("s_mul_i32 s56, s55, 160")
    a("s_waitcnt lgkmcnt(0)")
    srd(a, 24, 10, WS_SIZE)
    a(f"s_mul_i32 s31, s28, {HB2}")
    a(f"s_add_u32 s32, s31, {C_K}")
    a("s_mov_b32 s50, 0")
    a("s_cmp_lg_u32 s30, 4")
    a("s_cbranch_scc1 K2_COMP")
    a("s_setprio 3")
    for part in range(2):
        for g, n in ((0, 4), (1, 4), (2, 2)):
            a(f"s_mov_b32 m0, {part*KH + g*4096}")
            a(f"s_add_u32 s48, s32, {g*4096 + part*(C_V - C_K)}")
            for i in range(n):
                a(f"buffer_load_dwordx4 v{vDma}, s[24:27], s48 offen offset:{i*1024} lds")
    a("s_branch K2_PROD")
    a.label("K2_COMP")
    a(f"v_and_b32 v{T}, 31, v2")
    a(f"v_mul_u32_u24 v{T+1}, {RB}, v{T}")
    a(f"v_lshl_add_u32 v{vKc}, v3, 4, v{T+1}")
    a(f"v_add_u32 v{vXc}, 32, v{T+1}")
    a(f"v_lshlrev_b32 v{vKl}, 5, v{T}")
    a(f"v_lshl_add_u32 v{vKl}, v3, 4, v{vKl}")
    a(f"v_lshlrev_b32 v{vXl}, 3, v{T}")
    a(f"v_add_u32 v{vXl}, 8192, v{vXl}")
    a("s_lshl_b32 s34, s29, 8")
    a("s_lshl_b32 s35, s30, 6")
    a("s_add_u32 s34, s34, s35")
    a(f"s_mul_i32 s35, s34, {RB}")
    a("s_add_u32 s35, s35, s31")
    for sd in range(2):
        for i in range(4): a(f"v_mov_b32 v{QX[sd]+i}, 0")
        a(f"buffer_load_dwordx2 v[{QH[sd]}:{QH[sd]+1}], v{vKc}, s[24:27], s35 offen offset:{sd*TS}")
        a(f"buffer_load_dwordx2 v[{QH[sd]+2}:{QH[sd]+3}], v{vKc}, s[24:27], s35 offen offset:{sd*TS+8}")
    a("s_mov_b64 exec, 0xffffffff")
    for sd in range(2):
        a(f"buffer_load_dwordx2 v[{QX[sd]}:{QX[sd]+1}], v{vXc}, s[24:27], s35 offen offset:{sd*TS}")
    a("s_mov_b64 exec, -1")
    XR = 192; EA = 214
    a("s_lshl_b32 s57, s54, 6")
    a("s_lshl_b32 s33, s30, 4")
    a("s_add_u32 s57, s57, s33")
    a(f"v_and_b32 v{T+2}, 15, v2")
    a(f"v_lshrrev_b32 v{T+3}, 4, v2")
    a(f"v_add_u32 v{T+4}, s57, v{T+2}")
    a(f"v_mul_u32_u24 v{T+4}, 1280, v{T+4}")
    a(f"v_lshl_add_u32 v{EA}, v{T+3}, 3, v{T+4}")
    a(f"v_add_u32 v{EA}, s56, v{EA}")
    srd(a, 16, 8, 2621440)
    srd(a, 20, 52, 2621440)
    a(f"v_lshlrev_b32 v215, 3, v{T+2}")
    a("s_lshl_b32 s58, s57, 3")
    a(f"s_add_u32 s58, s58, {WS_ST}")
    a(f"v_and_b32 v{T+3}, 31, v2")
    a(f"v_mul_u32_u24 v{T+2}, 320, v3")
    a(f"v_lshl_add_u32 v{T+2}, v{T+3}, 4, v{T+2}")
    a(f"v_add_u32 v{T+2}, {KH}, v{T+2}")
    a(f"v_mov_b32 v{T+4}, {ONES}")
    a(f"v_cmp_gt_u32 vcc, 20, v{T+3}")
    a(f"v_cndmask_b32 v{vVl}, v{T+4}, v{T+2}, vcc")
    a(f"v_cndmask_b32 v{vMsk}, 0, -1, vcc")
    a(f"v_mov_b32 v{T}, 0x3f803f80")
    for i in range(1, 4): a(f"v_mov_b32 v{T+i}, v{T}")
    for kb in range(2):
        a(f"v_mov_b32 v{KX[kb]+2}, v{T}"); a(f"v_mov_b32 v{KX[kb]+3}, v{T}")
    a(f"v_lshlrev_b32 v{T+4}, 4, v0")
    a(f"v_add_u32 v{T+4}, {ONES}, v{T+4}")
    a(f"ds_write_b128 v{T+4}, v[{T}:{T+3}]")
    a(f"ds_write_b128 v{T+4}, v[{T}:{T+3}] offset:4096")
    a(f"v_lshlrev_b32 v{T+4}, 3, v0")
    a(f"v_add_u32 v{T+4}, {ONES + 8192}, v{T+4}")
    a(f"ds_write_b64 v{T+4}, v[{T}:{T+1}]")
    a("s_mov_b32 s72, 0")
    def mm(d, x, y, c):
        cc = "0" if c is None else f"v[{c}:{c+15}]"
        a(f"v_mfma_f32_32x32x16_bf16 v[{d}:{d+15}], v[{x}:{x+3}], v[{y}:{y+3}], {cc}")
    def qk(sd, kb):
        mm(S[sd], KA[kb], QH[sd], None); mm(S[sd], KX[kb], QX[sd], S[sd])
    def kread(aK, aX, t, kb):
        a(f"ds_read_b128 v[{KA[kb]}:{KA[kb]+3}], v{aK} offset:{t*1024}")
        a(f"ds_read_b64 v[{KX[kb]}:{KX[kb]+1}], v{aX} offset:{t*256}")
    def vread(addr, t):
        for aa in range(2):
            r = V0 + aa*4
            a(f"ds_read_b128 v[{r}:{r+3}], v{addr} offset:{(2*t + aa)*640}")
    def halfmax(r, tmp):
        a(f"v_mov_b32 v{tmp}, v{r}")
        a(f"v_permlane32_swap_b32 v{r}, v{tmp}")
        a(f"v_max_f32 v{r}, v{r}, v{tmp}")
    def split_neg(sd):
        a(f"v_cvt_pk_bf16_f32 v{T+2}, 0, v{NEG[sd]}")
        a(f"v_sub_f32 v{T+3}, v{NEG[sd]}, v{T+2}")
        a(f"v_cvt_pk_bf16_f32 v{T+4}, 0, v{T+3}")
        a(f"v_sub_f32 v{T+3}, v{T+3}, v{T+4}")
        a("s_mov_b64 exec, 0xffffffff")
        a(f"v_cvt_pk_bf16_f32 v{QX[sd]+2}, v{T+2}, v{T+4}")
        a(f"v_cvt_pk_bf16_f32 v{QX[sd]+3}, v{T+3}, 0")
        a("s_mov_b64 exec, -1")
    a(f"v_mov_b32 v{T}, {F_FLAG}")
    a(f"v_mov_b32 v{T+1}, 0")
    a(f"ds_write_b32 v{T}, v{T+1}")
    a("s_waitcnt vmcnt(0)")
    a.label("K2_MAIN")
    a.fence(4)
    a("s_mov_b32 s40, 0")
    a(f"s_mov_b32 s41, {KVB}")
    a(f"s_mov_b32 s42, {2*KVB}")
    for i in range(32): a(f"v_mov_b32 v{O[0]+i}, 0")
    for i in range(8): a(f"v_mov_b32 v{PP[1]+i}, 0")
    for i in range(8): a(f"v_mov_b32 v{V0+i}, 0")
    a("s_waitcnt lgkmcnt(0)")
    st()
    a("s_barrier")
    a(f"v_mov_b32 v{vKc}, v{vKl}")
    a(f"v_mov_b32 v{vXc}, v{vXl}")
    a(f"v_mov_b32 v{vVc}, v{vVl}")
    a(f"v_add_u32 v{vKn}, {KVB}, v{vKl}")
    a(f"v_add_u32 v{vXn}, {KVB}, v{vXl}")
    kread(vKc, vXc, 0, 0)
    a("s_waitcnt lgkmcnt(0)")
    qk(0, 0)
    a("s_cmp_lg_u32 s50, 0")
    a("s_cbranch_scc1 K2_SKIPMAX")
    qk(1, 0)
    for sd in range(2):
        a(f"v_max3_f32 v{T}, v{S[sd]}, v{S[sd]+1}, v{S[sd]+2}")
        for i in range(3, 15, 2):
            a(f"v_max3_f32 v{T}, v{T}, v{S[sd]+i}, v{S[sd]+i+1}")
        a(f"v_max_f32 v{T}, v{T}, v{S[sd]+15}")
        halfmax(T, T+1)
        a(f"v_sub_f32 v{NEG[sd]}, {f32(float(L_TARGET))}, v{T}")
        split_neg(sd)
    for i in range(16): a(f"v_add_f32 v{S[0]+i}, v{S[0]+i}, v{NEG[0]}")
    for nt in range(5):
        a(f"buffer_load_dwordx2 v[{XR+2*nt}:{XR+2*nt+1}], v{EA}, s[16:19], 0 offen offset:{nt*32}")
    a(f"buffer_load_dwordx2 v[212:213], v215, s[24:27], s58 offen")
    a.label("K2_SKIPMAX")
    a.fence(16)
    a("s_mov_b32 s44, 0")
    a("s_mov_b64 vcc, 0")
    st()
    a.label("K2_LOOP")
    if slots is None: slots = [8, 48, 88, 128]
    for t in range(8):
        for sd in range(2):
            Sc = S[sd]; Pc = PP[sd]; ot = sd ^ 1
            if sd == 0 and t % 4 == 0:
                a(f"s_cbranch_vccnz K2_RC{t}")
                a.label(f"K2_NR{t}")
            if sd == 0 and t == 7:
                a("s_barrier")
            E = []
            for i in range(8):
                E.append((f"v_exp_f32 v{Sc+2*i}, v{Sc+2*i}", 8))
                E.append((f"v_exp_f32 v{Sc+2*i+1}, v{Sc+2*i+1}", 8))
                if i > 0: E.append((f"v_cvt_pk_bf16_f32 v{Pc+i-1}, v{Sc+2*i-2}, v{Sc+2*i-1}", 4))
            E.append((f"v_cvt_pk_bf16_f32 v{Pc+7}, v{Sc+14}, v{Sc+15}", 4))
            names = ["qkA", "qkC", "pv0", "pv1"]
            kb = (t % 2) if sd == 0 else ((t+1) % 2)
            pos = 0; k = 0; n = 0
            for ins, cst in E:
                while k < 4 and pos >= slots[k]:
                    what = names[k]; k += 1
                    if what == "qkA":
                        if sd == 1: a("s_waitcnt lgkmcnt(2)")
                        mm(S[ot], KA[kb], QH[ot], None)
                    elif what == "qkB": mm(S[ot], KA[kb], QL[ot], S[ot])
                    elif what == "qkC": mm(S[ot], KX[kb], QX[ot], S[ot])
                    elif what == "pv0":
                        if sd == 1: a("s_waitcnt lgkmcnt(0)")
                        mm(O[ot], V0, PP[ot], O[ot])
                    elif what == "pv1":
                        mm(O[ot], V0+4, PP[ot]+4, O[ot])
                        if sd == 0: vread(vVc, t)
                a(ins); pos += cst; n += 1
                if sd == 1 and t % 4 == 3 and n == 8:
                    a(f"v_max_f32 v{T}, v{O[0]+12}, v{O[1]+12}")
                    a(f"v_cmp_lt_f32 vcc, {L_THRESH}, v{T}")
                if sd == 0 and n == 1:
                    if t + 1 < 8: kread(vKc, vXc, t+1, (t+1) % 2)
                    else: kread(vKn, vXn, 0, 0)
            assert k == 4
    a("s_mov_b32 s45, s40")
    a("s_mov_b32 s40, s41")
    a("s_mov_b32 s41, s42")
    a("s_mov_b32 s42, s45")
    a(f"v_add_u32 v{vKc}, s40, v{vKl}")
    a(f"v_add_u32 v{vXc}, s40, v{vXl}")
    a(f"v_and_b32 v{vVc}, s40, v{vMsk}")
    a(f"v_add_u32 v{vVc}, v{vVc}, v{vVl}")
    a(f"v_add_u32 v{vKn}, s41, v{vKl}")
    a(f"v_add_u32 v{vXn}, s41, v{vXl}")
    a("s_add_u32 s44, s44, 1")
    a("s_cmp_lt_u32 s44, 8")
    a("s_cbranch_scc1 K2_LOOP")
    st()
    mm(O[1], V0, PP[1], O[1])
    mm(O[1], V0+4, PP[1]+4, O[1])
    a("s_waitcnt lgkmcnt(0)")
    a("s_cmp_lg_u32 s50, 0")
    a("s_cbranch_scc1 K2_EPI")
    a(f"v_mul_f32 v{T}, 0, v{O[0]}")
    for sd in range(2):
        for i in range(13):
            if sd or i: a(f"v_fma_f32 v{T}, v{O[sd]+i}, 0, v{T}")
    a(f"v_cmp_u_f32 vcc, v{T}, v{T}")
    a(f"v_mov_b32 v{T+1}, {F_FLAG}")
    a(f"v_mov_b32 v{T+2}, 1")
    a("s_and_saveexec_b64 s[46:47], vcc")
    a("s_cbranch_execz K2_NOFLAG")
    a(f"ds_write_b32 v{T+1}, v{T+2}")
    a.label("K2_NOFLAG")
    a("s_mov_b64 exec, s[46:47]")
    a("s_branch K2_EPI")
    a.label("K2_FALLBACK")
    a.fence(4)
    a("s_mov_b32 s50, 1")
    a("s_mov_b32 s44, 0")
    for sd in range(2):
        a(f"v_mov_b32 v{QX[sd]+2}, 0")
        a(f"v_mov_b32 v{QX[sd]+3}, 0")
        a(f"v_mov_b32 v{T+6+sd}, 0xff800000")
    a.label("K2_MAXLOOP")
    a("s_barrier")
    a("s_barrier")
    a("s_mov_b32 s45, 0")
    a(f"v_mov_b32 v{vKc}, v{vKl}")
    a(f"v_mov_b32 v{vXc}, v{vXl}")
    a.label("K2_MAXT")
    kread(vKc, vXc, 0, 0)
    a(f"v_add_u32 v{vKc}, 1024, v{vKc}")
    a(f"v_add_u32 v{vXc}, 256, v{vXc}")
    a("s_waitcnt lgkmcnt(0)")
    qk(0, 0); qk(1, 0)
    for sd in range(2):
        for i in range(0, 16, 2):
            a(f"v_max3_f32 v{T+6+sd}, v{T+6+sd}, v{S[sd]+i}, v{S[sd]+i+1}")
    a("s_add_u32 s45, s45, 1")
    a("s_cmp_lt_u32 s45, 8")
    a("s_cbranch_scc1 K2_MAXT")
    a("s_add_u32 s44, s44, 1")
    a("s_cmp_lt_u32 s44, 8")
    a("s_cbranch_scc1 K2_MAXLOOP")
    for sd in range(2):
        halfmax(T+6+sd, T+1)
        a(f"v_sub_f32 v{NEG[sd]}, {f32(float(L_TARGET))}, v{T+6+sd}")
        split_neg(sd)
    a("s_barrier")
    a("s_branch K2_MAIN")
    a.label("K2_EPI")
    a.fence(16)
    a("v_and_b32 v152, 31, v2")
    a("v_add_u32 v152, s34, v152")
    a("v_lshrrev_b32 v153, 4, v152")
    a("v_mul_u32_u24 v153, 20480, v153")
    a("v_and_b32 v152, 15, v152")
    a("v_lshl_add_u32 v152, v152, 4, v153")
    a(f"s_mov_b32 s36, {WS_O}")
    a(f"s_mov_b32 s37, {WS_O + 2*20480}")
    a("s_mul_i32 s35, s28, 5")
    a("s_add_u32 s33, s35, 1")
    a("s_lshr_b32 s33, s33, 1")
    a("v_add_u32 v153, s33, v3")
    a("v_lshl_add_u32 v156, v153, 8, v152")
    a("s_and_b32 s38, s28, 1")
    a("s_add_u32 s39, s33, 2")
    a("s_lshl_b32 s39, s39, 8")
    a("s_sub_u32 s33, s33, 1")
    a("s_lshl_b32 s33, s33, 8")
    a("s_add_u32 s33, s33, 8")
    a("s_cmp_eq_u32 s38, 0")
    a("s_cselect_b32 s33, s39, s33")
    a("v_add_u32 v157, s33, v152")
    for sd in range(2):
        a(f"v_rcp_f32 v{T}, v{O[sd]+12}")
        for i in range(12): a(f"v_mul_f32 v{O[sd]+i}, v{O[sd]+i}, v{T}")
        for i in range(6): a(f"v_cvt_pk_bf16_f32 v{PP[sd]+i}, v{O[sd]+2*i}, v{O[sd]+2*i+1}")
    a("s_cmp_lg_u32 s38, 0")
    a("s_cbranch_scc1 K2_ODDH")
    for sd in range(2):
        p = PP[sd]
        a(f"v_permlane32_swap_b32 v{p}, v{p+2}")
        a(f"v_permlane32_swap_b32 v{p+1}, v{p+3}")
        a(f"buffer_store_dwordx4 v[{p}:{p+3}], v156, s[24:27], s{36+sd} offen sc1")
    a("s_mov_b64 exec, 0xffffffff")
    for sd in range(2):
        a(f"buffer_store_dwordx2 v[{PP[sd]+4}:{PP[sd]+5}], v157, s[24:27], s{36+sd} offen sc1")
    a("s_mov_b64 exec, -1")
    a("s_branch K2_OST")
    a.label("K2_ODDH")
    a.fence(4)
    a("s_mov_b64 exec, 0xffffffff")
    for sd in range(2):
        a(f"buffer_store_dwordx2 v[{PP[sd]}:{PP[sd]+1}], v157, s[24:27], s{36+sd} offen sc1")
    a("s_mov_b64 exec, -1")
    for sd in range(2):
        p = PP[sd]; d = O[sd]
        a(f"v_permlane32_swap_b32 v{p}, v{p+4}")
        a(f"v_permlane32_swap_b32 v{p+1}, v{p+5}")
        a(f"v_mov_b32 v{d}, v{p+2}"); a(f"v_mov_b32 v{d+1}, v{p+3}")
        a(f"v_mov_b32 v{d+2}, v{p}"); a(f"v_mov_b32 v{d+3}, v{p+1}")
        a("s_mov_b64 exec, 0xffffffff")
        a(f"v_mov_b32 v{d}, v{p+4}"); a(f"v_mov_b32 v{d+1}, v{p+5}")
        a(f"v_mov_b32 v{d+2}, v{p+2}"); a(f"v_mov_b32 v{d+3}, v{p+3}")
        a("s_mov_b64 exec, -1")
        a(f"buffer_store_dwordx4 v[{d}:{d+3}], v156, s[24:27], s{36+sd} offen sc1")
    a.label("K2_OST")
    a.fence(4)
    a("s_waitcnt vmcnt(0) lgkmcnt(0)")
    st()
    a("s_barrier")
    a("s_cmp_lg_u32 s50, 0")
    a("s_cbranch_scc1 K2_OK")
    a(f"v_mov_b32 v{T+1}, {F_FLAG}")
    a(f"ds_read_b32 v{T+2}, v{T+1}")
    a("s_waitcnt lgkmcnt(0)")
    a(f"v_readfirstlane_b32 s46, v{T+2}")
    a("s_cmp_lg_u32 s46, 0")
    a("s_cbranch_scc1 K2_FALLBACK")
    a.label("K2_OK")
    a("s_cmp_lg_u32 s30, 0")
    a("s_cbranch_scc1 K2_NOSIG")
    a("v_mov_b32 v6, 1")
    a("s_lshl_b32 s33, s29, 8")
    a(f"s_add_u32 s33, s33, {WS_CNT}")
    a("s_lshl_b32 s38, s28, 2")
    a("v_mov_b32 v7, s38")
    a("s_mov_b64 exec, 1")
    a("buffer_store_dword v6, v7, s[24:27], s33 offen sc1")
    a("s_mov_b64 exec, -1")
    a.label("K2_NOSIG")
    OB = 40; ACC = 20; AF = 140
    a("v_and_b32 v3, 15, v2")
    a("v_lshrrev_b32 v4, 4, v2")
    a("v_lshlrev_b32 v15, 4, v2")
    a(f"v_mov_b32 v16, v{EA}")
    a("v_bfe_u32 v5, v2, 2, 2")
    a("v_lshl_add_u32 v5, v4, 2, v5")
    a("v_mul_u32_u24 v5, 160, v5")
    a("v_and_b32 v6, 3, v2")
    a("v_lshl_add_u32 v19, v6, 3, v5")
    a(f"v_add_u32 v17, {REG}, v19")
    a(f"v_add_u32 v18, {REG + 40960}, v19")
    for q in range(10):
        x = XR + q; xn = XR + 10 + q
        a(f"v_lshlrev_b32 v6, 16, v{x}")
        a(f"v_and_b32 v7, 0xffff0000, v{x}")
        a("v_sub_f32 v6, v6, v212"); a("v_sub_f32 v7, v7, v212")
        a("v_cvt_pk_bf16_f32 v6, 0, v6"); a("v_cvt_pk_bf16_f32 v7, 0, v7")
        a("v_mul_f32 v6, v6, v213"); a("v_mul_f32 v7, v7, v213")
        a(f"v_cvt_pk_bf16_f32 v{xn}, v6, v7")
    a("s_barrier")
    st()
    a("s_lshr_b32 s36, s57, 4")
    a("s_mul_i32 s36, s36, 20480")
    a(f"s_add_u32 s36, s36, {WS_O}")
    for ks in range(20):
        if ks % 4 == 0 and ks: a("s_add_u32 s36, s36, 4096")
        a(f"buffer_load_dwordx4 v[{OB+4*ks}:{OB+4*ks+3}], v15, s[24:27], s36 offen offset:{(ks%4)*1024} sc1")
    a("v_mov_b32 v6, 0")
    a(f"s_mov_b32 s38, {WS_IDX}")
    a("buffer_load_dwordx4 v[8:11], v6, s[24:27], s38 offen sc1")
    def areads(ks):
        stt = AF + (ks % 2)*20
        ad = 17 if ks < 8 else (18 if ks < 16 else 19)
        for nt in range(5):
            for hi in range(2):
                r = stt + nt*4 + hi*2
                a(f"ds_read_b64_tr_b16 v[{r}:{r+1}], v{ad} offset:{(ks%8)*5120 + nt*32 + hi*2560}")
    def mf(ks):
        stt = AF + (ks % 2)*20
        for nt in range(5):
            d = ACC + 4*nt
            cc = "0" if ks == 0 else f"v[{d}:{d+3}]"
            a(f"v_mfma_f32_16x16x32_bf16 v[{d}:{d+3}], v[{stt+nt*4}:{stt+nt*4+3}], v[{OB+4*ks}:{OB+4*ks+3}], {cc}")
    areads(0)
    for ks in range(20):
        if ks + 1 < 20:
            areads(ks + 1)
            a(f"s_waitcnt vmcnt({20 - ks}) lgkmcnt(10)")
        else:
            a("s_waitcnt vmcnt(0) lgkmcnt(0)")
        mf(ks)
    st()
    for i in range(4): a(f"v_readfirstlane_b32 s{44+i}, v{8+i}")
    a("s_lshr_b32 s33, s57, 4")
    for tok in range(2):
        a(f"s_lshr_b32 s38, s{44+tok}, 4")
        a("s_cmp_lg_u32 s38, s33")
        a(f"s_cbranch_scc1 K2_NOMOE{tok}")
        a(f"s_and_b32 s38, s{44+tok}, 15")
        a("v_cmp_eq_u32 vcc, s38, v3")
        a("s_and_saveexec_b64 s[40:41], vcc")
        a("v_lshlrev_b32 v5, 4, v4")
        a("s_mul_i32 s39, s55, 320")
        a(f"s_add_u32 s39, s39, {WS_YP + tok*2560}")
        for nt in range(5):
            a(f"buffer_load_dwordx4 v[{AF+4*nt}:{AF+4*nt+3}], v5, s[24:27], s39 offen offset:{nt*64} sc1")
        a("s_waitcnt vmcnt(0)")
        for nt in range(5):
            for e in range(4):
                y = AF + 4*nt + e
                a(f"v_cvt_pk_bf16_f32 v{y}, 0, v{y}")
                a(f"v_mul_f32 v{y}, s{46+tok}, v{y}")
                a(f"v_cvt_pk_bf16_f32 v{y}, 0, v{y}")
            for d in range(2):
                xn = XR + 10 + 2*nt + d
                a(f"v_lshlrev_b32 v6, 16, v{xn}")
                a(f"v_and_b32 v7, 0xffff0000, v{xn}")
                a(f"v_add_f32 v6, v6, v{AF+4*nt+2*d}")
                a(f"v_add_f32 v7, v7, v{AF+4*nt+2*d+1}")
                a(f"v_cvt_pk_bf16_f32 v{xn}, v6, v7")
        a("s_mov_b64 exec, s[40:41]")
        a.label(f"K2_NOMOE{tok}")
        a.fence(4)
    for nt in range(5):
        for d in range(2):
            A0 = ACC + 4*nt + 2*d
            x = XR + 2*nt + d; xn = XR + 10 + 2*nt + d
            a(f"v_cvt_pk_bf16_f32 v{A0}, 0, v{A0}")
            a(f"v_cvt_pk_bf16_f32 v{A0+1}, 0, v{A0+1}")
            a(f"v_lshlrev_b32 v6, 16, v{x}")
            a(f"v_and_b32 v7, 0xffff0000, v{x}")
            a(f"v_add_f32 v{A0}, v{A0}, v6")
            a(f"v_add_f32 v{A0+1}, v{A0+1}, v7")
            a(f"v_cvt_pk_bf16_f32 v{A0}, 0, v{A0}")
            a(f"v_cvt_pk_bf16_f32 v{A0+1}, 0, v{A0+1}")
            a(f"v_lshlrev_b32 v6, 16, v{xn}")
            a(f"v_and_b32 v7, 0xffff0000, v{xn}")
            a(f"v_add_f32 v{A0}, v{A0}, v6")
            a(f"v_add_f32 v{A0+1}, v{A0+1}, v7")
            a(f"v_cvt_pk_bf16_f32 v{x}, v{A0}, v{A0+1}")
        a(f"buffer_store_dwordx2 v[{XR+2*nt}:{XR+2*nt+1}], v16, s[20:23], 0 offen offset:{nt*32}")
    if instr:
        a("s_waitcnt vmcnt(0)")
        st()
        st.dump(1, 30, 2)
    a("s_endpgm")
    for t in (0, 4):
        a.label(f"K2_RC{t}")
        a("s_call_b64 s[60:61], K2_RECENTER")
        a(f"s_branch K2_NR{t}")
    a.label("K2_RECENTER")
    a.fence(16)
    a("s_add_u32 s72, s72, 1")
    mm(O[1], V0, PP[1], O[1])
    mm(O[1], V0+4, PP[1]+4, O[1])
    for i in range(8): a(f"v_mov_b32 v{PP[1]+i}, 0")
    for sd in range(2):
        a(f"v_frexp_exp_i32_f32 v{T}, v{O[sd]+12}")
        a(f"v_sub_u32 v{T}, {L_TARGET+1}, v{T}")
        for i in range(13): a(f"v_ldexp_f32 v{O[sd]+i}, v{O[sd]+i}, v{T}")
        a(f"v_cvt_f32_i32 v{T}, v{T}")
        a(f"v_add_f32 v{NEG[sd]}, v{NEG[sd]}, v{T}")
        if sd == 0:
            for i in range(16): a(f"v_add_f32 v{S[0]+i}, v{S[0]+i}, v{T}")
        split_neg(sd)
    a("s_nop 3")
    a("s_setpc_b64 s[60:61]")
    gen_producer(a, vDma)
    a.label("K2_END")
    a("s_endpgm")
    return a.text(), K2F_VGPR

def gen_producer(a, vDma):
    a.label("K2_KVDMA")
    for part in range(2):
        for g, n in ((0, 4), (1, 4), (2, 2)):
            a(f"s_add_u32 m0, s42, {part*KH + g*4096}")
            a(f"s_add_u32 s48, s43, {g*4096 + part*(C_V - C_K)}")
            for i in range(n):
                a(f"buffer_load_dwordx4 v{vDma}, s[24:27], s48 offen offset:{i*1024} lds")
    a(f"s_add_u32 s43, s43, {KH}")
    a("s_mov_b32 s45, s40")
    a("s_mov_b32 s40, s41")
    a("s_mov_b32 s41, s42")
    a("s_mov_b32 s42, s45")
    a("s_setpc_b64 s[60:61]")
    a.label("K2_WODMA")
    for ii in range(5):
        a(f"s_add_u32 m0, s59, {ii*1024}")
        a(f"buffer_load_dwordx4 v{10+ii}, s[16:19], s58 offen lds")
    a("s_add_u32 s58, s58, 40960")
    a("s_add_u32 s59, s59, 5120")
    a("s_setpc_b64 s[62:63]")
    def kv(): a("s_call_b64 s[60:61], K2_KVDMA")
    def wo(n):
        for _ in range(n): a("s_call_b64 s[62:63], K2_WODMA")
    a.label("K2_PROD")
    a.fence(4)
    a("s_load_dwordx4 s[64:67], s[0:1], 40")
    a("s_load_dwordx2 s[68:69], s[0:1], 56")
    a(f"s_mov_b32 s40, {2*KVB}")
    a("s_mov_b32 s41, 0")
    a(f"s_mov_b32 s42, {KVB}")
    a(f"s_add_u32 s43, s32, {KH}")
    kv()
    srd(a, 16, 6, 819200)
    for ii in range(5):
        a(f"v_add_u32 v5, {ii*64}, v2")
        a("v_mul_u32_u24 v6, 52429, v5")
        a("v_lshrrev_b32 v6, 19, v6")
        a("v_mul_u32_u24 v7, 10, v6")
        a("v_sub_u32 v7, v5, v7")
        a("v_and_b32 v8, 3, v6")
        a("v_bfe_u32 v9, v6, 2, 2")
        a("v_lshl_add_u32 v8, v9, 3, v8")
        a("v_lshrrev_b32 v9, 4, v6")
        a("v_lshl_add_u32 v6, v9, 2, v8")
        a("v_mul_u32_u24 v6, 1280, v6")
        a("v_lshl_add_u32 v6, v7, 4, v6")
        a(f"v_add_u32 v{10+ii}, s56, v6")
    a("s_mov_b32 s58, 0")
    a(f"s_mov_b32 s59, {REG}")
    a("s_and_b32 s51, s2, 7")
    a("s_mul_i32 s51, s51, 14")
    a("s_lshr_b32 s45, s2, 3")
    a("s_add_u32 s51, s51, s45")
    a("s_cmp_ge_u32 s45, 14")
    a("s_cbranch_scc1 K2_PPLAIN")
    a(f"s_cmp_ge_u32 s51, {NM2}")
    a("s_cbranch_scc1 K2_PPLAIN")
    a(f"s_mov_b32 s45, {WS_R}")
    for jx in range(8):
        if jx == 4: a(f"s_mov_b32 s45, {WS_R + 4096}")
        a(f"buffer_load_dwordx4 v[{32+4*jx}:{35+4*jx}], v{vDma}, s[24:27], s45 offen offset:{(jx%4)*1024}")
    a("s_waitcnt vmcnt(28) lgkmcnt(0)")
    a("s_barrier")
    srd(a, 84, 64, 640*3456)
    srd(a, 88, 66, 640*3456)
    srd(a, 92, 68, 1728*1280)
    a("v_lshrrev_b32 v5, 1, v2")
    a("v_mul_u32_u24 v16, 3456, v5")
    a("v_and_b32 v5, 1, v2")
    a("v_lshl_add_u32 v16, v5, 4, v16")
    a("s_lshl_b32 s45, s51, 5")
    a("v_add_u32 v16, s45, v16")
    a("s_waitcnt vmcnt(0)")
    def combine(n1, n2):
        a(f"v_min_u32 v20, v18, v{n1}")
        a(f"v_max_u32 v18, v18, v{n1}")
        a(f"v_max3_u32 v19, v20, v19, v{n2}")
    a("v_max_u32 v18, v32, v33"); a("v_min_u32 v19, v32, v33")
    for p in range(34, 64, 2):
        a(f"v_max_u32 v21, v{p}, v{p+1}"); a(f"v_min_u32 v22, v{p}, v{p+1}")
        combine(21, 22)
    for stp in (1, 2, 4, 8, 16, 32):
        a(f"v_xor_b32 v23, {stp}, v2")
        a("v_lshlrev_b32 v23, 2, v23")
        a("ds_bpermute_b32 v21, v23, v18")
        a("ds_bpermute_b32 v22, v23, v19")
        a("s_waitcnt lgkmcnt(0)")
        combine(21, 22)
    a("v_readfirstlane_b32 s70, v18")
    a("v_readfirstlane_b32 s71, v19")
    a("s_and_b32 s46, s70, 0xffff"); a("s_sub_u32 s46, 2047, s46")
    a("s_and_b32 s47, s71, 0xffff"); a("s_sub_u32 s47, 2047, s47")
    def wchunk(t0, t1):
        for t in range(t0, t1):
            a(f"s_mov_b32 s45, {t*110592}")
            a(f"s_mov_b32 m0, {WG_ + t*1024}")
            a("buffer_load_dwordx4 v16, s[84:87], s45 offen lds")
            a(f"s_mov_b32 m0, {WU_ + t*1024}")
            a("buffer_load_dwordx4 v16, s[88:91], s45 offen lds")
    srd(a, 96, 8, 2621440)
    a("v_mov_b32 v23, 0")
    for tok in range(2):
        a(f"s_mul_i32 s45, s{46+tok}, 1280")
        a(f"s_mov_b32 m0, {XS_ + tok*1280}")
        a(f"buffer_load_dwordx4 v{vDma}, s[96:99], s45 offen lds")
        a("s_mov_b64 exec, 0xffff")
        a(f"buffer_load_dwordx4 v{vDma}, s[96:99], s45 offen offset:1024 lds")
        a("s_mov_b64 exec, -1")
        a(f"s_lshl_b32 s45, s{46+tok}, 3")
        a(f"s_add_u32 s45, s45, {WS_ST}")
        a(f"buffer_load_dwordx2 v[{60+tok*2}:{61+tok*2}], v23, s[24:27], s45 offen")
    wchunk(0, 8)
    a("s_barrier")
    kv()
    wchunk(8, 20)
    a("s_waitcnt vmcnt(24)")
    a("s_barrier")
    kv()
    a("s_mul_i32 s45, s51, 20480")
    for g in range(5):
        a(f"s_mov_b32 m0, {WD_ + g*4096}")
        for i in range(4):
            a(f"buffer_load_dwordx4 v{vDma}, s[92:95], s45 offen offset:{i*1024} lds")
        if g < 4: a("s_add_u32 s45, s45, 4096")
    a("s_waitcnt vmcnt(20)")
    a("s_barrier")
    kv()
    a("v_lshrrev_b32 v4, 4, v2")
    a("v_and_b32 v5, 1, v2")
    a("v_mul_u32_u24 v20, 1280, v5")
    a(f"v_add_u32 v20, {XS_}, v20")
    a(f"v_mov_b32 v6, {ONES}")
    a("v_and_b32 v7, 2, v2")
    a("v_cmp_eq_u32 vcc, 0, v7")
    a("v_cndmask_b32 v20, v6, v20, vcc")
    a("v_lshl_add_u32 v20, v4, 3, v20")
    a("v_bfe_u32 v6, v2, 2, 2")
    a("v_lshl_add_u32 v6, v4, 2, v6")
    a("v_and_b32 v7, 3, v2")
    a("v_lshlrev_b32 v21, 5, v6")
    a("v_lshl_add_u32 v21, v7, 3, v21")
    a(f"v_add_u32 v21, {WG_}, v21")
    a("v_mul_u32_u24 v22, 1280, v6")
    a("v_lshl_add_u32 v22, v7, 3, v22")
    a(f"v_add_u32 v22, {WD_}, v22")
    for i in range(8): a(f"v_mov_b32 v{24+i}, 0")
    a("s_mov_b32 s45, 0")
    a.label("K2_GU")
    for u in range(2):
        b = 32 + u*12
        a(f"ds_read_b64 v[{b}:{b+1}], v20 offset:{u*64}")
        a(f"ds_read_b64 v[{b+2}:{b+3}], v20 offset:{u*64+32}")
        for mat in range(2):
            a(f"ds_read_b64_tr_b16 v[{b+4+4*mat}:{b+5+4*mat}], v21 offset:{mat*20480 + u*1024}")
            a(f"ds_read_b64_tr_b16 v[{b+6+4*mat}:{b+7+4*mat}], v21 offset:{mat*20480 + u*1024 + 512}")
    a("v_add_u32 v20, 128, v20")
    a("v_add_u32 v21, 2048, v21")
    a("s_waitcnt lgkmcnt(0)")
    for u in range(2):
        b = 32 + u*12
        for mat in range(2):
            a(f"v_mfma_f32_16x16x32_bf16 v[{24+4*mat}:{27+4*mat}], v[{b}:{b+3}], v[{b+4+4*mat}:{b+7+4*mat}], v[{24+4*mat}:{27+4*mat}]")
    a("s_add_u32 s45, s45, 1")
    a("s_cmp_lt_u32 s45, 10")
    a("s_cbranch_scc1 K2_GU")
    a("s_waitcnt vmcnt(0)")
    a("s_barrier")
    kv()
    for tok in range(2):
        g = 24 + tok; u = 28 + tok
        a(f"v_fma_f32 v{g}, -v{60+2*tok}, v26, v{g}")
        a(f"v_fma_f32 v{u}, -v{60+2*tok}, v30, v{u}")
        a(f"v_mul_f32 v{g}, v{g}, v{61+2*tok}")
        a(f"v_mul_f32 v{u}, v{u}, v{61+2*tok}")
        a(f"v_cvt_pk_bf16_f32 v{g}, 0, v{g}")
        a(f"v_cvt_pk_bf16_f32 v{u}, 0, v{u}")
        a(f"v_mul_f32 v32, {f32(-LOG2E)}, v{g}")
        a("v_exp_f32 v32, v32")
        a("v_add_f32 v32, 1.0, v32")
        a("v_rcp_f32 v32, v32")
        a(f"v_mul_f32 v32, v{g}, v32")
        a("v_cvt_pk_bf16_f32 v32, 0, v32")
        a(f"v_mul_f32 v32, v32, v{u}")
        a(f"v_cvt_pk_bf16_f32 v{33+tok}, v32, 0")
    a("v_lshlrev_b32 v23, 1, v2")
    a(f"v_add_u32 v23, {HB_}, v23")
    a("s_mov_b64 exec, 0xffff")
    a("ds_write_b16 v23, v33")
    a("ds_write_b16 v23, v34 offset:32")
    a("s_mov_b64 exec, -1")
    a("v_lshlrev_b32 v23, 5, v5")
    a("v_lshl_add_u32 v23, v4, 3, v23")
    a(f"v_add_u32 v23, {HB_}, v23")
    a("s_waitcnt lgkmcnt(0)")
    a("ds_read_b64 v[24:25], v23")
    a("v_mov_b32 v26, 0"); a("v_mov_b32 v27, 0")
    for q in range(4):
        a(f"v_mov_b32 v{34+4*q}, 0"); a(f"v_mov_b32 v{35+4*q}, 0")
    a("v_lshlrev_b32 v23, 2, v2")
    a(f"s_mov_b32 s46, {WS_YP}")
    a("s_mov_b32 s47, 0")
    a.label("K2_DN")
    for q in range(4):
        a(f"ds_read_b64_tr_b16 v[{32+4*q}:{33+4*q}], v22 offset:{q*32}")
    a("v_add_u32 v22, 128, v22")
    a("s_waitcnt lgkmcnt(0)")
    for q in range(4):
        a(f"v_mfma_f32_16x16x32_bf16 v[{48+4*q}:{51+4*q}], v[24:27], v[{32+4*q}:{35+4*q}], 0")
    a("s_mov_b64 exec, 0xffff")
    for q in range(4):
        for tok in range(2):
            a(f"buffer_atomic_add_f32 v{48+4*q+tok}, v23, s[24:27], s46 offen offset:{tok*2560 + q*64}")
    a("s_mov_b64 exec, -1")
    a("s_add_u32 s46, s46, 256")
    a("s_add_u32 s47, s47, 1")
    a("s_cmp_lg_u32 s47, 5")
    a("s_cbranch_scc1 K2_DN1")
    a("s_waitcnt vmcnt(40)")
    a("s_barrier")
    kv()
    a.label("K2_DN1")
    a("s_cmp_lt_u32 s47, 10")
    a("s_cbranch_scc1 K2_DN")
    a("s_cmp_lg_u32 s51, 0")
    a("s_cbranch_scc1 K2_NOIDX")
    for tok in range(2):
        k = 70 + tok
        a(f"s_and_b32 s45, s{k}, 0xffff")
        a("s_sub_u32 s45, 2047, s45")
        a(f"v_mov_b32 v{32+tok}, s45")
        a(f"s_and_b32 s45, s{k}, 0xffff0000")
        a("s_xor_b32 s46, s45, 0x80000000")
        a("s_xor_b32 s47, s45, 0xffff0000")
        a("s_bitcmp1_b32 s45, 31")
        a("s_cselect_b32 s45, s46, s47")
        a(f"v_mov_b32 v{34+tok}, s45")
        a(f"v_mul_f32 v{34+tok}, {f32(-LOG2E)}, v{34+tok}")
        a(f"v_exp_f32 v{34+tok}, v{34+tok}")
        a(f"v_add_f32 v{34+tok}, 1.0, v{34+tok}")
        a(f"v_rcp_f32 v{34+tok}, v{34+tok}")
        a(f"v_cvt_pk_bf16_f32 v{34+tok}, 0, v{34+tok}")
    a("v_mov_b32 v23, 0")
    a(f"s_mov_b32 s45, {WS_IDX}")
    a("s_mov_b64 exec, 1")
    a("buffer_store_dwordx4 v[32:35], v23, s[24:27], s45 offen sc1")
    a("s_mov_b64 exec, -1")
    a.label("K2_NOIDX")
    a.fence(4)
    a("s_waitcnt vmcnt(40)")
    a("s_barrier")
    kv()
    wo(6)
    a("s_waitcnt vmcnt(30)")
    a("s_barrier")
    a("v_mov_b32 v23, 0")
    a("v_mov_b32 v24, 1")
    a(f"s_mov_b32 s45, {WS_CNT + 2048}")
    a("s_mov_b64 exec, 1")
    a("buffer_atomic_add v24, v23, s[24:27], s45 offen sc1")
    a("s_mov_b64 exec, -1")
    wo(6)
    a("s_barrier")
    a("s_branch K2_PTAIL")
    a.label("K2_PPLAIN")
    a.fence(4)
    a("s_waitcnt vmcnt(20) lgkmcnt(0)")
    a("s_barrier")
    a("s_mov_b32 s44, 0")
    a("s_waitcnt vmcnt(0)")
    a.label("K2_PLOOP")
    a("s_barrier")
    a("s_cmp_ge_u32 s44, 6")
    a("s_cbranch_scc1 K2_PNODMA")
    kv()
    a.label("K2_PNODMA")
    a("s_cmp_lg_u32 s50, 0")
    a("s_cbranch_scc1 K2_PNOWO")
    wo(2)
    a("s_waitcnt vmcnt(10)")
    a("s_branch K2_PNEXT")
    a.label("K2_PNOWO")
    a("s_waitcnt vmcnt(0)")
    a.label("K2_PNEXT")
    a("s_add_u32 s44, s44, 1")
    a("s_cmp_lt_u32 s44, 8")
    a("s_cbranch_scc1 K2_PLOOP")
    a.label("K2_PTAIL")
    a.fence(4)
    a("v_mov_b32 v20, 0")
    a("s_mov_b32 s44, 0")
    a(f"s_mov_b32 s47, {WS_CNT + 2048}")
    a("buffer_load_dword v26, v20, s[24:27], s47 offen sc1")
    a.label("K2_PGO")
    a(f"s_cmp_ge_u32 s58, {16*40960}")
    a("s_cbranch_scc1 K2_PGO2")
    wo(1)
    a("s_branch K2_PGO")
    a.label("K2_PGO2")
    a(f"s_mov_b32 s58, {16*40960}")
    a("s_mov_b32 s59, 0")
    wo(4)
    a("s_barrier")
    a("s_cmp_lg_u32 s50, 0")
    a("s_cbranch_scc1 K2_PPOLL")
    a(f"v_mov_b32 v28, {F_FLAG}")
    a("ds_read_b32 v29, v28")
    a("s_waitcnt lgkmcnt(0)")
    a("v_readfirstlane_b32 s46, v29")
    a("s_cmp_eq_u32 s46, 0")
    a("s_cbranch_scc1 K2_PPOLL")
    a("s_waitcnt vmcnt(0)")
    a("s_mov_b32 s50, 1")
    a("s_mov_b32 s43, s32")
    a("s_mov_b32 s44, 0")
    a.label("K2_PMAX")
    a("s_barrier")
    a("s_mov_b32 s42, 0")
    kv()
    a("s_waitcnt vmcnt(0)")
    a("s_barrier")
    a("s_add_u32 s44, s44, 1")
    a("s_cmp_lt_u32 s44, 8")
    a("s_cbranch_scc1 K2_PMAX")
    a("s_barrier")
    a(f"s_mov_b32 s40, {KVB}")
    a(f"s_mov_b32 s41, {2*KVB}")
    a("s_mov_b32 s42, 0")
    a("s_mov_b32 s43, s32")
    kv(); kv()
    a("s_branch K2_PPLAIN")
    a.label("K2_PPOLL")
    a.fence(4)
    a("v_mov_b32 v20, 0")
    a("s_mov_b64 exec, 1")
    a("s_lshl_b32 s45, s29, 8")
    a(f"s_add_u32 s45, s45, {WS_CNT}")
    if FLAGS:
        a("s_mov_b64 exec, 0xffffffff")
        a("v_lshlrev_b32 v21, 2, v2")
        a.label("K2_POLL2")
        a("buffer_load_dword v22, v21, s[24:27], s45 offen sc1")
        a("s_waitcnt vmcnt(0)")
        a("v_cmp_ne_u32 vcc, 0, v22")
        a("s_cmp_eq_u32 vcc_lo, -1")
        a("s_cbranch_scc1 K2_PDONE")
        a(f"s_sleep {POLL_SLEEP}")
        a("s_add_u32 s44, s44, 1")
        a(f"s_cmp_lt_u32 s44, {SPIN_MAX}")
        a("s_cbranch_scc1 K2_POLL2")
    elif POLL2:
        a("buffer_load_dword v22, v20, s[24:27], s45 offen sc1")
        a(f"s_sleep {POLL2}")
        a.label("K2_POLL2")
        for q in range(2):
            a(f"buffer_load_dword v{23-q}, v20, s[24:27], s45 offen sc1")
            a("s_waitcnt vmcnt(1)")
            a(f"v_readfirstlane_b32 s46, v{22+q}")
            a("s_cmp_ge_u32 s46, 32")
            a("s_cbranch_scc1 K2_PDONE")
            a(f"s_sleep {POLL2}")
        a("s_add_u32 s44, s44, 1")
        a(f"s_cmp_lt_u32 s44, {SPIN_MAX}")
        a("s_cbranch_scc1 K2_POLL2")
    else:
        a.label("K2_POLL2")
        a("buffer_load_dword v22, v20, s[24:27], s45 offen sc1")
        a("s_waitcnt vmcnt(0)")
        a("v_readfirstlane_b32 s46, v22")
        a("s_cmp_ge_u32 s46, 32")
        a("s_cbranch_scc1 K2_PDONE")
        a(f"s_sleep {POLL_SLEEP}")
        a("s_add_u32 s44, s44, 1")
        a(f"s_cmp_lt_u32 s44, {SPIN_MAX}")
        a("s_cbranch_scc1 K2_POLL2")
    a.label("K2_PDONE")
    a(f"s_mov_b32 s47, {WS_CNT + 2048}")
    a.label("K2_POLL1")
    a("v_readfirstlane_b32 s46, v26")
    a(f"s_cmp_ge_u32 s46, {NM2}")
    a("s_cbranch_scc1 K2_POLL1_OK")
    a("s_add_u32 s44, s44, 1")
    a(f"s_cmp_ge_u32 s44, {SPIN_MAX}")
    a("s_cbranch_scc1 K2_POLL1_OK")
    a("s_sleep 4")
    a("buffer_load_dword v26, v20, s[24:27], s47 offen sc1")
    a("s_waitcnt vmcnt(0)")
    a("s_branch K2_POLL1")
    a.label("K2_POLL1_OK")
    a("s_barrier")
```

```python
from asmlib import Asm
from gen import *
import os

KH = 256 * RB
KVB = 2 * KH
TS = 32 * RB
ONES = 3 * KVB
F_FLAG = ONES + KH
REG = F_FLAG + 256
K2F_LDS = REG + 16 * 5120
LOG2E = 1.4426950408889634
C32 = struct.unpack("<f", struct.pack("<I", 0x3e64f92e))[0]
L_TARGET = -100
L_THRESH = os.environ.get("LT", "0x3f800000")
K2F_VGPR = 224
NM2 = 108
WG_, WU_, WD_ = REG, REG + 20480, REG + 40960
XS_ = REG + 61440
HB_ = XS_ + 2560
SPIN_MAX = 1 << 20
XLOC = int(os.environ.get("XL", 0))
FLAGS = int(os.environ.get("FL", 1))
POLL2 = int(os.environ.get("P2", 0))
POLL_SLEEP = int(os.environ.get("PS", 4))
WS_CNT = WS_YP + 5120 + 1024

def gen_k2f(instr=False, slots=None):
    a = Asm()
    st = Stamps(a, instr, base=74)
    st()
    a("s_cmp_ge_u32 s2, 256")
    a("s_cbranch_scc1 K2_END")
    a("s_load_dwordx2 s[10:11], s[0:1], 80")
    a("s_load_dwordx2 s[6:7], s[0:1], 16")
    a("s_load_dwordx2 s[8:9], s[0:1], 0")
    a("s_load_dwordx2 s[52:53], s[0:1], 64")
    a("s_and_b32 s28, s2, 7")
    a("s_lshr_b32 s29, s2, 3")
    a("s_lshr_b32 s30, s29, 3")
    a("s_lshl_b32 s28, s28, 2")
    a("s_add_u32 s28, s28, s30")
    a("s_and_b32 s29, s29, 7")
    a("v_lshrrev_b32 v1, 6, v0")
    a("v_and_b32 v2, 63, v0")
    a("v_readfirstlane_b32 s30, v1")
    QH = [4, 16]; QL = [8, 20]; QX = [12, 24]
    KA = [28, 36]; KX = [32, 40]; V0 = 44
    S = [52, 68]; PP = [84, 92]; O = [100, 116]; T = 132
    NEG = [140, 141]
    vKl, vXl, vVl, vKc, vXc, vVc, vKn, vXn, vDma, vMsk = range(142, 152)
    a("v_lshrrev_b32 v3, 5, v2")
    a(f"v_lshlrev_b32 v{vDma}, 4, v2")
    if XLOC:
        a("s_and_b32 s73, s2, 7")
        a("s_lshl_b32 s54, s73, 2")
        a("s_lshr_b32 s55, s2, 6")
        a("s_add_u32 s54, s54, s55")
        a("s_lshr_b32 s55, s2, 3")
        a("s_and_b32 s55, s55, 7")
    else:
        a("s_lshr_b32 s54, s28, 3")
        a("s_lshl_b32 s55, s29, 2")
        a("s_add_u32 s54, s54, s55")
        a("s_and_b32 s55, s28, 7")
    a("s_mul_i32 s56, s55, 160")
    a("s_waitcnt lgkmcnt(0)")
    srd(a, 24, 10, WS_SIZE)
    a(f"s_mul_i32 s31, s28, {HB2}")
    a(f"s_add_u32 s32, s31, {C_K}")
    a("s_mov_b32 s50, 0")
    a("s_cmp_lg_u32 s30, 4")
    a("s_cbranch_scc1 K2_COMP")
    a("s_setprio 3")
    for part in range(2):
        for g, n in ((0, 4), (1, 4), (2, 2)):
            a(f"s_mov_b32 m0, {part*KH + g*4096}")
            a(f"s_add_u32 s48, s32, {g*4096 + part*(C_V - C_K)}")
            for i in range(n):
                a(f"buffer_load_dwordx4 v{vDma}, s[24:27], s48 offen offset:{i*1024} lds")
    a("s_branch K2_PROD")
    a.label("K2_COMP")
    a(f"v_and_b32 v{T}, 31, v2")
    a(f"v_mul_u32_u24 v{T+1}, {RB}, v{T}")
    a(f"v_lshl_add_u32 v{vKc}, v3, 4, v{T+1}")
    a(f"v_add_u32 v{vXc}, 32, v{T+1}")
    a(f"v_lshlrev_b32 v{vKl}, 5, v{T}")
    a(f"v_lshl_add_u32 v{vKl}, v3, 4, v{vKl}")
    a(f"v_lshlrev_b32 v{vXl}, 3, v{T}")
    a(f"v_add_u32 v{vXl}, 8192, v{vXl}")
    a("s_lshl_b32 s34, s29, 8")
    a("s_lshl_b32 s35, s30, 6")
    a("s_add_u32 s34, s34, s35")
    a(f"s_mul_i32 s35, s34, {RB}")
    a("s_add_u32 s35, s35, s31")
    for sd in range(2):
        for i in range(4): a(f"v_mov_b32 v{QX[sd]+i}, 0")
        a(f"buffer_load_dwordx2 v[{QH[sd]}:{QH[sd]+1}], v{vKc}, s[24:27], s35 offen offset:{sd*TS}")
        a(f"buffer_load_dwordx2 v[{QH[sd]+2}:{QH[sd]+3}], v{vKc}, s[24:27], s35 offen offset:{sd*TS+8}")
    a("s_mov_b64 exec, 0xffffffff")
    for sd in range(2):
        a(f"buffer_load_dwordx2 v[{QX[sd]}:{QX[sd]+1}], v{vXc}, s[24:27], s35 offen offset:{sd*TS}")
    a("s_mov_b64 exec, -1")
    XR = 192; EA = 214
    a("s_lshl_b32 s57, s54, 6")
    a("s_lshl_b32 s33, s30, 4")
    a("s_add_u32 s57, s57, s33")
    a(f"v_and_b32 v{T+2}, 15, v2")
    a(f"v_lshrrev_b32 v{T+3}, 4, v2")
    a(f"v_add_u32 v{T+4}, s57, v{T+2}")
    a(f"v_mul_u32_u24 v{T+4}, 1280, v{T+4}")
    a(f"v_lshl_add_u32 v{EA}, v{T+3}, 3, v{T+4}")
    a(f"v_add_u32 v{EA}, s56, v{EA}")
    srd(a, 16, 8, 2621440)
    srd(a, 20, 52, 2621440)
    a(f"v_lshlrev_b32 v215, 3, v{T+2}")
    a("s_lshl_b32 s58, s57, 3")
    a(f"s_add_u32 s58, s58, {WS_ST}")
    a(f"v_and_b32 v{T+3}, 31, v2")
    a(f"v_mul_u32_u24 v{T+2}, 320, v3")
    a(f"v_lshl_add_u32 v{T+2}, v{T+3}, 4, v{T+2}")
    a(f"v_add_u32 v{T+2}, {KH}, v{T+2}")
    a(f"v_mov_b32 v{T+4}, {ONES}")
    a(f"v_cmp_gt_u32 vcc, 20, v{T+3}")
    a(f"v_cndmask_b32 v{vVl}, v{T+4}, v{T+2}, vcc")
    a(f"v_cndmask_b32 v{vMsk}, 0, -1, vcc")
    a(f"v_mov_b32 v{T}, 0x3f803f80")
    for i in range(1, 4): a(f"v_mov_b32 v{T+i}, v{T}")
    for kb in range(2):
        a(f"v_mov_b32 v{KX[kb]+2}, v{T}"); a(f"v_mov_b32 v{KX[kb]+3}, v{T}")
    a(f"v_lshlrev_b32 v{T+4}, 4, v0")
    a(f"v_add_u32 v{T+4}, {ONES}, v{T+4}")
    a(f"ds_write_b128 v{T+4}, v[{T}:{T+3}]")
    a(f"ds_write_b128 v{T+4}, v[{T}:{T+3}] offset:4096")
    a(f"v_lshlrev_b32 v{T+4}, 3, v0")
    a(f"v_add_u32 v{T+4}, {ONES + 8192}, v{T+4}")
    a(f"ds_write_b64 v{T+4}, v[{T}:{T+1}]")
    a("s_mov_b32 s72, 0")
    def mm(d, x, y, c):
        cc = "0" if c is None else f"v[{c}:{c+15}]"
        a(f"v_mfma_f32_32x32x16_bf16 v[{d}:{d+15}], v[{x}:{x+3}], v[{y}:{y+3}], {cc}")
    def qk(sd, kb):
        mm(S[sd], KA[kb], QH[sd], None); mm(S[sd], KX[kb], QX[sd], S[sd])
    def kread(aK, aX, t, kb):
        a(f"ds_read_b128 v[{KA[kb]}:{KA[kb]+3}], v{aK} offset:{t*1024}")
        a(f"ds_read_b64 v[{KX[kb]}:{KX[kb]+1}], v{aX} offset:{t*256}")
    def vread(addr, t):
        for aa in range(2):
            r = V0 + aa*4
            a(f"ds_read_b128 v[{r}:{r+3}], v{addr} offset:{(2*t + aa)*640}")
    def halfmax(r, tmp):
        a(f"v_mov_b32 v{tmp}, v{r}")
        a(f"v_permlane32_swap_b32 v{r}, v{tmp}")
        a(f"v_max_f32 v{r}, v{r}, v{tmp}")
    def split_neg(sd):
        a(f"v_cvt_pk_bf16_f32 v{T+2}, 0, v{NEG[sd]}")
        a(f"v_sub_f32 v{T+3}, v{NEG[sd]}, v{T+2}")
        a(f"v_cvt_pk_bf16_f32 v{T+4}, 0, v{T+3}")
        a(f"v_sub_f32 v{T+3}, v{T+3}, v{T+4}")
        a("s_mov_b64 exec, 0xffffffff")
        a(f"v_cvt_pk_bf16_f32 v{QX[sd]+2}, v{T+2}, v{T+4}")
        a(f"v_cvt_pk_bf16_f32 v{QX[sd]+3}, v{T+3}, 0")
        a("s_mov_b64 exec, -1")
    a(f"v_mov_b32 v{T}, {F_FLAG}")
    a(f"v_mov_b32 v{T+1}, 0")
    a(f"ds_write_b32 v{T}, v{T+1}")
    a("s_waitcnt vmcnt(0)")
    a.label("K2_MAIN")
    a.fence(4)
    a("s_mov_b32 s40, 0")
    a(f"s_mov_b32 s41, {KVB}")
    a(f"s_mov_b32 s42, {2*KVB}")
    for i in range(32): a(f"v_mov_b32 v{O[0]+i}, 0")
    for i in range(8): a(f"v_mov_b32 v{PP[1]+i}, 0")
    for i in range(8): a(f"v_mov_b32 v{V0+i}, 0")
    a("s_waitcnt lgkmcnt(0)")
    st()
    a("s_barrier")
    a(f"v_mov_b32 v{vKc}, v{vKl}")
    a(f"v_mov_b32 v{vXc}, v{vXl}")
    a(f"v_mov_b32 v{vVc}, v{vVl}")
    a(f"v_add_u32 v{vKn}, {KVB}, v{vKl}")
    a(f"v_add_u32 v{vXn}, {KVB}, v{vXl}")
    kread(vKc, vXc, 0, 0)
    a("s_waitcnt lgkmcnt(0)")
    qk(0, 0)
    a("s_cmp_lg_u32 s50, 0")
    a("s_cbranch_scc1 K2_SKIPMAX")
    qk(1, 0)
    for sd in range(2):
        a(f"v_max3_f32 v{T}, v{S[sd]}, v{S[sd]+1}, v{S[sd]+2}")
        for i in range(3, 15, 2):
            a(f"v_max3_f32 v{T}, v{T}, v{S[sd]+i}, v{S[sd]+i+1}")
        a(f"v_max_f32 v{T}, v{T}, v{S[sd]+15}")
        halfmax(T, T+1)
        a(f"v_sub_f32 v{NEG[sd]}, {f32(float(L_TARGET))}, v{T}")
        split_neg(sd)
    for i in range(16): a(f"v_add_f32 v{S[0]+i}, v{S[0]+i}, v{NEG[0]}")
    for nt in range(5):
        a(f"buffer_load_dwordx2 v[{XR+2*nt}:{XR+2*nt+1}], v{EA}, s[16:19], 0 offen offset:{nt*32}")
    a(f"buffer_load_dwordx2 v[212:213], v215, s[24:27], s58 offen")
    a.label("K2_SKIPMAX")
    a.fence(16)
    a("s_mov_b32 s44, 0")
    a("s_mov_b64 vcc, 0")
    st()
    a.label("K2_LOOP")
    if slots is None: slots = [8, 48, 88, 128]
    for t in range(8):
        for sd in range(2):
            Sc = S[sd]; Pc = PP[sd]; ot = sd ^ 1
            if sd == 0 and t % 4 == 0:
                a(f"s_cbranch_vccnz K2_RC{t}")
                a.label(f"K2_NR{t}")
            if sd == 0 and t == 7:
                a("s_barrier")
            E = []
            for i in range(8):
                E.append((f"v_exp_f32 v{Sc+2*i}, v{Sc+2*i}", 8))
                E.append((f"v_exp_f32 v{Sc+2*i+1}, v{Sc+2*i+1}", 8))
                if i > 0: E.append((f"v_cvt_pk_bf16_f32 v{Pc+i-1}, v{Sc+2*i-2}, v{Sc+2*i-1}", 4))
            E.append((f"v_cvt_pk_bf16_f32 v{Pc+7}, v{Sc+14}, v{Sc+15}", 4))
            names = ["qkA", "qkC", "pv0", "pv1"]
            kb = (t % 2) if sd == 0 else ((t+1) % 2)
            pos = 0; k = 0; n = 0
            for ins, cst in E:
                while k < 4 and pos >= slots[k]:
                    what = names[k]; k += 1
                    if what == "qkA":
                        if sd == 1: a("s_waitcnt lgkmcnt(2)")
                        mm(S[ot], KA[kb], QH[ot], None)
                    elif what == "qkB": mm(S[ot], KA[kb], QL[ot], S[ot])
                    elif what == "qkC": mm(S[ot], KX[kb], QX[ot], S[ot])
                    elif what == "pv0":
                        if sd == 1: a("s_waitcnt lgkmcnt(0)")
                        mm(O[ot], V0, PP[ot], O[ot])
                    elif what == "pv1":
                        mm(O[ot], V0+4, PP[ot]+4, O[ot])
                        if sd == 0: vread(vVc, t)
                a(ins); pos += cst; n += 1
                if sd == 1 and t % 4 == 3 and n == 8:
                    a(f"v_max_f32 v{T}, v{O[0]+12}, v{O[1]+12}")
                    a(f"v_cmp_lt_f32 vcc, {L_THRESH}, v{T}")
                if sd == 0 and n == 1:
                    if t + 1 < 8: kread(vKc, vXc, t+1, (t+1) % 2)
                    else: kread(vKn, vXn, 0, 0)
            assert k == 4
    a("s_mov_b32 s45, s40")
    a("s_mov_b32 s40, s41")
    a("s_mov_b32 s41, s42")
    a("s_mov_b32 s42, s45")
    a(f"v_add_u32 v{vKc}, s40, v{vKl}")
    a(f"v_add_u32 v{vXc}, s40, v{vXl}")
    a(f"v_and_b32 v{vVc}, s40, v{vMsk}")
    a(f"v_add_u32 v{vVc}, v{vVc}, v{vVl}")
    a(f"v_add_u32 v{vKn}, s41, v{vKl}")
    a(f"v_add_u32 v{vXn}, s41, v{vXl}")
    a("s_add_u32 s44, s44, 1")
    a("s_cmp_lt_u32 s44, 8")
    a("s_cbranch_scc1 K2_LOOP")
    st()
    mm(O[1], V0, PP[1], O[1])
    mm(O[1], V0+4, PP[1]+4, O[1])
    a("s_waitcnt lgkmcnt(0)")
    a("s_cmp_lg_u32 s50, 0")
    a("s_cbranch_scc1 K2_EPI")
    a(f"v_mul_f32 v{T}, 0, v{O[0]}")
    for sd in range(2):
        for i in range(13):
            if sd or i: a(f"v_fma_f32 v{T}, v{O[sd]+i}, 0, v{T}")
    a(f"v_cmp_u_f32 vcc, v{T}, v{T}")
    a(f"v_mov_b32 v{T+1}, {F_FLAG}")
    a(f"v_mov_b32 v{T+2}, 1")
    a("s_and_saveexec_b64 s[46:47], vcc")
    a("s_cbranch_execz K2_NOFLAG")
    a(f"ds_write_b32 v{T+1}, v{T+2}")
    a.label("K2_NOFLAG")
    a("s_mov_b64 exec, s[46:47]")
    a("s_branch K2_EPI")
    a.label("K2_FALLBACK")
    a.fence(4)
    a("s_mov_b32 s50, 1")
    a("s_mov_b32 s44, 0")
    for sd in range(2):
        a(f"v_mov_b32 v{QX[sd]+2}, 0")
        a(f"v_mov_b32 v{QX[sd]+3}, 0")
        a(f"v_mov_b32 v{T+6+sd}, 0xff800000")
    a.label("K2_MAXLOOP")
    a("s_barrier")
    a("s_barrier")
    a("s_mov_b32 s45, 0")
    a(f"v_mov_b32 v{vKc}, v{vKl}")
    a(f"v_mov_b32 v{vXc}, v{vXl}")
    a.label("K2_MAXT")
    kread(vKc, vXc, 0, 0)
    a(f"v_add_u32 v{vKc}, 1024, v{vKc}")
    a(f"v_add_u32 v{vXc}, 256, v{vXc}")
    a("s_waitcnt lgkmcnt(0)")
    qk(0, 0); qk(1, 0)
    for sd in range(2):
        for i in range(0, 16, 2):
            a(f"v_max3_f32 v{T+6+sd}, v{T+6+sd}, v{S[sd]+i}, v{S[sd]+i+1}")
    a("s_add_u32 s45, s45, 1")
    a("s_cmp_lt_u32 s45, 8")
    a("s_cbranch_scc1 K2_MAXT")
    a("s_add_u32 s44, s44, 1")
    a("s_cmp_lt_u32 s44, 8")
    a("s_cbranch_scc1 K2_MAXLOOP")
    for sd in range(2):
        halfmax(T+6+sd, T+1)
        a(f"v_sub_f32 v{NEG[sd]}, {f32(float(L_TARGET))}, v{T+6+sd}")
        split_neg(sd)
    a("s_barrier")
    a("s_branch K2_MAIN")
    a.label("K2_EPI")
    a.fence(16)
    a("v_and_b32 v152, 31, v2")
    a("v_add_u32 v152, s34, v152")
    a("v_lshrrev_b32 v153, 4, v152")
    a("v_mul_u32_u24 v153, 20480, v153")
    a("v_and_b32 v152, 15, v152")
    a("v_lshl_add_u32 v152, v152, 4, v153")
    a(f"s_mov_b32 s36, {WS_O}")
    a(f"s_mov_b32 s37, {WS_O + 2*20480}")
    a("s_mul_i32 s35, s28, 5")
    a("s_add_u32 s33, s35, 1")
    a("s_lshr_b32 s33, s33, 1")
    a("v_add_u32 v153, s33, v3")
    a("v_lshl_add_u32 v156, v153, 8, v152")
    a("s_and_b32 s38, s28, 1")
    a("s_add_u32 s39, s33, 2")
    a("s_lshl_b32 s39, s39, 8")
    a("s_sub_u32 s33, s33, 1")
    a("s_lshl_b32 s33, s33, 8")
    a("s_add_u32 s33, s33, 8")
    a("s_cmp_eq_u32 s38, 0")
    a("s_cselect_b32 s33, s39, s33")
    a("v_add_u32 v157, s33, v152")
    for sd in range(2):
        a(f"v_rcp_f32 v{T}, v{O[sd]+12}")
        for i in range(12): a(f"v_mul_f32 v{O[sd]+i}, v{O[sd]+i}, v{T}")
        for i in range(6): a(f"v_cvt_pk_bf16_f32 v{PP[sd]+i}, v{O[sd]+2*i}, v{O[sd]+2*i+1}")
    a("s_cmp_lg_u32 s38, 0")
    a("s_cbranch_scc1 K2_ODDH")
    for sd in range(2):
        p = PP[sd]
        a(f"v_permlane32_swap_b32 v{p}, v{p+2}")
        a(f"v_permlane32_swap_b32 v{p+1}, v{p+3}")
        a(f"buffer_store_dwordx4 v[{p}:{p+3}], v156, s[24:27], s{36+sd} offen sc1")
    a("s_mov_b64 exec, 0xffffffff")
    for sd in range(2):
        a(f"buffer_store_dwordx2 v[{PP[sd]+4}:{PP[sd]+5}], v157, s[24:27], s{36+sd} offen sc1")
    a("s_mov_b64 exec, -1")
    a("s_branch K2_OST")
    a.label("K2_ODDH")
    a.fence(4)
    a("s_mov_b64 exec, 0xffffffff")
    for sd in range(2):
        a(f"buffer_store_dwordx2 v[{PP[sd]}:{PP[sd]+1}], v157, s[24:27], s{36+sd} offen sc1")
    a("s_mov_b64 exec, -1")
    for sd in range(2):
        p = PP[sd]; d = O[sd]
        a(f"v_permlane32_swap_b32 v{p}, v{p+4}")
        a(f"v_permlane32_swap_b32 v{p+1}, v{p+5}")
        a(f"v_mov_b32 v{d}, v{p+2}"); a(f"v_mov_b32 v{d+1}, v{p+3}")
        a(f"v_mov_b32 v{d+2}, v{p}"); a(f"v_mov_b32 v{d+3}, v{p+1}")
        a("s_mov_b64 exec, 0xffffffff")
        a(f"v_mov_b32 v{d}, v{p+4}"); a(f"v_mov_b32 v{d+1}, v{p+5}")
        a(f"v_mov_b32 v{d+2}, v{p+2}"); a(f"v_mov_b32 v{d+3}, v{p+3}")
        a("s_mov_b64 exec, -1")
        a(f"buffer_store_dwordx4 v[{d}:{d+3}], v156, s[24:27], s{36+sd} offen sc1")
    a.label("K2_OST")
    a.fence(4)
    a("s_waitcnt vmcnt(0) lgkmcnt(0)")
    st()
    a("s_barrier")
    a("s_cmp_lg_u32 s50, 0")
    a("s_cbranch_scc1 K2_OK")
    a(f"v_mov_b32 v{T+1}, {F_FLAG}")
    a(f"ds_read_b32 v{T+2}, v{T+1}")
    a("s_waitcnt lgkmcnt(0)")
    a(f"v_readfirstlane_b32 s46, v{T+2}")
    a("s_cmp_lg_u32 s46, 0")
    a("s_cbranch_scc1 K2_FALLBACK")
    a.label("K2_OK")
    a("s_cmp_lg_u32 s30, 0")
    a("s_cbranch_scc1 K2_NOSIG")
    a("v_mov_b32 v6, 1")
    a("s_lshl_b32 s33, s29, 8")
    a(f"s_add_u32 s33, s33, {WS_CNT}")
    a("s_lshl_b32 s38, s28, 2")
    a("v_mov_b32 v7, s38")
    a("s_mov_b64 exec, 1")
    a("buffer_store_dword v6, v7, s[24:27], s33 offen sc1")
    a("s_mov_b64 exec, -1")
    a.label("K2_NOSIG")
    OB = 40; ACC = 20; AF = 140
    a("v_and_b32 v3, 15, v2")
    a("v_lshrrev_b32 v4, 4, v2")
    a("v_lshlrev_b32 v15, 4, v2")
    a(f"v_mov_b32 v16, v{EA}")
    a("v_bfe_u32 v5, v2, 2, 2")
    a("v_lshl_add_u32 v5, v4, 2, v5")
    a("v_mul_u32_u24 v5, 160, v5")
    a("v_and_b32 v6, 3, v2")
    a("v_lshl_add_u32 v19, v6, 3, v5")
    a(f"v_add_u32 v17, {REG}, v19")
    a(f"v_add_u32 v18, {REG + 40960}, v19")
    for q in range(10):
        x = XR + q; xn = XR + 10 + q
        a(f"v_lshlrev_b32 v6, 16, v{x}")
        a(f"v_and_b32 v7, 0xffff0000, v{x}")
        a("v_sub_f32 v6, v6, v212"); a("v_sub_f32 v7, v7, v212")
        a("v_cvt_pk_bf16_f32 v6, 0, v6"); a("v_cvt_pk_bf16_f32 v7, 0, v7")
        a("v_mul_f32 v6, v6, v213"); a("v_mul_f32 v7, v7, v213")
        a(f"v_cvt_pk_bf16_f32 v{xn}, v6, v7")
    a("s_barrier")
    st()
    a("s_lshr_b32 s36, s57, 4")
    a("s_mul_i32 s36, s36, 20480")
    a(f"s_add_u32 s36, s36, {WS_O}")
    for ks in range(20):
        if ks % 4 == 0 and ks: a("s_add_u32 s36, s36, 4096")
        a(f"buffer_load_dwordx4 v[{OB+4*ks}:{OB+4*ks+3}], v15, s[24:27], s36 offen offset:{(ks%4)*1024} sc1")
    a("v_mov_b32 v6, 0")
    a(f"s_mov_b32 s38, {WS_IDX}")
    a("buffer_load_dwordx4 v[8:11], v6, s[24:27], s38 offen sc1")
    def areads(ks):
        stt = AF + (ks % 2)*20
        ad = 17 if ks < 8 else (18 if ks < 16 else 19)
        for nt in range(5):
            for hi in range(2):
                r = stt + nt*4 + hi*2
                a(f"ds_read_b64_tr_b16 v[{r}:{r+1}], v{ad} offset:{(ks%8)*5120 + nt*32 + hi*2560}")
    def mf(ks):
        stt = AF + (ks % 2)*20
        for nt in range(5):
            d = ACC + 4*nt
            cc = "0" if ks == 0 else f"v[{d}:{d+3}]"
            a(f"v_mfma_f32_16x16x32_bf16 v[{d}:{d+3}], v[{stt+nt*4}:{stt+nt*4+3}], v[{OB+4*ks}:{OB+4*ks+3}], {cc}")
    areads(0)
    for ks in range(20):
        if ks + 1 < 20:
            areads(ks + 1)
            a(f"s_waitcnt vmcnt({20 - ks}) lgkmcnt(10)")
        else:
            a("s_waitcnt vmcnt(0) lgkmcnt(0)")
        mf(ks)
    st()
    for i in range(4): a(f"v_readfirstlane_b32 s{44+i}, v{8+i}")
    a("s_lshr_b32 s33, s57, 4")
    for tok in range(2):
        a(f"s_lshr_b32 s38, s{44+tok}, 4")
        a("s_cmp_lg_u32 s38, s33")
        a(f"s_cbranch_scc1 K2_NOMOE{tok}")
        a(f"s_and_b32 s38, s{44+tok}, 15")
        a("v_cmp_eq_u32 vcc, s38, v3")
        a("s_and_saveexec_b64 s[40:41], vcc")
        a("v_lshlrev_b32 v5, 4, v4")
        a("s_mul_i32 s39, s55, 320")
        a(f"s_add_u32 s39, s39, {WS_YP + tok*2560}")
        for nt in range(5):
            a(f"buffer_load_dwordx4 v[{AF+4*nt}:{AF+4*nt+3}], v5, s[24:27], s39 offen offset:{nt*64} sc1")
        a("s_waitcnt vmcnt(0)")
        for nt in range(5):
            for e in range(4):
                y = AF + 4*nt + e
                a(f"v_cvt_pk_bf16_f32 v{y}, 0, v{y}")
                a(f"v_mul_f32 v{y}, s{46+tok}, v{y}")
                a(f"v_cvt_pk_bf16_f32 v{y}, 0, v{y}")
            for d in range(2):
                xn = XR + 10 + 2*nt + d
                a(f"v_lshlrev_b32 v6, 16, v{xn}")
                a(f"v_and_b32 v7, 0xffff0000, v{xn}")
                a(f"v_add_f32 v6, v6, v{AF+4*nt+2*d}")
                a(f"v_add_f32 v7, v7, v{AF+4*nt+2*d+1}")
                a(f"v_cvt_pk_bf16_f32 v{xn}, v6, v7")
        a("s_mov_b64 exec, s[40:41]")
        a.label(f"K2_NOMOE{tok}")
        a.fence(4)
    for nt in range(5):
        for d in range(2):
            A0 = ACC + 4*nt + 2*d
            x = XR + 2*nt + d; xn = XR + 10 + 2*nt + d
            a(f"v_cvt_pk_bf16_f32 v{A0}, 0, v{A0}")
            a(f"v_cvt_pk_bf16_f32 v{A0+1}, 0, v{A0+1}")
            a(f"v_lshlrev_b32 v6, 16, v{x}")
            a(f"v_and_b32 v7, 0xffff0000, v{x}")
            a(f"v_add_f32 v{A0}, v{A0}, v6")
            a(f"v_add_f32 v{A0+1}, v{A0+1}, v7")
            a(f"v_cvt_pk_bf16_f32 v{A0}, 0, v{A0}")
            a(f"v_cvt_pk_bf16_f32 v{A0+1}, 0, v{A0+1}")
            a(f"v_lshlrev_b32 v6, 16, v{xn}")
            a(f"v_and_b32 v7, 0xffff0000, v{xn}")
            a(f"v_add_f32 v{A0}, v{A0}, v6")
            a(f"v_add_f32 v{A0+1}, v{A0+1}, v7")
            a(f"v_cvt_pk_bf16_f32 v{x}, v{A0}, v{A0+1}")
        a(f"buffer_store_dwordx2 v[{XR+2*nt}:{XR+2*nt+1}], v16, s[20:23], 0 offen offset:{nt*32}")
    if instr:
        a("s_waitcnt vmcnt(0)")
        st()
        st.dump(1, 30, 2)
    a("s_endpgm")
    for t in (0, 4):
        a.label(f"K2_RC{t}")
        a("s_call_b64 s[60:61], K2_RECENTER")
        a(f"s_branch K2_NR{t}")
    a.label("K2_RECENTER")
    a.fence(16)
    a("s_add_u32 s72, s72, 1")
    mm(O[1], V0, PP[1], O[1])
    mm(O[1], V0+4, PP[1]+4, O[1])
    for i in range(8): a(f"v_mov_b32 v{PP[1]+i}, 0")
    for sd in range(2):
        a(f"v_frexp_exp_i32_f32 v{T}, v{O[sd]+12}")
        a(f"v_sub_u32 v{T}, {L_TARGET+1}, v{T}")
        for i in range(13): a(f"v_ldexp_f32 v{O[sd]+i}, v{O[sd]+i}, v{T}")
        a(f"v_cvt_f32_i32 v{T}, v{T}")
        a(f"v_add_f32 v{NEG[sd]}, v{NEG[sd]}, v{T}")
        if sd == 0:
            for i in range(16): a(f"v_add_f32 v{S[0]+i}, v{S[0]+i}, v{T}")
        split_neg(sd)
    a("s_nop 3")
    a("s_setpc_b64 s[60:61]")
    gen_producer(a, vDma)
    a.label("K2_END")
    a("s_endpgm")
    return a.text(), K2F_VGPR

def gen_producer(a, vDma):
    a.label("K2_KVDMA")
    for part in range(2):
        for g, n in ((0, 4), (1, 4), (2, 2)):
            a(f"s_add_u32 m0, s42, {part*KH + g*4096}")
            a(f"s_add_u32 s48, s43, {g*4096 + part*(C_V - C_K)}")
            for i in range(n):
                a(f"buffer_load_dwordx4 v{vDma}, s[24:27], s48 offen offset:{i*1024} lds")
    a(f"s_add_u32 s43, s43, {KH}")
    a("s_mov_b32 s45, s40")
    a("s_mov_b32 s40, s41")
    a("s_mov_b32 s41, s42")
    a("s_mov_b32 s42, s45")
    a("s_setpc_b64 s[60:61]")
    a.label("K2_WODMA")
    for ii in range(5):
        a(f"s_add_u32 m0, s59, {ii*1024}")
        a(f"buffer_load_dwordx4 v{10+ii}, s[16:19], s58 offen lds")
    a("s_add_u32 s58, s58, 40960")
    a("s_add_u32 s59, s59, 5120")
    a("s_setpc_b64 s[62:63]")
    def kv(): a("s_call_b64 s[60:61], K2_KVDMA")
    def wo(n):
        for _ in range(n): a("s_call_b64 s[62:63], K2_WODMA")
    a.label("K2_PROD")
    a.fence(4)
    a("s_load_dwordx4 s[64:67], s[0:1], 40")
    a("s_load_dwordx2 s[68:69], s[0:1], 56")
    a(f"s_mov_b32 s40, {2*KVB}")
    a("s_mov_b32 s41, 0")
    a(f"s_mov_b32 s42, {KVB}")
    a(f"s_add_u32 s43, s32, {KH}")
    kv()
    srd(a, 16, 6, 819200)
    for ii in range(5):
        a(f"v_add_u32 v5, {ii*64}, v2")
        a("v_mul_u32_u24 v6, 52429, v5")
        a("v_lshrrev_b32 v6, 19, v6")
        a("v_mul_u32_u24 v7, 10, v6")
        a("v_sub_u32 v7, v5, v7")
        a("v_and_b32 v8, 3, v6")
        a("v_bfe_u32 v9, v6, 2, 2")
        a("v_lshl_add_u32 v8, v9, 3, v8")
        a("v_lshrrev_b32 v9, 4, v6")
        a("v_lshl_add_u32 v6, v9, 2, v8")
        a("v_mul_u32_u24 v6, 1280, v6")
        a("v_lshl_add_u32 v6, v7, 4, v6")
        a(f"v_add_u32 v{10+ii}, s56, v6")
    a("s_mov_b32 s58, 0")
    a(f"s_mov_b32 s59, {REG}")
    a("s_and_b32 s51, s2, 7")
    a("s_mul_i32 s51, s51, 14")
    a("s_lshr_b32 s45, s2, 3")
    a("s_add_u32 s51, s51, s45")
    a("s_cmp_ge_u32 s45, 14")
    a("s_cbranch_scc1 K2_PPLAIN")
    a(f"s_cmp_ge_u32 s51, {NM2}")
    a("s_cbranch_scc1 K2_PPLAIN")
    a(f"s_mov_b32 s45, {WS_R}")
    for jx in range(8):
        if jx == 4: a(f"s_mov_b32 s45, {WS_R + 4096}")
        a(f"buffer_load_dwordx4 v[{32+4*jx}:{35+4*jx}], v{vDma}, s[24:27], s45 offen offset:{(jx%4)*1024}")
    a("s_waitcnt vmcnt(28) lgkmcnt(0)")
    a("s_barrier")
    srd(a, 84, 64, 640*3456)
    srd(a, 88, 66, 640*3456)
    srd(a, 92, 68, 1728*1280)
    a("v_lshrrev_b32 v5, 1, v2")
    a("v_mul_u32_u24 v16, 3456, v5")
    a("v_and_b32 v5, 1, v2")
    a("v_lshl_add_u32 v16, v5, 4, v16")
    a("s_lshl_b32 s45, s51, 5")
    a("v_add_u32 v16, s45, v16")
    a("s_waitcnt vmcnt(0)")
    def combine(n1, n2):
        a(f"v_min_u32 v20, v18, v{n1}")
        a(f"v_max_u32 v18, v18, v{n1}")
        a(f"v_max3_u32 v19, v20, v19, v{n2}")
    a("v_max_u32 v18, v32, v33"); a("v_min_u32 v19, v32, v33")
    for p in range(34, 64, 2):
        a(f"v_max_u32 v21, v{p}, v{p+1}"); a(f"v_min_u32 v22, v{p}, v{p+1}")
        combine(21, 22)
    for stp in (1, 2, 4, 8, 16, 32):
        a(f"v_xor_b32 v23, {stp}, v2")
        a("v_lshlrev_b32 v23, 2, v23")
        a("ds_bpermute_b32 v21, v23, v18")
        a("ds_bpermute_b32 v22, v23, v19")
        a("s_waitcnt lgkmcnt(0)")
        combine(21, 22)
    a("v_readfirstlane_b32 s70, v18")
    a("v_readfirstlane_b32 s71, v19")
    a("s_and_b32 s46, s70, 0xffff"); a("s_sub_u32 s46, 2047, s46")
    a("s_and_b32 s47, s71, 0xffff"); a("s_sub_u32 s47, 2047, s47")
    def wchunk(t0, t1):
        for t in range(t0, t1):
            a(f"s_mov_b32 s45, {t*110592}")
            a(f"s_mov_b32 m0, {WG_ + t*1024}")
            a("buffer_load_dwordx4 v16, s[84:87], s45 offen lds")
            a(f"s_mov_b32 m0, {WU_ + t*1024}")
            a("buffer_load_dwordx4 v16, s[88:91], s45 offen lds")
    srd(a, 96, 8, 2621440)
    a("v_mov_b32 v23, 0")
    for tok in range(2):
        a(f"s_mul_i32 s45, s{46+tok}, 1280")
        a(f"s_mov_b32 m0, {XS_ + tok*1280}")
        a(f"buffer_load_dwordx4 v{vDma}, s[96:99], s45 offen lds")
        a("s_mov_b64 exec, 0xffff")
        a(f"buffer_load_dwordx4 v{vDma}, s[96:99], s45 offen offset:1024 lds")
        a("s_mov_b64 exec, -1")
        a(f"s_lshl_b32 s45, s{46+tok}, 3")
        a(f"s_add_u32 s45, s45, {WS_ST}")
        a(f"buffer_load_dwordx2 v[{60+tok*2}:{61+tok*2}], v23, s[24:27], s45 offen")
    wchunk(0, 8)
    a("s_barrier")
    kv()
    wchunk(8, 20)
    a("s_waitcnt vmcnt(24)")
    a("s_barrier")
    kv()
    a("s_mul_i32 s45, s51, 20480")
    for g in range(5):
        a(f"s_mov_b32 m0, {WD_ + g*4096}")
        for i in range(4):
            a(f"buffer_load_dwordx4 v{vDma}, s[92:95], s45 offen offset:{i*1024} lds")
        if g < 4: a("s_add_u32 s45, s45, 4096")
    a("s_waitcnt vmcnt(20)")
    a("s_barrier")
    kv()
    a("v_lshrrev_b32 v4, 4, v2")
    a("v_and_b32 v5, 1, v2")
    a("v_mul_u32_u24 v20, 1280, v5")
    a(f"v_add_u32 v20, {XS_}, v20")
    a(f"v_mov_b32 v6, {ONES}")
    a("v_and_b32 v7, 2, v2")
    a("v_cmp_eq_u32 vcc, 0, v7")
    a("v_cndmask_b32 v20, v6, v20, vcc")
    a("v_lshl_add_u32 v20, v4, 3, v20")
    a("v_bfe_u32 v6, v2, 2, 2")
    a("v_lshl_add_u32 v6, v4, 2, v6")
    a("v_and_b32 v7, 3, v2")
    a("v_lshlrev_b32 v21, 5, v6")
    a("v_lshl_add_u32 v21, v7, 3, v21")
    a(f"v_add_u32 v21, {WG_}, v21")
    a("v_mul_u32_u24 v22, 1280, v6")
    a("v_lshl_add_u32 v22, v7, 3, v22")
    a(f"v_add_u32 v22, {WD_}, v22")
    for i in range(8): a(f"v_mov_b32 v{24+i}, 0")
    a("s_mov_b32 s45, 0")
    a.label("K2_GU")
    for u in range(2):
        b = 32 + u*12
        a(f"ds_read_b64 v[{b}:{b+1}], v20 offset:{u*64}")
        a(f"ds_read_b64 v[{b+2}:{b+3}], v20 offset:{u*64+32}")
        for mat in range(2):
            a(f"ds_read_b64_tr_b16 v[{b+4+4*mat}:{b+5+4*mat}], v21 offset:{mat*20480 + u*1024}")
            a(f"ds_read_b64_tr_b16 v[{b+6+4*mat}:{b+7+4*mat}], v21 offset:{mat*20480 + u*1024 + 512}")
    a("v_add_u32 v20, 128, v20")
    a("v_add_u32 v21, 2048, v21")
    a("s_waitcnt lgkmcnt(0)")
    for u in range(2):
        b = 32 + u*12
        for mat in range(2):
            a(f"v_mfma_f32_16x16x32_bf16 v[{24+4*mat}:{27+4*mat}], v[{b}:{b+3}], v[{b+4+4*mat}:{b+7+4*mat}], v[{24+4*mat}:{27+4*mat}]")
    a("s_add_u32 s45, s45, 1")
    a("s_cmp_lt_u32 s45, 10")
    a("s_cbranch_scc1 K2_GU")
    a("s_waitcnt vmcnt(0)")
    a("s_barrier")
    kv()
    for tok in range(2):
        g = 24 + tok; u = 28 + tok
        a(f"v_fma_f32 v{g}, -v{60+2*tok}, v26, v{g}")
        a(f"v_fma_f32 v{u}, -v{60+2*tok}, v30, v{u}")
        a(f"v_mul_f32 v{g}, v{g}, v{61+2*tok}")
        a(f"v_mul_f32 v{u}, v{u}, v{61+2*tok}")
        a(f"v_cvt_pk_bf16_f32 v{g}, 0, v{g}")
        a(f"v_cvt_pk_bf16_f32 v{u}, 0, v{u}")
        a(f"v_mul_f32 v32, {f32(-LOG2E)}, v{g}")
        a("v_exp_f32 v32, v32")
        a("v_add_f32 v32, 1.0, v32")
        a("v_rcp_f32 v32, v32")
        a(f"v_mul_f32 v32, v{g}, v32")
        a("v_cvt_pk_bf16_f32 v32, 0, v32")
        a(f"v_mul_f32 v32, v32, v{u}")
        a(f"v_cvt_pk_bf16_f32 v{33+tok}, v32, 0")
    a("v_lshlrev_b32 v23, 1, v2")
    a(f"v_add_u32 v23, {HB_}, v23")
    a("s_mov_b64 exec, 0xffff")
    a("ds_write_b16 v23, v33")
    a("ds_write_b16 v23, v34 offset:32")
    a("s_mov_b64 exec, -1")
    a("v_lshlrev_b32 v23, 5, v5")
    a("v_lshl_add_u32 v23, v4, 3, v23")
    a(f"v_add_u32 v23, {HB_}, v23")
    a("s_waitcnt lgkmcnt(0)")
    a("ds_read_b64 v[24:25], v23")
    a("v_mov_b32 v26, 0"); a("v_mov_b32 v27, 0")
    for q in range(4):
        a(f"v_mov_b32 v{34+4*q}, 0"); a(f"v_mov_b32 v{35+4*q}, 0")
    a("v_lshlrev_b32 v23, 2, v2")
    a(f"s_mov_b32 s46, {WS_YP}")
    a("s_mov_b32 s47, 0")
    a.label("K2_DN")
    for q in range(4):
        a(f"ds_read_b64_tr_b16 v[{32+4*q}:{33+4*q}], v22 offset:{q*32}")
    a("v_add_u32 v22, 128, v22")
    a("s_waitcnt lgkmcnt(0)")
    for q in range(4):
        a(f"v_mfma_f32_16x16x32_bf16 v[{48+4*q}:{51+4*q}], v[24:27], v[{32+4*q}:{35+4*q}], 0")
    a("s_mov_b64 exec, 0xffff")
    for q in range(4):
        for tok in range(2):
            a(f"buffer_atomic_add_f32 v{48+4*q+tok}, v23, s[24:27], s46 offen offset:{tok*2560 + q*64}")
    a("s_mov_b64 exec, -1")
    a("s_add_u32 s46, s46, 256")
    a("s_add_u32 s47, s47, 1")
    a("s_cmp_lg_u32 s47, 5")
    a("s_cbranch_scc1 K2_DN1")
    a("s_waitcnt vmcnt(40)")
    a("s_barrier")
    kv()
    a.label("K2_DN1")
    a("s_cmp_lt_u32 s47, 10")
    a("s_cbranch_scc1 K2_DN")
    a("s_cmp_lg_u32 s51, 0")
    a("s_cbranch_scc1 K2_NOIDX")
    for tok in range(2):
        k = 70 + tok
        a(f"s_and_b32 s45, s{k}, 0xffff")
        a("s_sub_u32 s45, 2047, s45")
        a(f"v_mov_b32 v{32+tok}, s45")
        a(f"s_and_b32 s45, s{k}, 0xffff0000")
        a("s_xor_b32 s46, s45, 0x80000000")
        a("s_xor_b32 s47, s45, 0xffff0000")
        a("s_bitcmp1_b32 s45, 31")
        a("s_cselect_b32 s45, s46, s47")
        a(f"v_mov_b32 v{34+tok}, s45")
        a(f"v_mul_f32 v{34+tok}, {f32(-LOG2E)}, v{34+tok}")
        a(f"v_exp_f32 v{34+tok}, v{34+tok}")
        a(f"v_add_f32 v{34+tok}, 1.0, v{34+tok}")
        a(f"v_rcp_f32 v{34+tok}, v{34+tok}")
        a(f"v_cvt_pk_bf16_f32 v{34+tok}, 0, v{34+tok}")
    a("v_mov_b32 v23, 0")
    a(f"s_mov_b32 s45, {WS_IDX}")
    a("s_mov_b64 exec, 1")
    a("buffer_store_dwordx4 v[32:35], v23, s[24:27], s45 offen sc1")
    a("s_mov_b64 exec, -1")
    a.label("K2_NOIDX")
    a.fence(4)
    a("s_waitcnt vmcnt(40)")
    a("s_barrier")
    kv()
    wo(6)
    a("s_waitcnt vmcnt(30)")
    a("s_barrier")
    a("v_mov_b32 v23, 0")
    a("v_mov_b32 v24, 1")
    a(f"s_mov_b32 s45, {WS_CNT + 2048}")
    a("s_mov_b64 exec, 1")
    a("buffer_atomic_add v24, v23, s[24:27], s45 offen sc1")
    a("s_mov_b64 exec, -1")
    wo(6)
    a("s_barrier")
    a("s_branch K2_PTAIL")
    a.label("K2_PPLAIN")
    a.fence(4)
    a("s_waitcnt vmcnt(20) lgkmcnt(0)")
    a("s_barrier")
    a("s_mov_b32 s44, 0")
    a("s_waitcnt vmcnt(0)")
    a.label("K2_PLOOP")
    a("s_barrier")
    a("s_cmp_ge_u32 s44, 6")
    a("s_cbranch_scc1 K2_PNODMA")
    kv()
    a.label("K2_PNODMA")
    a("s_cmp_lg_u32 s50, 0")
    a("s_cbranch_scc1 K2_PNOWO")
    wo(2)
    a("s_waitcnt vmcnt(10)")
    a("s_branch K2_PNEXT")
    a.label("K2_PNOWO")
    a("s_waitcnt vmcnt(0)")
    a.label("K2_PNEXT")
    a("s_add_u32 s44, s44, 1")
    a("s_cmp_lt_u32 s44, 8")
    a("s_cbranch_scc1 K2_PLOOP")
    a.label("K2_PTAIL")
    a.fence(4)
    a("v_mov_b32 v20, 0")
    a("s_mov_b32 s44, 0")
    a(f"s_mov_b32 s47, {WS_CNT + 2048}")
    a("buffer_load_dword v26, v20, s[24:27], s47 offen sc1")
    a.label("K2_PGO")
    a(f"s_cmp_ge_u32 s58, {16*40960}")
    a("s_cbranch_scc1 K2_PGO2")
    wo(1)
    a("s_branch K2_PGO")
    a.label("K2_PGO2")
    a(f"s_mov_b32 s58, {16*40960}")
    a("s_mov_b32 s59, 0")
    wo(4)
    a("s_barrier")
    a("s_cmp_lg_u32 s50, 0")
    a("s_cbranch_scc1 K2_PPOLL")
    a(f"v_mov_b32 v28, {F_FLAG}")
    a("ds_read_b32 v29, v28")
    a("s_waitcnt lgkmcnt(0)")
    a("v_readfirstlane_b32 s46, v29")
    a("s_cmp_eq_u32 s46, 0")
    a("s_cbranch_scc1 K2_PPOLL")
    a("s_waitcnt vmcnt(0)")
    a("s_mov_b32 s50, 1")
    a("s_mov_b32 s43, s32")
    a("s_mov_b32 s44, 0")
    a.label("K2_PMAX")
    a("s_barrier")
    a("s_mov_b32 s42, 0")
    kv()
    a("s_waitcnt vmcnt(0)")
    a("s_barrier")
    a("s_add_u32 s44, s44, 1")
    a("s_cmp_lt_u32 s44, 8")
    a("s_cbranch_scc1 K2_PMAX")
    a("s_barrier")
    a(f"s_mov_b32 s40, {KVB}")
    a(f"s_mov_b32 s41, {2*KVB}")
    a("s_mov_b32 s42, 0")
    a("s_mov_b32 s43, s32")
    kv(); kv()
    a("s_branch K2_PPLAIN")
    a.label("K2_PPOLL")
    a.fence(4)
    a("v_mov_b32 v20, 0")
    a("s_mov_b64 exec, 1")
    a("s_lshl_b32 s45, s73, 8" if XLOC else "s_lshl_b32 s45, s29, 8")
    a(f"s_add_u32 s45, s45, {WS_CNT}")
    if FLAGS:
        a("s_mov_b64 exec, 0xffffffff")
        a("v_lshlrev_b32 v21, 2, v2")
        a.label("K2_POLL2")
        a("buffer_load_dword v22, v21, s[24:27], s45 offen sc1")
        a("s_waitcnt vmcnt(0)")
        a("v_cmp_ne_u32 vcc, 0, v22")
        a("s_cmp_eq_u32 vcc_lo, -1")
        a("s_cbranch_scc1 K2_PDONE")
        a(f"s_sleep {POLL_SLEEP}")
        a("s_add_u32 s44, s44, 1")
        a(f"s_cmp_lt_u32 s44, {SPIN_MAX}")
        a("s_cbranch_scc1 K2_POLL2")
    elif POLL2:
        a("buffer_load_dword v22, v20, s[24:27], s45 offen sc1")
        a(f"s_sleep {POLL2}")
        a.label("K2_POLL2")
        for q in range(2):
            a(f"buffer_load_dword v{23-q}, v20, s[24:27], s45 offen sc1")
            a("s_waitcnt vmcnt(1)")
            a(f"v_readfirstlane_b32 s46, v{22+q}")
            a("s_cmp_ge_u32 s46, 32")
            a("s_cbranch_scc1 K2_PDONE")
            a(f"s_sleep {POLL2}")
        a("s_add_u32 s44, s44, 1")
        a(f"s_cmp_lt_u32 s44, {SPIN_MAX}")
        a("s_cbranch_scc1 K2_POLL2")
    else:
        a.label("K2_POLL2")
        a("buffer_load_dword v22, v20, s[24:27], s45 offen sc1")
        a("s_waitcnt vmcnt(0)")
        a("v_readfirstlane_b32 s46, v22")
        a("s_cmp_ge_u32 s46, 32")
        a("s_cbranch_scc1 K2_PDONE")
        a(f"s_sleep {POLL_SLEEP}")
        a("s_add_u32 s44, s44, 1")
        a(f"s_cmp_lt_u32 s44, {SPIN_MAX}")
        a("s_cbranch_scc1 K2_POLL2")
    a.label("K2_PDONE")
    a(f"s_mov_b32 s47, {WS_CNT + 2048}")
    a.label("K2_POLL1")
    a("v_readfirstlane_b32 s46, v26")
    a(f"s_cmp_ge_u32 s46, {NM2}")
    a("s_cbranch_scc1 K2_POLL1_OK")
    a("s_add_u32 s44, s44, 1")
    a(f"s_cmp_ge_u32 s44, {SPIN_MAX}")
    a("s_cbranch_scc1 K2_POLL1_OK")
    a("s_sleep 4")
    a("buffer_load_dword v26, v20, s[24:27], s47 offen sc1")
    a("s_waitcnt vmcnt(0)")
    a("s_branch K2_POLL1")
    a.label("K2_POLL1_OK")
    a("s_barrier")
```
